```python
import torch

def _softmax(x, axis=-1):
    return torch.softmax(x, dim=axis)
def _gelu(x):
    return torch.nn.functional.gelu(x, approximate="tanh")
def _silu(x):
    return torch.nn.functional.silu(x)
def _sigmoid(x):
    return torch.sigmoid(x)
def _layernorm(x, axis=-1, eps=1e-5):
    m = x.mean(dim=axis, keepdim=True)
    v = x.var(dim=axis, keepdim=True, unbiased=False)
    return (x - m) / torch.sqrt(v + eps)
def _scatter_add(tgt, idx, src, axis=0):
    return tgt.clone().index_add_(axis, idx, src)
def _segment_sum(src, seg, n):
    out = torch.zeros((n,) + src.shape[1:], dtype=src.dtype)
    return out.index_add_(0, seg, src)
def _pad(x, pw):
    flat = tuple(v for pair in reversed(pw) for v in pair)
    return torch.nn.functional.pad(x, flat)

kernel_name = 'interleave_layers__ssm_conv_h3__linear_kernel_hedgehog__prompt'

def setup_inputs():

    _w = (lambda a: (lambda t: t.to(torch.bfloat16) if t.is_floating_point() else t)(torch.as_tensor(a)))
    def _A_setup():
        B, S, D = 1, 2048, 576
        ks = 4
        return {
            "q": _w((lambda *s: torch.randn(*s, dtype=torch.bfloat16) * 0.05)(B, S, D)),
            "k": _w((lambda *s: torch.randn(*s, dtype=torch.bfloat16) * 0.8)(B, S, D)),
            "v": _w((lambda *s: torch.randn(*s, dtype=torch.bfloat16) * 0.8)(B, S, D)),
            "shift_k": _w((lambda *s: torch.randn(*s, dtype=torch.bfloat16) * 0.8)(D, ks) * 0.5),
            "ssm_k": _w((lambda *s: torch.randn(*s, dtype=torch.bfloat16) * 0.8)(D, S) * (1.0 / S ** 0.5)),
            "ssm_D": _w((lambda *s: torch.randn(*s, dtype=torch.bfloat16) * 0.8)(D)),
        }
    _A_in = _A_setup()

    def _B_setup():
        B, S, D, H = 1, 2048, 576, 32
        Dh = D // H
        return {
            "x": _w((lambda *s: torch.randn(*s, dtype=torch.bfloat16) * 0.05)(B, S, D)),
            "wqkv": _w((lambda *s: torch.randn(*s, dtype=torch.bfloat16) * 0.4)(D, 3 * D)),
            "w_phi": _w((lambda *s: torch.randn(*s, dtype=torch.bfloat16) * 0.4)(H, Dh, Dh) * (Dh ** -0.5)),
            "wo": _w((lambda *s: torch.randn(*s, dtype=torch.bfloat16) * 0.2)(D, D)),
        }
    _B_in = _B_setup()

    return {
        "A_q": _A_in["q"],
        "A_k": _A_in["k"],
        "A_v": _A_in["v"],
        "A_shift_k": _A_in["shift_k"],
        "A_ssm_k": _A_in["ssm_k"],
        "A_ssm_D": _A_in["ssm_D"],
        "B_x": _B_in["x"],
        "B_wqkv": _B_in["wqkv"],
        "B_w_phi": _B_in["w_phi"],
        "B_wo": _B_in["wo"],
    }

def reference(A_q, A_k, A_v, A_shift_k, A_ssm_k, A_ssm_D, B_x, B_wqkv, B_w_phi, B_wo):
    def _A_ref(q, k, v, shift_k, ssm_k, ssm_D):
        B, S, D = q.shape
        ks = shift_k.shape[-1]
        k_pad = _pad(k, ((0, 0), (ks - 1, 0), (0, 0)))
        k_shift = torch.zeros_like(k)
        for t in range(ks):
            k_shift = k_shift + k_pad[:, t:t + S, :] * shift_k[:, ks - 1 - t][None, None, :]
        kv = k_shift * v
        L = 2 * S
        kv_pad = _pad(kv, ((0, 0), (0, S), (0, 0)))
        kf_pad = _pad(ssm_k, ((0, 0), (0, S)))
        kv_f = (lambda x, axes=(-2,-1): torch.fft.rfft2(x.float(), dim=axes))(kv_pad[:, None, :, :], axes=(1, 2))
        kf_f = (lambda x, axes=(-2,-1): torch.fft.rfft2(x.float(), dim=axes))(kf_pad[:, None, :], axes=(1, 2))
        kf_f = (lambda x, *d: x.permute(*d))(kf_f, 1, 2, 0)
        y_f = kv_f * kf_f[None, :, :, :]
        y = (lambda x, s, axes=(-2,-1): torch.fft.irfft2(x, s=s, dim=axes).to(torch.bfloat16))(y_f, (1, L), axes=(1, 2))[:, 0, :S, :]
        y = y + kv * ssm_D[None, None, :]
        return q * y

    def _B_ref(x, wqkv, w_phi, wo):
        B, S, D = x.shape
        H = 32; Dh = D // H
        qkv = (lambda x, *d: x.permute(*d))((x @ wqkv).reshape(B, S, 3, H, Dh), 2, 0, 3, 1, 4)
        q, k, v = qkv[0], qkv[1], qkv[2]
        pq = torch.einsum("bhsd,hdf->bhsf", q, w_phi)
        pk = torch.einsum("bhsd,hdf->bhsf", k, w_phi)
        phi_q = torch.concatenate([_softmax(pq, axis=-1), _softmax(-pq, axis=-1)], axis=-1)
        phi_k = torch.concatenate([_softmax(pk, axis=-1), _softmax(-pk, axis=-1)], axis=-1)
        kv = torch.einsum("bhsf,bhsd->bhfd", phi_k, v)
        z  = torch.einsum("bhsf->bhf", phi_k)
        num = torch.einsum("bhqf,bhfd->bhqd", phi_q, kv)
        den = torch.einsum("bhqf,bhf->bhq", phi_q, z)[..., None] + 1e-6
        o = num / den
        return (lambda x, *d: x.permute(*d))(o, 0, 2, 1, 3).reshape(B, S, D) @ wo

    x = A_q
    x = x + _A_ref(_layernorm(x, axis=-1), A_k, A_v, A_shift_k, A_ssm_k, A_ssm_D)
    x = x + _B_ref(_layernorm(x, axis=-1), B_wqkv, B_w_phi, B_wo)
    x = x + _A_ref(_layernorm(x, axis=-1), A_k, A_v, A_shift_k, A_ssm_k, A_ssm_D)
    x = x + _B_ref(_layernorm(x, axis=-1), B_wqkv, B_w_phi, B_wo)
    return x
```

```python
import re

TRANS = ('v_exp_f32', 'v_log_f32', 'v_rcp_f32', 'v_rsq_f32', 'v_sqrt_f32', 'v_sin_f32', 'v_cos_f32')
RW_DST = ('v_fmac_f32', 'v_dot2c_f32_bf16', 'v_pk_fmac', 'v_writelane_b32', 'v_fmamk', 'v_fmaak')
NO_DST_S = ('s_cmp', 's_bitcmp', 's_waitcnt', 's_barrier', 's_nop', 's_branch', 's_cbranch', 's_endpgm',
            's_setprio', 's_sleep', 's_setpc')


def v(i, n=1):
    return f'v{i}' if n == 1 else f'v[{i}:{i + n - 1}]'


def a(i, n=1):
    return f'a{i}' if n == 1 else f'a[{i}:{i + n - 1}]'


def s(i, n=1):
    return f's{i}' if n == 1 else f's[{i}:{i + n - 1}]'


_reg_re = re.compile(r'^-?\|?(?:abs\()?([vas])(?:(\d+)|\[(\d+):(\d+)\])\)?\|?$')


def regs_of(op):
    op = op.strip()
    if op in ('vcc', 'vcc_lo', 'vcc_hi'):
        return {('s', 'vcc')}
    if op in ('exec', 'exec_lo', 'exec_hi'):
        return {('s', 'exec')}
    if op == 'm0':
        return {('s', 'm0')}
    m = _reg_re.match(op)
    if not m:
        return set()
    k = m.group(1)
    if m.group(2) is not None:
        return {(k, int(m.group(2)))}
    return {(k, i) for i in range(int(m.group(3)), int(m.group(4)) + 1)}


class Ins:
    def __init__(self, text):
        self.text = text
        t = text.strip()
        parts = t.split(None, 1)
        self.op = parts[0]
        rest = parts[1] if len(parts) > 1 else ''
        ops = [x.strip() for x in re.split(r',(?![^\[]*\])', rest)] if rest else []
        mods = ''
        if ops:
            last = ops[-1].split(None, 1)
            ops[-1] = last[0] if last else ''
            mods = last[1] if len(last) > 1 else ''
        self.ops, self.mods = ops, mods
        op = self.op
        self.kind = None
        self.w, self.r = set(), set()
        self.srcA = self.srcB = self.srcC = set()
        self.dpp = ('_dpp' in op) or ('row_' in mods) or ('quad_perm' in mods)
        self.store_data = set()
        self.lds_dma = False
        if op.startswith('v_mfma'):
            self.kind = 'mfma'
            self.w = regs_of(ops[0])
            self.srcA, self.srcB, self.srcC = regs_of(ops[1]), regs_of(ops[2]), regs_of(ops[3])
            self.r = self.srcA | self.srcB | self.srcC
            assert '16x16x32' in op, 'only 4-pass MFMA modelled'
        elif op.startswith('v_'):
            self.kind = 'valu'
            self.w = regs_of(ops[0])
            for o in ops[1:]:
                self.r |= regs_of(o)
            if op.startswith(('v_swap', 'v_permlane')):
                self.w |= regs_of(ops[1])
                self.r |= regs_of(ops[0])
            if op.startswith(RW_DST) or self.dpp:
                self.r |= regs_of(ops[0])
            if op.startswith('v_cndmask') and len(ops) == 3:
                self.r |= {('s', 'vcc')}
            assert not op.startswith('v_cmpx')
            assert '_co_' not in op
        elif op.startswith(('buffer_', 'global_')):
            self.kind = 'vmem'
            assert op.startswith('buffer_'), 'use buffer ops only'
            if 'lds' in mods.split():
                self.lds_dma = True
                for o in ops:
                    self.r |= regs_of(o)
                self.r |= {('s', 'm0')}
            elif '_load' in op:
                self.w = regs_of(ops[0])
                for o in ops[1:]:
                    self.r |= regs_of(o)
                if 'd16' in op:
                    self.r |= self.w
            else:
                for o in ops:
                    self.r |= regs_of(o)
                if 'x4' in op or 'x3' in op:
                    self.store_data = regs_of(ops[0])
        elif op.startswith('ds_'):
            self.kind = 'ds'
            if op.startswith('ds_read'):
                self.w = regs_of(ops[0])
                self.r = regs_of(ops[1])
                if 'd16' in op:
                    self.r |= self.w
            else:
                for o in ops:
                    self.r |= regs_of(o)
        elif op.startswith(('s_load', 's_memtime', 's_memrealtime')):
            self.kind = 'smem'
            self.w = regs_of(ops[0])
            for o in ops[1:]:
                self.r |= regs_of(o)
        elif op.startswith('s_'):
            self.kind = 'salu'
            if op.startswith(NO_DST_S):
                for o in ops:
                    self.r |= regs_of(o)
                if 'vcc' in op:
                    self.r |= {('s', 'vcc')}
                if 'exec' in op:
                    self.r |= {('s', 'exec')}
            else:
                self.w = regs_of(ops[0])
                for o in ops[1:]:
                    self.r |= regs_of(o)
                if 'saveexec' in op:
                    self.w |= {('s', 'exec')}
                    self.r |= {('s', 'exec')}
                if op.startswith(('s_addk', 's_mulk', 's_cmov')):
                    self.r |= self.w
        else:
            raise ValueError('unknown instruction ' + text)
        self.trans = op.startswith(TRANS)


def need_ws(p, c):
    n = 0
    vw = {x for x in p.w if x[0] in 'va'}
    sw = {x for x in p.w if x[0] == 's'}
    if p.kind == 'valu':
        if c.kind == 'mfma' and vw & c.r:
            n = max(n, 2)
        if c.kind == 'valu':
            if c.op.startswith(('v_readfirstlane', 'v_readlane')) and vw & c.r:
                n = max(n, 1)
            if (c.dpp or c.op.startswith('v_permlane')) and vw & c.r:
                n = max(n, 2)
            if p.trans and not c.trans and vw & c.r:
                n = max(n, 1)
            if sw & c.r:
                n = max(n, 4 if c.op.startswith(('v_readlane', 'v_writelane')) else 2)
        if c.kind == 'mfma' and p.trans and vw & c.r:
            n = max(n, 2)
        if c.kind in ('vmem',) and sw & c.r:
            n = max(n, 5)
        if c.kind in ('salu', 'smem') and sw & c.r:
            n = max(n, 1)
        if p.trans and c.kind in ('vmem', 'ds') and vw & c.r:
            n = max(n, 1)
    elif p.kind == 'mfma':
        if c.kind == 'mfma':
            if p.w & (c.srcA | c.srcB):
                n = max(n, 8)
            if p.w & c.srcC and p.w != c.srcC:
                n = max(n, 6)
            if p.w & c.w and not (p.w == c.w):
                n = max(n, 8)
            if p.w & c.w and p.w == c.w and c.srcC != p.w:
                n = max(n, 8)
        elif c.kind in ('valu', 'vmem', 'ds'):
            if p.w & (c.r | c.w):
                n = max(n, 8)
            if c.kind == 'valu' and p.srcC & c.w:
                n = max(n, 3)
    elif p.kind == 'vmem':
        if p.store_data & c.w:
            n = max(n, 2)
    elif p.kind == 'salu':
        if ('s', 'm0') in p.w and c.kind == 'vmem' and c.lds_dma:
            n = max(n, 1)
    return n


class Gen:
    MAXWS = 8

    def __init__(self):
        self.lines = []
        self.hist = []
        self.vm = []
        self.lg = []
        self.nid = 0
        self.cond_depth = 0
        self.nlabel = 0
        self.maxv = self.maxa = self.maxs = 0
        self.stats = {'nop': 0, 'n': 0}

    def raw(self, text):
        self.lines.append(text)

    def comment(self, text):
        self.lines.append('    ; ' + text)

    def _push(self, ins, states=1):
        self.lines.append('    ' + ins.text)
        self.hist.append((ins, states))
        self.hist = self.hist[-12:]
        self.stats['n'] += 1

    def _nop(self, n):
        if n <= 0:
            return
        self.stats['nop'] += n
        self._push(Ins(f's_nop {n - 1}'), n)

    def _wait(self, vm=None, lg=None):
        t = []
        if vm is not None:
            t.append(f'vmcnt({vm})')
        if lg is not None:
            t.append(f'lgkmcnt({lg})')
        self._push(Ins('s_waitcnt ' + ' '.join(t)))

    def _younger(self, q, i):
        return sum(1 for x in q[i + 1:] if not x['maybe'])

    def _der(self, q, i):
        del q[:i + 1]

    def e(self, text):
        ins = Ins(text)
        for k, i in ins.w | ins.r:
            if isinstance(i, int):
                if k == 'v':
                    assert i < 256, text
                    self.maxv = max(self.maxv, i + 1)
                elif k == 'a':
                    assert i < 256, text
                    self.maxa = max(self.maxa, i + 1)
                else:
                    assert i < 102, text
                    self.maxs = max(self.maxs, i + 1)
        touch = ins.r | ins.w
        vmw = lgw = None
        for i in range(len(self.vm) - 1, -1, -1):
            if self.vm[i]['w'] & touch:
                if ins.kind == 'vmem' and 'd16' in ins.op and not (self.vm[i]['w'] & (ins.r - ins.w)):
                    continue
                vmw = min(63, self._younger(self.vm, i))
                self._der(self.vm, i)
                break
        for i in range(len(self.lg) - 1, -1, -1):
            if self.lg[i]['w'] & touch:
                if ins.kind == 'ds' and 'd16' in ins.op and not (self.lg[i]['w'] & (ins.r - ins.w)):
                    continue
                if any(x['smem'] for x in self.lg):
                    lgw = 0
                    self.lg = []
                else:
                    lgw = min(15, self._younger(self.lg, i))
                    self._der(self.lg, i)
                break
        if vmw is not None or lgw is not None:
            self._wait(vmw, lgw)
        need, dist = 0, 0
        for p, st in reversed(self.hist):
            n = need_ws(p, ins)
            if n - dist > need:
                need = n - dist
            dist += st
            if dist >= self.MAXWS:
                break
        self._nop(need)
        self._push(ins)
        h = None
        if ins.kind == 'vmem':
            self.nid += 1
            h = self.nid
            self.vm.append(dict(w=set(ins.w), maybe=self.cond_depth > 0, id=h))
        elif ins.kind in ('ds', 'smem'):
            self.nid += 1
            h = self.nid
            self.lg.append(dict(w=set(ins.w), maybe=self.cond_depth > 0, id=h, smem=ins.kind == 'smem'))
        return h

    def __call__(self, text):
        h = None
        for ln in text.strip().split('\n'):
            ln = ln.split(';')[0].strip()
            if ln:
                h = self.e(ln)
        return h

    def wait_vm(self, h):
        for i, x in enumerate(self.vm):
            if x['id'] == h:
                self._wait(vm=min(63, self._younger(self.vm, i)))
                self._der(self.vm, i)
                return

    def wait_lg(self, h):
        for i, x in enumerate(self.lg):
            if x['id'] == h:
                if any(y['smem'] for y in self.lg):
                    self._wait(lg=0)
                    self.lg = []
                else:
                    self._wait(lg=min(15, self._younger(self.lg, i)))
                    self._der(self.lg, i)
                return

    def drain(self, vm=True, lg=True, force=False):
        a_ = 0 if vm and (self.vm or force) else None
        b_ = 0 if lg and (self.lg or force) else None
        if a_ is not None or b_ is not None:
            self._wait(a_, b_)
        if vm:
            self.vm = []
        if lg:
            self.lg = []

    def barrier(self):
        self.drain(vm=False, lg=True)
        self.e('s_barrier')

    def flush(self):
        need, dist = 0, 0
        for p, st in reversed(self.hist):
            n = {'mfma': 8, 'valu': 2, 'vmem': 2 if p.store_data else 0, 'salu': 1 if ('s', 'm0') in p.w else 0}.get(p.kind, 0)
            if p.kind == 'valu' and any(x[0] == 's' and x[1] != 'vcc' for x in p.w):
                n = 5
            need = max(need, n - dist)
            dist += st
            if dist >= self.MAXWS:
                break
        self._nop(need)

    def newlabel(self, base):
        self.nlabel += 1
        return f'L_{base}_{self.nlabel}'

    def label(self, name):
        self.flush()
        self.lines.append(name + ':')

    def branch(self, op, target):
        self.flush()
        self._push(Ins(f'{op} {target}'))

    class _Cond:
        def __init__(self, g, op, name):
            self.g, self.op, self.name = g, op, name

        def __enter__(self):
            g = self.g
            self.lab = g.newlabel(self.name)
            g.branch(self.op, self.lab)
            self.vm0 = [dict(x) for x in g.vm]
            self.lg0 = [dict(x) for x in g.lg]
            g.cond_depth += 1
            return self

        def __exit__(self, *exc):
            g = self.g
            g.cond_depth -= 1
            ids = {x['id'] for x in self.vm0}
            g.vm = self.vm0 + [x for x in g.vm if x['id'] not in ids]
            ids = {x['id'] for x in self.lg0}
            g.lg = self.lg0 + [x for x in g.lg if x['id'] not in ids]
            g.label(self.lab)
            return False

    def skip_if(self, op, name='skip'):
        return Gen._Cond(self, op, name)

    def state(self):
        return ([dict(x) for x in self.vm], [dict(x) for x in self.lg])

    def set_state(self, st):
        self.vm, self.lg = [dict(x) for x in st[0]], [dict(x) for x in st[1]]
        self.hist = []

    def text(self):
        return '\n'.join(self.lines) + '\n'
```

```python
S, D, H, DH = 2048, 576, 32, 18
ARR = S * D * 2
FS = 128
o = 0
def _a(n, al=4096):
    global o
    o = (o + al - 1) // al * al
    r = o
    o += n
    return r
E    = _a(128)
FT   = _a(576 * FS)
FQ   = _a(64 * FS)
FW   = _a(48 * FS)
FWO  = _a(64 * FS)
FC   = _a(576 * FS)
FS_  = _a(8 * FS)
FH   = _a(256 * FS)
FO   = _a(2 * 1024 * FS)
FX   = _a(1024 * FS)
ST   = _a(32 * 8 * 1024)
KV2  = _a(2 * 16 * 4096)
KV1  = _a(2 * 256 * 4096)
WPSZ = 129024
WOSZ = 82944
WP   = _a(16 * WPSZ + 4096)
WOF  = _a(8 * WOSZ + 4096)
UR   = _a(ARR)
X0P  = _a(ARR)
N0P  = _a(ARR)
X1P  = _a(ARR)
YP   = _a(ARR)
X3P  = _a(ARR + 4096)
OF   = _a(2 * ARR)
STAMP = _a(256 * 4 * 256)
WSSZ = _a(0)
TAGA, TAGC = 0x9E3779B1, 0x7F4A7C15
L_P2   = 92160
L_SCR  = 129024
L_KVT  = 86016
L_ZERO = L_KVT + 3648
CONVW  = 13088
L_CONV = 163840 - 4 * CONVW
LDS_SIZE = 163840
if __name__ == '__main__':
    for k, v in list(globals().items()):
        if isinstance(v, int): print(k, v, hex(v))
```

```python
import sys
import argparse
from asmgen import Gen, v, a, s
import layout as L

NAME = 'interleave_layers__ssm_conv_h3__linear_kernel_hedgehog__prompt'

sWG, sW, sTAG = 2, 3, 4
T0, T1, T2, T3, T4, T5, T6, T7 = 5, 6, 7, 8, 9, 10, 11, 12
pQ, pK, pV, pSH, pSK, pSD, pBX, pWQ = 16, 18, 20, 22, 24, 26, 28, 30
pPH, pWO, pOUT, pDBG, pWS = 32, 34, 36, 38, 40
sCNT, sLAY = 42, 43
rWS, rA, rB, rC, rD, rOUT = 44, 48, 52, 56, 60, 64
sR128, sP, sR64, sCG, sRB, sRB2 = 68, 69, 70, 71, 72, 73
sM0, sM1, sM2, sM3 = 74, 76, 78, 80
sMA, sMB = 82, 84
sXP, sOFB, sKV1, sKV2, sFO = 86, 87, 88, 89, 90
sSTP = 98
vTID, vLANE, vI, vG, vL16, vTAG = 0, 1, 2, 3, 4, 5
POLL_LIMIT = 40000
MASKHI = '0xffff0000'


class K(Gen):
    def __init__(self, opt):
        super().__init__()
        self.opt = opt
        self.nstamp = 0

    def srd(self, r, ptr, size):
        self(f's_mov_b64 {s(r, 2)}, {s(ptr, 2)}')
        self(f's_mov_b32 {s(r + 2)}, {size}')
        self(f's_mov_b32 {s(r + 3)}, 0x20000')

    def stamp(self, k):
        if not self.opt.stamps:
            return
        self(f's_memrealtime {s(sSTP, 2)}')
        self.drain(vm=False)
        self(f'v_accvgpr_read_b32 v{self.vtmp_stamp}, a255')
        self(f'v_writelane_b32 v{self.vtmp_stamp}, {s(sSTP)}, {k}')
        self(f'v_accvgpr_write_b32 a255, v{self.vtmp_stamp}')

    vtmp_stamp = 47

    def unpack(self, dlo, dhi, src):
        self(f'v_lshlrev_b32 {v(dlo)}, 16, {v(src)}')
        self(f'v_and_b32 {v(dhi)}, {MASKHI}, {v(src)}')

    def make_tag(self):
        self(f'v_readfirstlane_b32 {s(sTAG)}, {v(vTAG)}')
        self(f's_mul_i32 {s(sTAG)}, {s(sTAG)}, {hex(L.TAGA)}')
        self(f's_add_u32 {s(sTAG)}, {s(sTAG)}, {hex(L.TAGC)}')
        self(f'v_mov_b32 {v(vTAG)}, {s(sTAG)}')

    def setexec(self, m):
        if isinstance(m, int):
            m &= (1 << 64) - 1
            lo, hi = m & 0xffffffff, m >> 32
            if m == (1 << 64) - 1:
                self('s_mov_b64 exec, -1')
            elif hi == 0 and lo <= 64:
                self(f's_mov_b64 exec, {lo}')
            else:
                self(f's_mov_b32 exec_lo, {hex(lo)}')
                self(f's_mov_b32 exec_hi, {hex(hi)}')
        else:
            self(f's_mov_b64 exec, {m}')

    def flag_store(self, soff):
        self.setexec(1)
        self(f'buffer_store_dword {v(vTAG)}, off, {s(rWS, 4)}, {s(soff)} sc1')
        self.setexec(-1)

    def poll(self, loads, mask, code):
        lp, done = self.newlabel('poll'), self.newlabel('polld')
        self.setexec(mask)
        self(f's_mov_b32 {s(sCNT)}, {POLL_LIMIT}')
        self.label(lp)
        for dst, n, voff, soff, imm in loads:
            op = {1: 'buffer_load_dword', 4: 'buffer_load_dwordx4'}[n]
            off = f' offset:{imm}' if imm else ''
            self(f'{op} {v(dst, n)}, {v(voff)}, {s(rWS, 4)}, {soff} offen{off} sc1')
        self.drain(lg=False)
        dst, n = loads[0][:2]
        self(f'v_cmp_ne_u32 vcc, {s(sTAG)}, {v(dst + n - 1)}')
        for dst, n, *_ in loads[1:]:
            self(f'v_cmp_ne_u32 {s(sMA, 2)}, {s(sTAG)}, {v(dst + n - 1)}')
            self(f's_or_b64 vcc, vcc, {s(sMA, 2)}')
        self.branch('s_cbranch_vccz', done)
        self('s_mov_b64 exec, vcc')
        self(f's_sub_u32 {s(sCNT)}, {s(sCNT)}, 1')
        self.branch('s_cbranch_scc0', lp)
        if self.opt.dbg:
            self.srd(rD, pDBG, 256)
            self(f'v_mov_b32 v{self.vtmp_stamp}, {code + 1}')
            self(f'buffer_store_dword v{self.vtmp_stamp}, off, {s(rD, 4)}, 0 offset:{4 * code}')
            self.drain(lg=False)
        self.label(done)
        self.setexec(-1)

    def dma(self, lds_base_s, soff_s, n, voff=vL16, srd=rWS, sc1=True):
        h = None
        for i in range(n):
            if i % 4 == 0:
                if i:
                    self(f's_add_u32 {s(lds_base_s)}, {s(lds_base_s)}, 4096')
                    self(f's_add_u32 {s(soff_s)}, {s(soff_s)}, 4096')
                self(f's_mov_b32 m0, {s(lds_base_s)}')
            off = f' offset:{(i % 4) * 1024}' if i % 4 else ''
            h = self(f'buffer_load_dwordx4 {v(voff)}, {s(srd, 4)}, {s(soff_s)} offen{off}{" sc1" if sc1 else ""} lds')
        return h

    def xg_sum2(self, x, y, t):
        self(f'v_permlane16_swap_b32 {v(x)}, {v(y)}')
        self(f'v_add_f32 {v(x)}, {v(x)}, {v(y)}')
        self(f'v_mov_b32 {v(y)}, {v(x)}')
        self(f'v_permlane32_swap_b32 {v(x)}, {v(y)}')
        self(f'v_add_f32 {v(x)}, {v(x)}, {v(y)}')
        self(f'v_mov_b32 {v(y)}, {v(x)}')
        self(f'v_permlane16_swap_b32 {v(x)}, {v(y)}')

    def mfma(self, d, A, B, c):
        self(f'v_mfma_f32_16x16x32_bf16 {d}, {A}, {B}, {c}')

    def prologue(self):
        g = self
        g(f's_cmp_ge_u32 {s(sWG)}, 256')
        g.branch('s_cbranch_scc1', 'L_end')
        g(f's_load_dwordx16 {s(16, 16)}, s[0:1], 0')
        g(f's_load_dwordx8 {s(32, 8)}, s[0:1], 64')
        g(f's_load_dwordx2 {s(40, 2)}, s[0:1], 96')
        g(f'v_lshrrev_b32 v6, 6, {v(vTID)}')
        g(f'v_and_b32 {v(vLANE)}, 63, {v(vTID)}')
        g(f'v_readfirstlane_b32 {s(sW)}, v6')
        g(f'v_and_b32 {v(vI)}, 15, {v(vTID)}')
        g(f'v_lshrrev_b32 {v(vG)}, 4, {v(vLANE)}')
        g(f'v_lshlrev_b32 {v(vL16)}, 4, {v(vLANE)}')
        if g.opt.stamps:
            g('v_accvgpr_write_b32 a255, 0')
        g.srd(rWS, pWS, L.WSSZ)
        g(f'buffer_load_dword {v(vTAG)}, off, {s(rWS, 4)}, 0 sc1')
        g.stamp(0)
        g(f's_and_b32 {s(T0)}, {s(sWG)}, 7')
        g(f's_lshr_b32 {s(T1)}, {s(sWG)}, 7')
        g(f's_lshl_b32 {s(T0)}, {s(T0)}, 1')
        g(f's_add_u32 {s(sR128)}, {s(T0)}, {s(T1)}')
        g(f's_bfe_u32 {s(sP)}, {s(sWG)}, 0x40003')
        g(f's_lshr_b32 {s(T0)}, {s(sP)}, 3')
        g(f's_lshl_b32 {s(sR64)}, {s(sR128)}, 1')
        g(f's_add_u32 {s(sR64)}, {s(sR64)}, {s(T0)}')
        g(f's_and_b32 {s(sCG)}, {s(sP)}, 7')
        g(f's_lshl_b32 {s(sRB)}, {s(sR128)}, 2')
        g(f's_add_u32 {s(sRB)}, {s(sRB)}, {s(sW)}')
        g(f's_lshr_b32 {s(T0)}, {s(sW)}, 1')
        g(f's_lshl_b32 {s(sRB2)}, {s(sR64)}, 1')
        g(f's_add_u32 {s(sRB2)}, {s(sRB2)}, {s(T0)}')
        g.srd(rOUT, pOUT, L.ARR)

    def role_conv(self):
        g = self
        vOK, vOA, vO2 = 6, 7, 48
        RK, RV, RW = 8, 30, 50
        UK, UW, UV, KS, OUT = 58, 102, 118, 150, 156
        sGam, sMu, sCh, sLB = T4, T5, T6, T7
        g.srd(rA, pK, L.ARR)
        g.srd(rB, pV, L.ARR)
        g.srd(rD, pSH, 576 * 8)
        g(f's_lshr_b32 {s(sGam)}, {s(sWG)}, 4')
        g(f's_and_b32 {s(sMu)}, {s(sWG)}, 15')
        g(f's_lshl_b32 {s(T0)}, {s(sMu)}, 7')
        g(f's_lshl_b32 {s(T1)}, {s(sW)}, 5')
        g(f's_add_u32 {s(T0)}, {s(T0)}, {s(T1)}')
        g(f's_mul_i32 {s(T1)}, {s(T0)}, 1152')
        g(f's_lshl_b32 {s(T2)}, {s(sGam)}, 7')
        g(f's_add_u32 {s(T1)}, {s(T1)}, {s(T2)}')
        g(f'v_mul_u32_u24 {v(vOK)}, 9216, {v(vG)}')
        g(f'v_lshl_add_u32 {v(vOK)}, {v(vI)}, 3, {v(vOK)}')
        g(f'v_add_u32 {v(vOK)}, {s(T1)}, {v(vOK)}')
        g(f'v_subrev_u32 {v(vOA)}, 3456, {v(vOK)}')
        g(f's_lshl_b32 {s(T2)}, {s(sGam)}, 9')
        g(f'v_lshlrev_b32 {v(vO2)}, 5, {v(vI)}')
        g(f's_movk_i32 {s(T3)}, 4608')
        g(f'buffer_load_dwordx4 {v(RW, 4)}, {v(vO2)}, {s(rD, 4)}, {s(T2)} offen')
        g(f'buffer_load_dwordx4 {v(RW + 4, 4)}, {v(vO2)}, {s(rD, 4)}, {s(T2)} offen offset:16')
        for j in range(11):
            if j < 3:
                g(f'buffer_load_dwordx2 {v(RK + 2 * j, 2)}, {v(vOA)}, {s(rA, 4)}, 0 offen offset:{1152 * j}')
            else:
                jj = j - 3
                so = '0' if jj < 4 else s(T3)
                g(f'buffer_load_dwordx2 {v(RK + 2 * j, 2)}, {v(vOK)}, {s(rA, 4)}, {so} offen offset:{1152 * (jj % 4)}')
        for j in range(8):
            so = '0' if j < 4 else s(T3)
            g(f'buffer_load_dwordx2 {v(RV + 2 * j, 2)}, {v(vOK)}, {s(rB, 4)}, {so} offen offset:{1152 * (j % 4)}')
        vK0, vDv, vS2 = 46, 172, 49
        g.srd(rC, pSK, L.ARR)
        g(f's_lshl_b32 {s(sCh)}, {s(sWG)}, 2')
        g(f's_add_u32 {s(sCh)}, {s(sCh)}, {s(sW)}')
        g(f's_mul_i32 {s(sLB)}, {s(sW)}, {L.CONVW}')
        g(f's_add_u32 {s(sLB)}, {s(sLB)}, {L.L_CONV}')
        g(f'v_add_u32 {v(vS2)}, 2, {v(vL16)}')
        g(f's_lshl_b32 {s(T2)}, {s(sCh)}, 12')
        g(f's_add_u32 {s(T3)}, {s(sLB)}, {4608 + 32}')
        g.dma(T3, T2, 4, srd=rC, sc1=False)
        g(f's_add_u32 {s(T3)}, {s(sLB)}, {4608 + 4160 + 32}')
        g.dma(T3, T2, 4, voff=vS2, srd=rC, sc1=False)
        g(f'buffer_load_ushort {v(vK0)}, off, {s(rC, 4)}, {s(T2)}')
        g.srd(rD + 0, pSD, 1152) if False else None
        vOU = vOA
        g(f's_lshl_b32 {s(T2)}, {s(sGam)}, 18')
        g(f's_lshl_b32 {s(T0)}, {s(T0)}, 1')
        g(f's_sub_u32 {s(T2)}, {s(T2)}, {s(T0)}')
        g(f's_add_u32 {s(T2)}, {s(T2)}, {L.UR + 4080}')
        g(f'v_lshlrev_b32 {v(vOU)}, 14, {v(vI)}')
        g(f'v_lshlrev_b32 {v(vO2)}, 4, {v(vG)}')
        g(f'v_sub_u32 {v(vOU)}, {v(vOU)}, {v(vO2)}')
        g(f'v_add_u32 {v(vOU)}, {s(T2)}, {v(vOU)}')
        for cc in range(4):
            for dd in range(2):
                b = UW + 8 * (cc >> 1) + (cc & 1)
                g.unpack(b + 4 * dd, b + 4 * dd + 2, RW + 2 * cc + dd)
        g.stamp(1)
        for j in range(11):
            for P in range(2):
                g.unpack(UK + 4 * j + 2 * P, UK + 4 * j + 2 * P + 1, RK + 2 * j + P)
        for j in range(8):
            for P in range(2):
                g.unpack(UV + 4 * j + 2 * P, UV + 4 * j + 2 * P + 1, RV + 2 * j + P)
            for P in range(2):
                g(f'v_pk_mul_f32 {v(KS + 2 * P, 2)}, {v(UK + 4 * (j + 3) + 2 * P, 2)}, {v(UW + 8 * P, 2)}')
            for aa in range(1, 4):
                for P in range(2):
                    g(f'v_pk_fma_f32 {v(KS + 2 * P, 2)}, {v(UK + 4 * (j + 3 - aa) + 2 * P, 2)}, {v(UW + 8 * P + 2 * aa, 2)}, {v(KS + 2 * P, 2)}')
            for P in range(2):
                g(f'v_pk_mul_f32 {v(UV + 4 * j + 2 * P, 2)}, {v(UV + 4 * j + 2 * P, 2)}, {v(KS + 2 * P, 2)}')
        for cc in range(4):
            for d in range(4):
                g(f'v_cvt_pk_bf16_f32 {v(OUT + 4 * cc + d)}, {v(UV + 4 * (7 - 2 * d) + cc)}, {v(UV + 4 * (6 - 2 * d) + cc)}')
            g(f's_movk_i32 {s(T2)}, {4096 * cc}')
            g(f'buffer_store_dwordx4 {v(OUT + 4 * cc, 4)}, {v(vOU)}, {s(rWS, 4)}, {s(T2)} offen sc1')
        g.make_tag()
        g.srd(rD, pSD, 1152)
        g(f's_lshl_b32 {s(T2)}, {s(sCh)}, 1')
        g(f's_lshl_b32 {s(T3)}, {s(sCh)}, 7')
        g(f's_add_u32 {s(T3)}, {s(T3)}, {L.FT}')
        g.drain(lg=False)
        g.flag_store(T3)
        g.stamp(2)
        g(f'buffer_load_ushort {v(vDv)}, off, {s(rD, 4)}, {s(T2)}')
        vT, vZ, vUB, vKA = 6, 8, 10, 12
        g(f'v_mov_b64 {v(vZ, 2)}, 0')
        g(f'v_lshl_add_u32 {v(vT)}, {v(vLANE)}, 3, {s(sLB)}')
        g(f'ds_write_b64 {v(vT)}, {v(vZ, 2)} offset:4096')
        g(f'v_and_b32 {v(vT)}, 7, {v(vLANE)}')
        g(f'v_lshrrev_b32 {v(vT + 1)}, 3, {v(vLANE)}')
        g(f'v_mul_u32_u24 {v(vT + 1)}, 4160, {v(vT + 1)}')
        g(f'v_lshl_add_u32 {v(vT)}, {v(vT)}, 2, {v(vT + 1)}')
        g(f'v_add_u32 {v(vT)}, {s(sLB)}, {v(vT)}')
        g(f'v_lshlrev_b32 {v(vK0)}, 16, {v(vK0)}')
        g(f'v_cmp_eq_u32 vcc, 15, {v(vLANE)}')
        g(f'v_cndmask_b32 {v(vK0)}, 0, {v(vK0)}, vcc')
        g.setexec(0xffff)
        g(f'ds_write_b32 {v(vT)}, {v(vK0)} offset:4608')
        g.setexec(-1)
        g(f'v_lshlrev_b32 {v(vT)}, 5, {v(vI)}')
        g(f'v_lshlrev_b32 {v(vT + 1)}, 4, {v(vG)}')
        g(f'v_sub_u32 {v(vUB)}, {v(vT + 1)}, {v(vT)}')
        g(f's_add_u32 {s(T2)}, {s(sLB)}, 480')
        g(f'v_add_u32 {v(vUB)}, {s(T2)}, {v(vUB)}')
        g(f'v_and_b32 {v(vT)}, 1, {v(vI)}')
        g(f'v_cmp_eq_u32 vcc, 1, {v(vT)}')
        g(f'v_mov_b32 {v(vKA + 1)}, 4160')
        g(f'v_cndmask_b32 {v(vKA)}, {v(vKA + 1)}, 2, vcc' if False else f'v_mov_b32 {v(vKA + 2)}, 2')
        g(f'v_cndmask_b32 {v(vKA)}, {v(vKA + 1)}, {v(vKA + 2)}, vcc')
        g(f'v_lshl_add_u32 {v(vKA)}, {v(vI)}, 1, {v(vKA)}')
        g(f'v_add_u32 {v(vKA)}, {v(vT + 1)}, {v(vKA)}')
        g(f's_add_u32 {s(T2)}, {s(sLB)}, 4608')
        g(f'v_add_u32 {v(vKA)}, {s(T2)}, {v(vKA)}')
        for b in range(1, 4):
            g(f'v_add_u32 {v(vKA + b)}, {1024 * b}, {v(vKA)}')

        def rdA(e, dst):
            b, ee = e >> 4, e & 15
            g(f'ds_read2_b32 {a(dst, 2)}, {v(vKA + b)} offset0:{16 * ee} offset1:{16 * ee + 1}')
            g(f'ds_read2_b32 {a(dst + 2, 2)}, {v(vKA + b)} offset0:{16 * ee + 2} offset1:{16 * ee + 3}')

        def rdB(m, rho, dst):
            g(f'ds_read_b128 {a(dst, 4)}, {v(vUB)} offset:{3584 - 512 * m + 64 * rho}')

        AS = lambda rho, aa: 64 * (rho & 1) + 4 * aa
        BS = lambda rho, m: 64 * (rho & 1) + 32 + 4 * m
        for aa in range(8):
            rdA(8 * aa, AS(0, aa))
        vAD = 16
        g(f'v_lshlrev_b32 {v(vT)}, 3, {v(vG)}')
        g(f'v_add_u32 {v(vT)}, {v(vT)}, {v(vI)}')
        g(f'v_sub_u32 {v(vT)}, 15, {v(vT)}')
        g(f'v_lshlrev_b32 {v(vT + 1)}, 16, {v(vDv)}')
        for d in range(4):
            g(f'v_cmp_eq_u32 vcc, {2 * d}, {v(vT)}')
            g(f'v_cndmask_b32 {v(vAD + d)}, 0, {v(vDv)}, vcc')
            g(f'v_cmp_eq_u32 vcc, {2 * d + 1}, {v(vT)}')
            g(f'v_cndmask_b32 {v(vAD + d)}, {v(vAD + d)}, {v(vT + 1)}, vcc')
        vF, vFO = 20, 21
        g(f'v_lshlrev_b32 {v(vFO)}, 7, {v(vLANE)}')
        g(f's_lshl_b32 {s(T2)}, {s(sGam)}, 13')
        g(f's_add_u32 {s(T2)}, {s(T2)}, {L.FT}')
        g.poll([(vF, 1, vFO, s(T2), 0)], -1, 0)
        g.stamp(3)
        g(f's_lshl_b32 {s(T2)}, {s(sCh)}, 12')
        g(f's_add_u32 {s(T2)}, {s(T2)}, {L.UR}')
        g(f's_mov_b32 {s(T3)}, {s(sLB)}')
        g.dma(T3, T2, 4)
        vPO, vYW, vYR = 22, 23, 24
        g(f's_mul_i32 {s(T2)}, {s(sW)}, {16 * 36864}')
        g(f's_lshl_b32 {s(T3)}, {s(sWG)}, 8')
        g(f's_add_u32 {s(T2)}, {s(T2)}, {s(T3)}')
        g(f'v_mul_u32_u24 {v(vPO)}, {2 * 36864}, {v(vG)}')
        g(f'v_lshl_add_u32 {v(vPO)}, {v(vI)}, 4, {v(vPO)}')
        g(f'v_add_u32 {v(vPO)}, {s(T2)}, {v(vPO)}')
        g(f'v_lshlrev_b32 {v(vYW)}, 5, {v(vI)}')
        g(f'v_lshl_add_u32 {v(vYW)}, {v(vG)}, 3, {v(vYW)}')
        g(f'v_add_u32 {v(vYW)}, {s(sLB)}, {v(vYW)}')
        g(f'v_bfe_u32 {v(vT)}, {v(vLANE)}, 2, 2')
        g(f'v_mul_u32_u24 {v(vYR)}, {L.CONVW}, {v(vT)}')
        g(f'v_and_b32 {v(vT)}, 3, {v(vLANE)}')
        g(f'v_lshl_add_u32 {v(vYR)}, {v(vT)}, 3, {v(vYR)}')
        g(f'v_lshl_add_u32 {v(vYR)}, {v(vG)}, 7, {v(vYR)}')
        g(f's_lshl_b32 {s(T2)}, {s(sW)}, 10')
        g(f's_add_u32 {s(T2)}, {s(T2)}, {L.L_CONV}')
        g(f'v_add_u32 {v(vYR)}, {s(T2)}, {v(vYR)}')
        g(f'v_lshlrev_b32 {v(vFO)}, 7, {v(vI)}')
        g(f's_lshl_b32 {s(T0)}, {s(sW)}, 11')
        g(f's_add_u32 {s(T0)}, {s(T0)}, {L.FQ}')
        g.drain(lg=False)
        g.stamp(4)
        ACC = 32
        X0, N0 = 64, 80
        for m in range(8):
            rdB(m, 0, BS(0, m))
        for q in range(8):
            g.mfma(v(ACC + 4 * q, 4), v(vAD, 4), a(BS(0, q), 4), '0')
        for rho in range(8):
            nxt = []
            if rho < 7:
                for i in range(8):
                    nxt.append(lambda i=i: rdB(i, rho + 1, BS(rho + 1, i)))
                    nxt.append(lambda i=i: rdA(rho + 1 + 8 * i, AS(rho + 1, i)))
            if rho == 5:
                g.poll([(vF, 1, vFO, s(T0), 0)], 0xffff, 1)
                for j in range(4):
                    o = (8 * (j >> 1) + (j & 1)) * 36864
                    g(f's_mov_b32 {s(T2)}, {L.X0P + o}')
                    g(f'buffer_load_dwordx4 {v(X0 + 4 * j, 4)}, {v(vPO)}, {s(rWS, 4)}, {s(T2)} offen sc1')
                    g(f's_mov_b32 {s(T2)}, {L.N0P + o}')
                    g(f'buffer_load_dwordx4 {v(N0 + 4 * j, 4)}, {v(vPO)}, {s(rWS, 4)}, {s(T2)} offen sc1')
            n = 0
            for aa in range(8):
                for q in range(aa, 8):
                    g.mfma(v(ACC + 4 * q, 4), a(AS(rho, aa), 4), a(BS(rho, q - aa), 4), v(ACC + 4 * q, 4))
                    if n % 2 == 0 and nxt:
                        nxt.pop(0)()
                    n += 1
            assert not nxt
        g.stamp(5)
        YP_, YG, TMP, XO = 96, 112, 128, 152
        for q in range(8):
            g(f'v_cvt_pk_bf16_f32 {v(YP_ + 2 * q)}, {v(ACC + 4 * q)}, {v(ACC + 4 * q + 1)}')
            g(f'v_cvt_pk_bf16_f32 {v(YP_ + 2 * q + 1)}, {v(ACC + 4 * q + 2)}, {v(ACC + 4 * q + 3)}')
            g(f'ds_write_b64 {v(vYW)}, {v(YP_ + 2 * q, 2)} offset:{512 * q}')
        g.barrier()
        for j in range(4):
            o = (8 * (j >> 1) + (j & 1)) * 64
            g(f'ds_read_b64_tr_b16 {v(YG + 4 * j, 2)}, {v(vYR)} offset:{o}')
            g(f'ds_read_b64_tr_b16 {v(YG + 4 * j + 2, 2)}, {v(vYR)} offset:{o + 32}')
        for j in range(4):
            o = (8 * (j >> 1) + (j & 1)) * 36864
            g(f's_mov_b32 {s(T2)}, {L.YP + o}')
            g(f'buffer_store_dwordx4 {v(YG + 4 * j, 4)}, {v(vPO)}, {s(rWS, 4)}, {s(T2)} offen sc1')
            for d in range(4):
                t = TMP + 6 * d
                g.unpack(t, t + 1, YG + 4 * j + d)
                g.unpack(t + 2, t + 3, N0 + 4 * j + d)
                g.unpack(t + 4, t + 5, X0 + 4 * j + d)
            for d in range(4):
                t = TMP + 6 * d
                g(f'v_pk_fma_f32 {v(t, 2)}, {v(t, 2)}, {v(t + 2, 2)}, {v(t + 4, 2)}')
            for d in range(4):
                t = TMP + 6 * d
                g(f'v_cvt_pk_bf16_f32 {v(XO + 4 * j + d)}, {v(t)}, {v(t + 1)}')
            g(f's_mov_b32 {s(T2)}, {L.X1P + o}')
            g(f'buffer_store_dwordx4 {v(XO + 4 * j, 4)}, {v(vPO)}, {s(rWS, 4)}, {s(T2)} offen sc1')
        g(f's_mul_i32 {s(T3)}, {s(sW)}, 144')
        g(f's_add_u32 {s(T3)}, {s(T3)}, {s(sWG)}')
        g(f's_lshl_b32 {s(T3)}, {s(T3)}, 7')
        g(f's_add_u32 {s(T3)}, {s(T3)}, {L.FC}')
        g.drain(lg=False)
        g.flag_store(T3)
        g.stamp(6)
        g.barrier()

    def role_q(self):
        g = self
        sJ = T7
        vO, vT = 6, 8
        R = 16
        g.srd(rA, pQ, L.ARR)
        g.srd(rB, pWO, 576 * 1152)
        g(f's_sub_u32 {s(sJ)}, {s(sWG)}, 144')
        g(f's_mul_i32 {s(T0)}, {s(sJ)}, {32 * 1152}')
        g(f's_lshl_b32 {s(T1)}, {s(sW)}, 6')
        g(f's_add_u32 {s(T0)}, {s(T0)}, {s(T1)}')
        g(f'v_mul_u32_u24 {v(vO)}, 1152, {v(vI)}')
        g(f'v_lshl_add_u32 {v(vO)}, {v(vG)}, 4, {v(vO)}')
        g(f'v_add_u32 {v(vO)}, {s(T0)}, {v(vO)}')
        g(f's_cmp_lt_u32 {s(sW)}, 2')
        g(f's_cselect_b32 {s(T2)}, 0, 0x40000000')
        g(f'v_add_u32 {v(vO + 1)}, {s(T2)}, {v(vO)}')
        g(f's_movk_i32 {s(T3)}, {16 * 1152}')
        for aa in range(5):
            vo = vO + (aa == 4)
            g(f'buffer_load_dwordx4 {v(R + 8 * aa, 4)}, {v(vo)}, {s(rA, 4)}, 0 offen offset:{256 * aa}')
            g(f'buffer_load_dwordx4 {v(R + 8 * aa + 4, 4)}, {v(vo)}, {s(rA, 4)}, {s(T3)} offen offset:{256 * aa}')
        sPp, sCq = T5, T6
        g(f's_and_b32 {s(sPp)}, {s(sJ)}, 15')
        g(f's_lshr_b32 {s(sCq)}, {s(sJ)}, 4')
        g(f's_mul_i32 {s(T0)}, {s(sPp)}, {36 * 1152}')
        g(f's_mul_i32 {s(T1)}, {s(sCq)}, 288')
        g(f's_add_u32 {s(T0)}, {s(T0)}, {s(T1)}')
        g(f's_mul_i32 {s(T1)}, {s(sW)}, 192')
        for i in range(3):
            g(f'v_add_u32 {v(vT)}, {s(T1)}, {v(vLANE)}')
            if i:
                g(f'v_add_u32 {v(vT)}, {64 * i}, {v(vT)}')
            g(f'v_mul_u32_u24 {v(vT + 1)}, 3641, {v(vT)}')
            g(f'v_lshrrev_b32 {v(vT + 1)}, 16, {v(vT + 1)}')
            g(f'v_mul_u32_u24 {v(vT + 1)}, {1152 - 288}, {v(vT + 1)}')
            g(f'v_lshl_add_u32 {v(vT)}, {v(vT)}, 4, {v(vT + 1)}')
            g(f's_lshl_b32 {s(T2)}, {s(T1)}, 4')
            g(f's_add_u32 {s(T2)}, {s(T2)}, {1024 * i}')
            g(f's_mov_b32 m0, {s(T2)}')
            g(f'buffer_load_dwordx4 {v(vT)}, {s(rB, 4)}, {s(T0)} offen lds')
        S_ = 56
        g(f'v_mov_b64 {v(S_, 2)}, 0')
        g(f'v_mov_b64 {v(S_ + 2, 2)}, 0')
        g(f's_mov_b32 {s(T2)}, 0x3f803f80')
        for aa in range(5):
            for hh in range(2):
                for d in range(4):
                    r = R + 8 * aa + 4 * hh + d
                    g(f'v_dot2c_f32_bf16 {v(S_ + 2 * hh)}, {s(T2)}, {v(r)}')
                    g(f'v_dot2c_f32_bf16 {v(S_ + 2 * hh + 1)}, {v(r)}, {v(r)}')
        g('s_nop 2')
        g.xg_sum2(S_, S_ + 1, vT)
        g.xg_sum2(S_ + 2, S_ + 3, vT)
        LS = 16384
        g(f's_lshl_b32 {s(T2)}, {s(sW)}, 8')
        g(f'v_lshl_add_u32 {v(vT)}, {v(vI)}, 4, {s(T2)}')
        g(f'ds_write_b128 {v(vT)}, {v(S_, 4)} offset:{LS}')
        g.make_tag()
        g.barrier()
        g(f'v_lshlrev_b32 {v(vT)}, 4, {v(vI)}')
        P_ = 60
        for w in range(4):
            g(f'ds_read_b128 {v(P_ + 4 * w, 4)}, {v(vT)} offset:{LS + 256 * w}')
        for h2 in range(2):
            g(f'v_pk_add_f32 {v(P_ + 2 * h2, 2)}, {v(P_ + 2 * h2, 2)}, {v(P_ + 4 + 2 * h2, 2)}')
            g(f'v_pk_add_f32 {v(P_ + 8 + 2 * h2, 2)}, {v(P_ + 8 + 2 * h2, 2)}, {v(P_ + 12 + 2 * h2, 2)}')
            g(f'v_pk_add_f32 {v(P_ + 2 * h2, 2)}, {v(P_ + 2 * h2, 2)}, {v(P_ + 8 + 2 * h2, 2)}')
        RS = 76
        for hh in range(2):
            self.ln_coef(P_ + 2 * hh, P_ + 2 * hh + 1, RS + 4 * hh, RS + 4 * hh + 2)
        g(f's_mul_i32 {s(T0)}, {s(sJ)}, 36864')
        g(f's_lshl_b32 {s(T1)}, {s(sW)}, 11')
        g(f's_add_u32 {s(T0)}, {s(T0)}, {s(T1)}')
        g(f'v_lshlrev_b32 {v(vO)}, 9, {v(vG)}')
        g(f'v_lshl_add_u32 {v(vO)}, {v(vI)}, 4, {v(vO)}')
        g(f'v_add_u32 {v(vO)}, {s(T0)}, {v(vO)}')
        g(f's_cmp_lt_u32 {s(sW)}, 2')
        g(f's_cselect_b32 {s(T2)}, 0, 0x40000000')
        g(f'v_add_u32 {v(vO + 1)}, {s(T2)}, {v(vO)}')
        N_, U_ = 88, 128
        for aa in range(5):
            vo = vO + (aa == 4)
            nb = N_ + 8 * aa
            for hh in range(2):
                for d in range(4):
                    t = U_ + 8 * hh + 2 * d
                    g.unpack(t, t + 1, R + 8 * aa + 4 * hh + d)
                for d in range(4):
                    t = U_ + 8 * hh + 2 * d
                    g(f'v_pk_fma_f32 {v(t, 2)}, {v(t, 2)}, {v(RS + 4 * hh, 2)}, {v(RS + 4 * hh + 2, 2)} op_sel_hi:[1,0,0]')
                for d in range(4):
                    t = U_ + 8 * hh + 2 * d
                    g(f'v_cvt_pk_bf16_f32 {v(nb + 4 * (d >> 1) + 2 * hh + (d & 1))}, {v(t)}, {v(t + 1)}')
            r = R + 8 * aa
            g(f'v_swap_b32 {v(r + 2)}, {v(r + 4)}')
            g(f'v_swap_b32 {v(r + 3)}, {v(r + 5)}')
            g(f's_mov_b32 {s(T2)}, {L.X0P + 8192 * aa}')
            g(f's_mov_b32 {s(T3)}, {L.N0P + 8192 * aa}')
            for qq in range(2):
                g(f'buffer_store_dwordx4 {v(r + 4 * qq, 4)}, {v(vo)}, {s(rWS, 4)}, {s(T2)} offen offset:{256 * qq} sc1')
                g(f'buffer_store_dwordx4 {v(nb + 4 * qq, 4)}, {v(vo)}, {s(rWS, 4)}, {s(T3)} offen offset:{256 * qq} sc1')
        g(f's_lshl_b32 {s(T3)}, {s(sJ)}, 7')
        g(f's_add_u32 {s(T3)}, {s(T3)}, {L.FQ}')
        g.drain()
        g.barrier()
        g(f's_cmp_lg_u32 {s(sW)}, 0')
        with g.skip_if('s_cbranch_scc1'):
            g.flag_store(T3)
        g.stamp(2)
        vA, vA2, vD_ = 8, 9, 10
        g(f'v_lshrrev_b32 {v(vT + 4)}, 1, {v(vG)}')
        g(f'v_mul_u32_u24 {v(vT + 4)}, 2, {v(vT + 4)}')
        g(f'v_lshl_add_u32 {v(vT + 4)}, {v(vG)}, 3, {v(vT + 4)}')
        g(f'v_bfe_u32 {v(vT + 5)}, {v(vLANE)}, 2, 2')
        g(f'v_add_u32 {v(vT + 4)}, {v(vT + 4)}, {v(vT + 5)}')
        g(f'v_mul_u32_u24 {v(vT + 4)}, 288, {v(vT + 4)}')
        g(f'v_and_b32 {v(vT + 6)}, 3, {v(vLANE)}')
        g(f'v_lshl_add_u32 {v(vT + 4)}, {v(vT + 6)}, 3, {v(vT + 4)}')
        g(f'v_lshrrev_b32 {v(vT + 7)}, 1, {v(vT + 5)}')
        g(f'v_mul_u32_u24 {v(vT + 7)}, 16, {v(vT + 7)}')
        g(f'v_add_u32 {v(vT + 7)}, {v(vT + 7)}, {v(vT + 5)}')
        g(f'v_add_u32 {v(vT + 7)}, 16, {v(vT + 7)}')
        g(f'v_mul_u32_u24 {v(vT + 7)}, 288, {v(vT + 7)}')
        g(f'v_lshl_add_u32 {v(vT + 7)}, {v(vT + 6)}, 3, {v(vT + 7)}')
        vM, vE = vT + 4, vT + 7
        vD4 = 17
        g(f'v_and_b32 {v(16)}, 7, {v(vI)}')
        g(f'v_lshlrev_b32 {v(16)}, 4, {v(16)}')
        g(f'v_lshl_add_u32 {v(vD4)}, {v(vG)}, 7, {v(16)}')
        g(f's_mul_i32 {s(T0)}, {s(sCq)}, {2 * L.WOSZ}')
        g(f's_add_u32 {s(T0)}, {s(T0)}, {L.WOF}')
        g(f's_mul_i32 {s(T1)}, {s(sPp)}, 4608')
        g(f's_add_u32 {s(T1)}, {s(T1)}, {s(T0)}')
        g(f's_lshr_b32 {s(T2)}, {s(sPp)}, 3')
        g(f's_add_u32 {s(T2)}, {s(T2)}, 16')
        g(f's_mul_i32 {s(T2)}, {s(T2)}, 4608')
        g(f's_add_u32 {s(T0)}, {s(T0)}, {s(T2)}')
        g(f's_and_b32 {s(T2)}, {s(sPp)}, 1')
        g(f's_lshl_b32 {s(T2)}, {s(T2)}, 3')
        g(f's_add_u32 {s(T0)}, {s(T0)}, {s(T2)}')
        g(f's_bfe_u32 {s(T4)}, {s(sPp)}, 0x20001')
        for w in range(4):
            lab = g.newlabel('wo')
            g(f's_cmp_lg_u32 {s(sW)}, {w}')
            with g.skip_if('s_cbranch_scc1'):
                for idx in range(w, 10, 4):
                    cgl, T = divmod(idx, 5)
                    co = cgl * 144 + T * 32
                    g(f'ds_read_b64_tr_b16 {v(20, 2)}, {v(vM)} offset:{co}')
                    g(f'ds_read_b64_tr_b16 {v(22, 2)}, {v(vM)} offset:{co + 4 * 288}')
                    g(f'ds_read_b64_tr_b16 {v(24, 2)}, {v(vE)} offset:{co}')
                    g(f's_add_u32 {s(T2)}, {s(T1)}, {cgl * L.WOSZ + T * 1024}')
                    g(f's_lshl_b32 {s(T3)}, {s(T4)}, {8 if T < 4 else 7}')
                    g(f's_add_u32 {s(T3)}, {s(T3)}, {s(T0)}')
                    g(f's_add_u32 {s(T3)}, {s(T3)}, {cgl * L.WOSZ + T * 1024}')
                    g(f'v_lshlrev_b32 {v(18)}, 4, {v(vI)}')
                    g.drain(vm=False)
                    if T == 4:
                        g.setexec(0x00ff00ff00ff00ff)
                    g(f'buffer_store_dwordx4 {v(20, 4)}, {v(vL16 if T < 4 else vD4)}, {s(rWS, 4)}, {s(T2)} offen sc1')
                    g.setexec(0xffff if T < 4 else 0xff)
                    g(f'buffer_store_dwordx2 {v(24, 2)}, {v(18)}, {s(rWS, 4)}, {s(T3)} offen sc1')
                    g.setexec(-1)
                    g('s_nop 1')
        g(f's_lshl_b32 {s(T3)}, {s(sJ)}, 7')
        g(f's_add_u32 {s(T3)}, {s(T3)}, {L.FWO}')
        g.drain(force=True)
        g.barrier()
        g(f's_cmp_lg_u32 {s(sW)}, 0')
        with g.skip_if('s_cbranch_scc1'):
            g.flag_store(T3)
        g.stamp(6)

    def ln_coef(self, vS, vQ, vRS, vB):
        g = self
        inv = '0x3ae38e39'
        g(f'v_mul_f32 {v(vS)}, {inv}, {v(vS)}')
        g(f'v_mul_f32 {v(vQ)}, {inv}, {v(vQ)}')
        g(f'v_fma_f32 {v(vQ)}, -{v(vS)}, {v(vS)}, {v(vQ)}')
        g(f'v_max_f32 {v(vQ)}, 0, {v(vQ)}')
        g(f'v_add_f32 {v(vQ)}, 0x3727c5ac, {v(vQ)}')
        g(f'v_rsq_f32 {v(vRS)}, {v(vQ)}')
        if vB is not None:
            g(f'v_mul_f32 {v(vB)}, {v(vS)}, {v(vRS)}')
            g(f'v_sub_f32 {v(vB)}, 0, {v(vB)}')

    def role_w(self):
        g = self
        sU, sPp, sPart = T7, T6, T5
        vO, vT = 6, 8
        RA = 16
        BV, BF = 96, 108
        ACC = 132
        g.srd(rA, pWQ, 576 * 3456)
        g.srd(rB, pPH, 32 * 648)
        g(f's_sub_u32 {s(sU)}, {s(sWG)}, 208')
        g(f's_and_b32 {s(sPp)}, {s(sU)}, 15')
        g(f's_lshr_b32 {s(sPart)}, {s(sU)}, 4')
        g(f's_add_u32 {s(T0)}, {s(sPart)}, 1')
        g(f's_cmp_eq_u32 {s(sPart)}, 2')
        g(f's_cselect_b32 {s(T0)}, 0, {s(T0)}')
        g(f's_mul_i32 {s(T0)}, {s(T0)}, 1152')
        g(f's_mul_i32 {s(T1)}, {s(sPp)}, 72')
        g(f's_add_u32 {s(T0)}, {s(T0)}, {s(T1)}')
        g(f's_mul_i32 {s(T1)}, {s(sW)}, {32 * 3456}')
        g(f's_add_u32 {s(T0)}, {s(T0)}, {s(T1)}')
        g(f'v_min_u32 {v(vT)}, 2, {v(vG)}')
        g(f'v_mul_u32_u24 {v(vO)}, 3456, {v(vI)}')
        g(f'v_lshl_add_u32 {v(vO)}, {v(vT)}, 4, {v(vO)}')
        g(f'v_add_u32 {v(vO)}, {s(T0)}, {v(vO)}')
        for kk in range(5):
            for half in range(2):
                g(f's_mov_b32 {s(T1)}, {(128 * kk + 16 * half) * 3456}')
                for hh in range(2):
                    i = (2 * kk + half) * 2 + hh
                    g(f'buffer_load_dwordx4 {v(RA + 4 * i, 4)}, {v(vO)}, {s(rA, 4)}, {s(T1)} offen offset:{36 * hh}')
        g(f's_lshl_b32 {s(T1)}, 1, {s(sPart)}')
        g(f's_sub_u32 {s(T1)}, {s(T1)}, 1')
        vF9, vHF, vHD, vFF = 9, 10, 11, 12
        g(f'v_and_b32 {v(vF9)}, 3, {v(vI)}')
        g(f'v_subrev_u32 {v(vF9)}, {s(T1)}, {v(vF9)}')
        g(f'v_bfe_u32 {v(vHF)}, {v(vI)}, 2, 1')
        g(f'v_mul_u32_u24 {v(vHF)}, 9, {v(vHF)}')
        g(f'v_lshrrev_b32 {v(vHD)}, 3, {v(vI)}')
        g(f's_mul_i32 {s(T2)}, {s(sPp)}, 1296')
        g(f'v_mul_u32_u24 {v(13)}, 648, {v(vHD)}')
        g(f'v_mul_u32_u24 {v(14)}, 288, {v(vG)}')
        g(f'v_add3_u32 {v(13)}, {v(13)}, {v(14)}, {s(T2)}')
        masks = [sM0, sM1, sM2]
        for Tp in range(3):
            g(f'v_add_u32 {v(vT)}, {4 * Tp}, {v(vF9)}')
            g(f'v_cmp_gt_u32 {s(masks[Tp], 2)}, 9, {v(vT)}')
            g(f'v_add_u32 {v(vFF)}, {v(vT)}, {v(vHF)}')
            g(f'v_mov_b64 {v(BV + 4 * Tp, 2)}, 0')
            g(f'v_mov_b64 {v(BV + 4 * Tp + 2, 2)}, 0')
            for d in range(4):
                g(f'v_mov_b64 {v(ACC + 8 * Tp + 2 * d, 2)}, 0')
            g(f's_cmp_eq_u32 {s(sPart)}, 1')
            lab_v, lab_d = g.newlabel('wv'), g.newlabel('wd')
            st0 = g.state()
            g.branch('s_cbranch_scc1', lab_v)
            g.cond_depth += 1
            g(f'v_lshl_add_u32 {v(14)}, {v(vFF)}, 1, {v(13)}')
            for jj in range(8):
                if jj in (0, 2):
                    m = 0xffffffffffff if jj < 2 else 0xffffffff
                    g(f's_mov_b32 {s(sMA)}, {hex(m & 0xffffffff)}')
                    g(f's_mov_b32 {s(sMA + 1)}, {hex(m >> 32)}')
                    g(f's_and_b64 exec, {s(sMA, 2)}, {s(masks[Tp], 2)}')
                g(f'buffer_load_ushort {v(ACC + 8 * Tp + jj)}, {v(14)}, {s(rB, 4)}, 0 offen offset:{36 * jj}')
            g.setexec(-1)
            g.cond_depth -= 1
            st1 = g.state()
            g.branch('s_branch', lab_d)
            g.label(lab_v)
            g(f'v_lshlrev_b32 {v(14)}, 3, {v(vG)}')
            g(f'v_sub_u32 {v(14)}, {v(vFF)}, {v(14)}')
            g(f'v_mov_b32 {v(15)}, 0x3f80')
            g(f'v_mov_b32 {v(vT)}, 0x3f800000')
            g(f's_mov_b64 exec, {s(masks[Tp], 2)}')
            vm_keep = g.vm
            g.vm = st0[0]
            for d in range(4):
                g(f'v_cmp_eq_u32 vcc, {2 * d}, {v(14)}')
                g(f'v_cndmask_b32 {v(BV + 4 * Tp + d)}, 0, {v(15)}, vcc')
                g(f'v_cmp_eq_u32 vcc, {2 * d + 1}, {v(14)}')
                g(f'v_cndmask_b32 {v(BV + 4 * Tp + d)}, {v(BV + 4 * Tp + d)}, {v(vT)}, vcc')
            g.setexec(-1)
            g.vm = st1[0]
            g.label(lab_d)
        g.make_tag()
        for Tp in range(3):
            for d in range(4):
                g(f'v_lshl_or_b32 {v(14)}, {v(ACC + 8 * Tp + 2 * d + 1)}, 16, {v(ACC + 8 * Tp + 2 * d)}')
                g(f'v_or_b32 {v(BV + 4 * Tp + d)}, {v(14)}, {v(BV + 4 * Tp + d)}')
        g(f'v_cmp_eq_u32 vcc, 0, {v(vHD)}')
        for Tp in range(3):
            for d in range(4):
                g(f'v_cndmask_b32 {v(BF + 8 * Tp + d)}, 0, {v(BV + 4 * Tp + d)}, vcc')
                g(f'v_cndmask_b32 {v(BF + 8 * Tp + 4 + d)}, {v(BV + 4 * Tp + d)}, 0, vcc' if False else
                  f'v_sub_u32 {v(BF + 8 * Tp + 4 + d)}, {v(BV + 4 * Tp + d)}, {v(BF + 8 * Tp + d)}')
        for mt in range(10):
            for Tp in range(3):
                d = v(ACC + 12 * mt + 4 * Tp, 4)
                g.mfma(d, v(RA + 8 * mt, 4), v(BF + 8 * Tp, 4), '0')
            for Tp in range(3):
                d = v(ACC + 12 * mt + 4 * Tp, 4)
                g.mfma(d, v(RA + 8 * mt + 4, 4), v(BF + 8 * Tp + 4, 4), d)
        SM = 16
        for Tp in range(3):
            g(f'v_pk_add_f32 {v(SM + 2 * Tp, 2)}, {v(ACC + 4 * Tp, 2)}, {v(ACC + 4 * Tp + 2, 2)}')
        for mt in range(1, 10):
            for hf in range(2):
                for Tp in range(3):
                    g(f'v_pk_add_f32 {v(SM + 2 * Tp, 2)}, {v(SM + 2 * Tp, 2)}, {v(ACC + 12 * mt + 4 * Tp + 2 * hf, 2)}')
        CS = 24
        for Tp in range(3):
            g(f'v_add_f32 {v(CS + Tp)}, {v(SM + 2 * Tp)}, {v(SM + 2 * Tp + 1)}')
        g(f'v_mov_b32 {v(CS + 3)}, 0')
        g.xg_sum2(CS, CS + 1, vT)
        g.xg_sum2(CS + 2, CS + 3, vT)
        g(f's_lshl_b32 {s(T2)}, {s(sW)}, 8')
        g(f'v_lshl_add_u32 {v(vT)}, {v(vI)}, 4, {s(T2)}')
        g(f'ds_write_b128 {v(vT)}, {v(CS, 4)}')
        g.barrier()
        g(f'v_lshlrev_b32 {v(vT)}, 4, {v(vI)}')
        P_ = 28
        for w in range(4):
            g(f'ds_read_b128 {v(P_ + 4 * w, 4)}, {v(vT)} offset:{256 * w}')
        for h2 in range(2):
            g(f'v_pk_add_f32 {v(P_ + 2 * h2, 2)}, {v(P_ + 2 * h2, 2)}, {v(P_ + 4 + 2 * h2, 2)}')
            g(f'v_pk_add_f32 {v(P_ + 8 + 2 * h2, 2)}, {v(P_ + 8 + 2 * h2, 2)}, {v(P_ + 12 + 2 * h2, 2)}')
            g(f'v_pk_add_f32 {v(P_ + 2 * h2, 2)}, {v(P_ + 2 * h2, 2)}, {v(P_ + 8 + 2 * h2, 2)}')
        MN = 44
        for Tp in range(3):
            g(f'v_mul_f32 {v(MN + 2 * Tp)}, 0xbae38e39, {v(P_ + Tp)}')
        g(f's_cmp_eq_u32 {s(sPart)}, 1')
        g(f's_cselect_b32 {s(sM3)}, 0x44444444, 0')
        g(f's_mov_b32 {s(sM3 + 1)}, {s(sM3)}')
        g(f's_or_b64 {s(sM2, 2)}, {s(sM2, 2)}, {s(sM3, 2)}')
        g(f'v_mov_b32 {v(50)}, 0x3f803f80')
        g(f's_mul_i32 {s(T0)}, {s(sPp)}, {L.WPSZ}')
        g(f's_add_u32 {s(T0)}, {s(T0)}, {L.WP}')
        bases, steps = [T1, T2, T3], [T4, 13, 14]
        for Tp in range(3):
            g(f's_lshl_b32 {s(15)}, {s(sPart)}, 1')
            g(f's_add_u32 {s(15)}, {s(15)}, {Tp}')
            g(f's_lshl_b32 {s(bases[Tp])}, {s(15)}, 10')
            g(f's_cmp_lt_u32 {s(15)}, 5')
            g(f's_cselect_b32 {s(steps[Tp])}, 3072, 0')
            g(f's_cselect_b32 {s(15)}, 0, {L.L_P2 - 5120}')
            g(f's_add_u32 {s(steps[Tp])}, {s(steps[Tp])}, 2048')
            g(f's_add_u32 {s(bases[Tp])}, {s(bases[Tp])}, {s(15)}')
            g(f's_add_u32 {s(bases[Tp])}, {s(bases[Tp])}, {s(T0)}')
            g(f's_mul_i32 {s(15)}, {s(steps[Tp])}, {s(sW)}')
            g(f's_add_u32 {s(bases[Tp])}, {s(bases[Tp])}, {s(15)}')
            g(f's_lshl_b32 {s(steps[Tp])}, {s(steps[Tp])}, 2')
        O_ = 52

        def emit_k(kk):
            for Tp in range(3):
                o = O_ + 4 * ((3 * kk + Tp) % 4)
                for half in range(2):
                    b = ACC + 12 * (2 * kk + half) + 4 * Tp
                    for hf in range(2):
                        g(f'v_pk_add_f32 {v(b + 2 * hf, 2)}, {v(b + 2 * hf, 2)}, {v(MN + 2 * Tp, 2)} op_sel_hi:[1,0]')
                    for hf in range(2):
                        g(f'v_cvt_pk_bf16_f32 {v(o + 2 * half + hf)}, {v(b + 2 * hf)}, {v(b + 2 * hf + 1)}')
                if Tp == 2:
                    for d in range(4):
                        g(f'v_cndmask_b32 {v(o + d)}, {v(o + d)}, {v(50)}, {s(sM3, 2)}')
                g(f's_mov_b64 exec, {s(masks[Tp], 2)}')
                g(f'buffer_store_dwordx4 {v(o, 4)}, {v(vL16)}, {s(rWS, 4)}, {s(bases[Tp])} offen sc1')
                g.setexec(-1)
                g(f's_add_u32 {s(bases[Tp])}, {s(bases[Tp])}, {s(steps[Tp])}')
        for kk in range(4):
            emit_k(kk)
        g(f's_cmp_ge_u32 {s(sW)}, 2')
        with g.skip_if('s_cbranch_scc1'):
            emit_k(4)
        g(f's_lshl_b32 {s(T3)}, {s(sU)}, 7')
        g(f's_add_u32 {s(T3)}, {s(T3)}, {L.FW}')
        g.drain(force=True)
        g.barrier()
        g(f's_cmp_lg_u32 {s(sW)}, 0')
        with g.skip_if('s_cbranch_scc1'):
            g.flag_store(T3)
        g.stamp(6)

    def softmax2(self, X, single_first, C, TMP, outs):
        g = self
        R = range(2)
        sg = [x if single_first else x + 8 for x in X]
        pb = [x + 1 if single_first else x for x in X]
        val = lambda t, f: X[t] + f
        EN = [TMP[t] for t in R]
        SG = [TMP[t] + 8 for t in R]
        MX = [TMP[t] + 10 for t in R]
        SM = [TMP[t] + 12 for t in R]
        for t in R:
            g(f'v_max3_f32 {v(MX[t])}, {v(val(t, 0))}, {v(val(t, 1))}, {v(val(t, 2))}')
            g(f'v_max3_f32 {v(MX[t] + 1)}, -{v(val(t, 0))}, -{v(val(t, 1))}, -{v(val(t, 2))}')
        for k in range(3):
            for t in R:
                g(f'v_max3_f32 {v(MX[t])}, {v(MX[t])}, {v(val(t, 3 + 2 * k))}, {v(val(t, 4 + 2 * k))}')
                g(f'v_max3_f32 {v(MX[t] + 1)}, {v(MX[t] + 1)}, -{v(val(t, 3 + 2 * k))}, -{v(val(t, 4 + 2 * k))}')
        for t in R:
            g(f'v_permlane16_swap_b32 {v(MX[t])}, {v(MX[t] + 1)}')
        for t in R:
            g(f'v_max_f32 {v(MX[t])}, {v(MX[t])}, {v(MX[t] + 1)}')
        for t in R:
            g(f'v_mul_f32 {v(MX[t])}, {v(C[t])}, {v(MX[t])}')
        for t in R:
            g(f'v_mov_b32 {v(MX[t] + 1)}, {v(MX[t])}')
        for t in R:
            g(f'v_permlane16_swap_b32 {v(MX[t])}, {v(MX[t] + 1)}')
        for k in range(4):
            for t in R:
                g(f'v_pk_fma_f32 {v(EN[t] + 2 * k, 2)}, {v(pb[t] + 2 * k, 2)}, {v(C[t], 2)}, {v(MX[t], 2)} op_sel:[0,0,1] op_sel_hi:[1,0,1] neg_lo:[1,0,1] neg_hi:[1,0,1]')
                g(f'v_pk_fma_f32 {v(pb[t] + 2 * k, 2)}, {v(pb[t] + 2 * k, 2)}, {v(C[t], 2)}, {v(MX[t], 2)} op_sel_hi:[1,0,0] neg_lo:[0,0,1] neg_hi:[0,0,1]')
        for t in R:
            g(f'v_fma_f32 {v(SG[t])}, {v(sg[t])}, {v(C[t])}, -{v(MX[t])}')
            g(f'v_fma_f32 {v(SG[t] + 1)}, -{v(sg[t])}, {v(C[t])}, -{v(MX[t] + 1)}')
        for t in R:
            for k in range(8):
                g(f'v_exp_f32 {v(pb[t] + k)}, {v(pb[t] + k)}')
                g(f'v_exp_f32 {v(EN[t] + k)}, {v(EN[t] + k)}')
            g(f'v_exp_f32 {v(SG[t])}, {v(SG[t])}')
            g(f'v_exp_f32 {v(SG[t] + 1)}, {v(SG[t] + 1)}')
        for t in R:
            g(f'v_pk_add_f32 {v(SM[t], 2)}, {v(pb[t], 2)}, {v(pb[t] + 2, 2)}')
            g(f'v_pk_add_f32 {v(SM[t] + 2, 2)}, {v(EN[t], 2)}, {v(EN[t] + 2, 2)}')
        for k in (2, 3):
            for t in R:
                g(f'v_pk_add_f32 {v(SM[t], 2)}, {v(SM[t], 2)}, {v(pb[t] + 2 * k, 2)}')
                g(f'v_pk_add_f32 {v(SM[t] + 2, 2)}, {v(SM[t] + 2, 2)}, {v(EN[t] + 2 * k, 2)}')
        for t in R:
            g(f'v_add_f32 {v(MX[t])}, {v(SM[t])}, {v(SM[t] + 1)}')
            g(f'v_add_f32 {v(MX[t] + 1)}, {v(SM[t] + 2)}, {v(SM[t] + 3)}')
        for t in R:
            g(f'v_pk_add_f32 {v(MX[t], 2)}, {v(MX[t], 2)}, {v(SG[t], 2)}')
        for t in R:
            g(f'v_permlane16_swap_b32 {v(MX[t])}, {v(MX[t] + 1)}')
        for t in R:
            g(f'v_add_f32 {v(MX[t])}, {v(MX[t])}, {v(MX[t] + 1)}')
        for t in R:
            g(f'v_rcp_f32 {v(MX[t])}, {v(MX[t])}')
        for t in R:
            g(f'v_mov_b32 {v(MX[t] + 1)}, {v(MX[t])}')
        for t in R:
            g(f'v_permlane16_swap_b32 {v(MX[t])}, {v(MX[t] + 1)}')
        for k in range(4):
            for t in R:
                g(f'v_pk_mul_f32 {v(pb[t] + 2 * k, 2)}, {v(pb[t] + 2 * k, 2)}, {v(MX[t], 2)} op_sel_hi:[1,0]')
                g(f'v_pk_mul_f32 {v(EN[t] + 2 * k, 2)}, {v(EN[t] + 2 * k, 2)}, {v(MX[t], 2)} op_sel:[0,1] op_sel_hi:[1,1]')
        for t in R:
            g(f'v_pk_mul_f32 {v(SG[t], 2)}, {v(SG[t], 2)}, {v(MX[t], 2)}')
        for t in R:
            if single_first:
                pos = [SG[t]] + [pb[t] + k for k in range(8)]
                neg = [SG[t] + 1] + [EN[t] + k for k in range(8)]
            else:
                pos = [pb[t] + k for k in range(8)] + [SG[t]]
                neg = [EN[t] + k for k in range(8)] + [SG[t] + 1]
            seq = pos + neg
            for d in range(9):
                g(f'v_cvt_pk_bf16_f32 {v(outs[t][d])}, {v(seq[2 * d])}, {v(seq[2 * d + 1])}')

    def main(self):
        g = self
        vT = 6
        aSCW, aPA0, aPB, aKVS, aH1, aH2, aKT, aOA0, aOS, aOE = 200, 201, 204, 205, 206, 207, 208, 209, 212, 213
        aX1, aSTP, aSTG, aX3, aOUT, aW4 = 214, 215, 216, 217, 218, 219
        aKEEP = 240

        def keep(ar, vr):
            g(f'v_accvgpr_write_b32 {a(ar)}, {v(vr)}')

        def get(vr, ar):
            g(f'v_accvgpr_read_b32 {v(vr)}, {a(ar)}')

        g(f'v_lshlrev_b32 {v(vT)}, 11, {v(vLANE)}')
        g(f's_lshl_b32 {s(T0)}, {s(sP)}, 7')
        g(f's_add_u32 {s(T0)}, {s(T0)}, {L.FW}')
        g.poll([(vT + 1, 1, vT, s(T0), 0)], 7, 2)
        g(f's_mul_i32 {s(T0)}, {s(sP)}, {L.WPSZ}')
        g(f's_lshl_b32 {s(T1)}, {s(sW)}, 15')
        g(f's_add_u32 {s(T0)}, {s(T0)}, {s(T1)}')
        g(f's_add_u32 {s(T0)}, {s(T0)}, {L.WP}')
        g.dma(T1, T0, 32)
        g.stamp(7)
        c3, r3 = 8, 9
        g(f'v_and_b32 {v(c3)}, 3, {v(vLANE)}')
        g(f'v_bfe_u32 {v(r3)}, {v(vLANE)}, 2, 2')
        g(f's_mul_i32 {s(T0)}, {s(sW)}, {32 * 264}')
        g(f's_add_u32 {s(T0)}, {s(T0)}, {L.L_SCR}')
        g(f'v_mul_u32_u24 {v(vT)}, 264, {v(vI)}')
        g(f'v_mad_u32_u24 {v(vT)}, {v(vG)}, 40, {v(vT)}')
        g(f'v_add_u32 {v(vT)}, {s(T0)}, {v(vT)}')
        keep(aSCW, vT)
        g(f'v_and_b32 {v(vT)}, 1, {v(vG)}')
        g(f'v_lshlrev_b32 {v(vT)}, 4, {v(vT)}')
        g(f'v_lshl_add_u32 {v(vT)}, {v(r3)}, 2, {v(vT)}')
        g(f'v_and_b32 {v(vT + 1)}, 2, {v(vG)}')
        g(f'v_add_u32 {v(vT)}, {v(vT)}, {v(vT + 1)}')
        g(f'v_mul_u32_u24 {v(10)}, 264, {v(vT)}')
        g(f'v_add_u32 {v(10)}, {L.L_SCR}, {v(10)}')
        g(f's_lshr_b32 {s(T2)}, {s(sW)}, 1')
        g(f's_mul_i32 {s(T0)}, {s(T2)}, 80')
        g(f'v_lshrrev_b32 {v(vT)}, 1, {v(c3)}')
        g(f'v_mad_u32_u24 {v(11)}, {v(vT)}, 40, {v(10)}')
        g(f'v_add_u32 {v(11)}, {s(T0)}, {v(11)}')
        g(f'v_and_b32 {v(vT)}, 1, {v(c3)}')
        for Tm in range(3):
            g(f'v_mad_u32_u24 {v(vT + 1)}, {v(vT)}, {8 * (min(3 + Tm, 4) - Tm)}, {v(11)}')
            g(f'v_add_u32 {v(vT + 1)}, {8 * Tm}, {v(vT + 1)}')
            keep(aPA0 + Tm, vT + 1)
        g(f's_mul_i32 {s(T0)}, {s(sW)}, 24')
        g(f's_add_u32 {s(T0)}, {s(T0)}, 160')
        g(f'v_min_u32 {v(vT)}, 2, {v(c3)}')
        g(f'v_lshl_add_u32 {v(vT)}, {v(vT)}, 3, {v(10)}')
        g(f'v_add_u32 {v(vT)}, {s(T0)}, {v(vT)}')
        keep(aPB, vT)
        g(f's_mul_i32 {s(T0)}, {s(sW)}, 960')
        g(f'v_mul_u32_u24 {v(vT)}, 96, {v(vI)}')
        g(f'v_lshrrev_b32 {v(vT + 1)}, 1, {v(vG)}')
        g(f'v_mad_u32_u24 {v(vT)}, {v(vT + 1)}, 48, {v(vT)}')
        g(f'v_and_b32 {v(vT + 1)}, 1, {v(vG)}')
        g(f'v_lshl_add_u32 {v(vT)}, {v(vT + 1)}, 5, {v(vT)}')
        g(f'v_add_u32 {v(vT)}, {s(T0)}, {v(vT)}')
        keep(aKVS, vT)
        g(f's_and_b32 {s(T0)}, {s(sW)}, 1')
        g(f's_sub_u32 {s(T0)}, 10, {s(T0)}')
        g(f'v_cmp_gt_u32 {s(sM0, 2)}, {s(T0)}, {v(vI)}')
        g(f's_mul_i32 {s(T0)}, {s(sR128)}, 15')
        g(f'v_lshrrev_b32 {v(vT)}, 4, {v(vTID)}')
        g(f'v_cmp_gt_u32 {s(sM1, 2)}, 15, {v(vT)}')
        g(f'v_add_u32 {v(vT)}, {s(T0)}, {v(vT)}')

        def slot_valid(vs, dst):
            g(f'v_cmp_gt_u32 vcc, 0xea, {v(vs)}')
            g(f's_and_b64 {s(dst, 2)}, {s(dst, 2)}, vcc')
            g(f'v_subrev_u32 {v(vT + 1)}, 0x72, {v(vs)}')
            g(f'v_cmp_le_u32 vcc, 6, {v(vT + 1)}')
            g(f's_and_b64 {s(dst, 2)}, {s(dst, 2)}, vcc')
        slot_valid(vT, sM1)
        g(f'v_lshlrev_b32 {v(vT)}, 4, {v(vT)}')
        keep(aH2, vT)
        g(f'v_lshl_add_u32 {v(vT)}, {v(vI)}, 12, {v(vT)}')
        keep(aH1, vT)
        g(f's_mov_b64 {s(sM2, 2)}, -1')
        slot_valid(vTID, sM2)
        g(f'v_mul_u32_u24 {v(12)}, 1093, {v(vTID)}')
        g(f'v_lshrrev_b32 {v(12)}, 16, {v(12)}')
        g(f'v_mul_u32_u24 {v(13)}, 60, {v(12)}')
        g(f'v_sub_u32 {v(13)}, {v(vTID)}, {v(13)}')
        g(f'v_mul_u32_u24 {v(14)}, 43, {v(13)}')
        g(f'v_lshrrev_b32 {v(14)}, 8, {v(14)}')
        g(f'v_mul_u32_u24 {v(15)}, 6, {v(14)}')
        g(f'v_sub_u32 {v(15)}, {v(13)}, {v(15)}')
        g(f'v_cmp_le_u32 vcc, 3, {v(15)}')
        g(f'v_mul_u32_u24 {v(15)}, 12, {v(15)}')
        g(f'v_add_u32 {v(16)}, 12, {v(15)}')
        g(f'v_cndmask_b32 {v(15)}, {v(15)}, {v(16)}, vcc')
        g(f'v_and_b32 {v(16)}, 1, {v(12)}')
        g(f'v_mad_u32_u24 {v(16)}, {v(16)}, 9, {v(14)}')
        g(f'v_cmp_eq_u32 vcc, 9, {v(14)}')
        g(f'v_cndmask_b32 {v(16)}, {v(16)}, 18, vcc' if False else f'v_mov_b32 {v(17)}, 18')
        g(f'v_cndmask_b32 {v(16)}, {v(16)}, {v(17)}, vcc')
        g(f'v_lshrrev_b32 {v(12)}, 1, {v(12)}')
        g(f'v_mad_u32_u24 {v(16)}, {v(12)}, 19, {v(16)}')
        g(f'v_mul_u32_u24 {v(16)}, 96, {v(16)}')
        g(f'v_add_u32 {v(16)}, {v(16)}, {v(15)}')
        g(f'v_add_u32 {v(16)}, {L.L_KVT}, {v(16)}')
        keep(aKT, 16)
        g(f'v_lshrrev_b32 {v(12)}, 3, {v(vI)}')
        g(f'v_lshrrev_b32 {v(13)}, 1, {v(vG)}')
        g(f'v_cmp_eq_u32 vcc, {v(12)}, {v(13)}')
        g(f'v_mul_u32_u24 {v(12)}, {19 * 96}, {v(12)}')
        g(f'v_and_b32 {v(13)}, 1, {v(vG)}')
        g(f'v_mad_u32_u24 {v(12)}, {v(13)}, 48, {v(12)}')
        g(f'v_add_u32 {v(12)}, {L.L_KVT}, {v(12)}')
        g(f'v_bfe_u32 {v(13)}, {v(vI)}, 2, 1')
        g(f'v_and_b32 {v(14)}, 3, {v(vI)}')
        g(f'v_lshl_add_u32 {v(13)}, {v(13)}, 3, {v(14)}')
        g(f'v_mov_b32 {v(17)}, {L.L_ZERO}')
        g(f's_movk_i32 {s(T0)}, 96')
        for T in range(3):
            if T < 2:
                g(f'v_add_u32 {v(15)}, {4 * T}, {v(13)}')
            else:
                g(f'v_lshlrev_b32 {v(15)}, 3, {v(14)}')
                g(f'v_lshrrev_b32 {v(15)}, {v(15)}, {v(18)}' if False else f'v_mov_b32 {v(18)}, 0x12111012')
                g(f'v_lshrrev_b32 {v(15)}, {v(15)}, {v(18)}')
                g(f'v_and_b32 {v(15)}, 0xff, {v(15)}')
            g(f'v_mad_u32_u24 {v(15)}, {v(15)}, {s(T0)}, {v(12)}')
            g(f'v_cndmask_b32 {v(15)}, {v(17)}, {v(15)}, vcc')
            keep(aOA0 + T, 15)
        g(f's_mul_i32 {s(T0)}, {s(sRB)}, 36864')
        g(f'v_lshrrev_b32 {v(12)}, 3, {v(vI)}')
        g(f'v_mul_u32_u24 {v(12)}, 18432, {v(12)}')
        g(f'v_and_b32 {v(13)}, 7, {v(vI)}')
        g(f'v_lshl_add_u32 {v(12)}, {v(13)}, 4, {v(12)}')
        g(f'v_add_u32 {v(12)}, {s(T0)}, {v(12)}')
        g(f's_lshl_b32 {s(T0)}, {s(sP)}, 10')
        g(f'v_lshl_add_u32 {v(14)}, {v(vG)}, 8, {v(12)}')
        g(f'v_add_u32 {v(14)}, {s(T0)}, {v(14)}')
        keep(aOS, 14)
        g(f's_lshr_b32 {s(T0)}, {s(sP)}, 1')
        g(f's_lshl_b32 {s(T0)}, {s(T0)}, 8')
        g(f's_and_b32 {s(T1)}, {s(sP)}, 1')
        g(f's_lshl_b32 {s(T1)}, {s(T1)}, 3')
        g(f's_add_u32 {s(T0)}, {s(T0)}, {s(T1)}')
        g(f's_add_u32 {s(T0)}, {s(T0)}, {64 * 256}')
        g(f'v_lshrrev_b32 {v(14)}, 1, {v(vG)}')
        g(f'v_lshl_add_u32 {v(14)}, {v(14)}, 7, {v(12)}')
        g(f'v_add_u32 {v(14)}, {s(T0)}, {v(14)}')
        keep(aOE, 14)
        g(f's_and_b32 {s(T3)}, {s(sW)}, 1')
        g(f's_mul_i32 {s(T0)}, {s(sRB2)}, 36864')
        g(f's_mul_i32 {s(T1)}, {s(sCG)}, 4608')
        g(f's_add_u32 {s(T0)}, {s(T0)}, {s(T1)}')
        g(f's_lshl_b32 {s(T1)}, {s(T3)}, 7')
        g(f's_add_u32 {s(T0)}, {s(T0)}, {s(T1)}')
        g(f'v_lshlrev_b32 {v(12)}, 8, {v(vG)}')
        g(f'v_lshl_add_u32 {v(12)}, {v(13)}, 4, {v(12)}')
        g(f'v_add_u32 {v(12)}, {s(T0)}, {v(12)}')
        g(f'v_lshrrev_b32 {v(14)}, 3, {v(vI)}')
        g(f'v_lshl_add_u32 {v(15)}, {v(14)}, 3, {v(12)}')
        keep(aX1, 15)
        g(f'v_lshl_add_u32 {v(15)}, {v(14)}, 10, {v(12)}')
        keep(aX3, 15)
        g(f's_lshl_b32 {s(T0)}, {s(sR64)}, 13')
        g(f's_lshl_b32 {s(T1)}, {s(sW)}, 8')
        g(f's_add_u32 {s(T0)}, {s(T0)}, {s(T1)}')
        g(f's_add_u32 {s(T0)}, {s(T0)}, {L.ST}')
        g(f'v_lshl_add_u32 {v(15)}, {v(vI)}, 4, {s(T0)}')
        g(f'v_lshl_add_u32 {v(16)}, {v(vG)}, 10, {v(15)}')
        keep(aSTG, 16)
        g(f's_lshl_b32 {s(T1)}, {s(sCG)}, 10')
        g(f'v_add_u32 {v(15)}, {s(T1)}, {v(15)}')
        keep(aSTP, 15)
        g(f's_lshl_b32 {s(T0)}, {s(sRB2)}, 5')
        g(f's_lshl_b32 {s(T1)}, {s(T3)}, 3')
        g(f's_add_u32 {s(T0)}, {s(T0)}, {s(T1)}')
        g(f's_mul_i32 {s(T0)}, {s(T0)}, 1152')
        g(f's_mul_i32 {s(T1)}, {s(sCG)}, 144')
        g(f's_add_u32 {s(T0)}, {s(T0)}, {s(T1)}')
        g(f'v_lshl_add_u32 {v(15)}, {v(14)}, 4, {v(13)}')
        g(f'v_mul_u32_u24 {v(15)}, 1152, {v(15)}')
        g(f'v_and_b32 {v(16)}, 1, {v(vG)}')
        g(f'v_lshl_add_u32 {v(15)}, {v(16)}, 5, {v(15)}')
        g(f'v_lshrrev_b32 {v(16)}, 1, {v(vG)}')
        g(f'v_lshl_add_u32 {v(15)}, {v(16)}, 4, {v(15)}')
        g(f'v_add_u32 {v(15)}, {s(T0)}, {v(15)}')
        keep(aOUT, 15)
        g(f'v_lshlrev_b32 {v(15)}, 7, {v(vG)}')
        g(f'v_lshl_add_u32 {v(15)}, {v(13)}, 4, {v(15)}')
        g(f'v_add_u32 {v(15)}, 4096, {v(15)}')
        keep(aW4, 15)
        g(f's_mov_b32 {s(sLAY)}, 0')
        g(f's_mul_i32 {s(sXP)}, {s(sRB)}, 36864')
        g(f's_add_u32 {s(sXP)}, {s(sXP)}, {L.X1P}')
        g(f's_mov_b32 {s(sOFB)}, {L.OF}')
        g(f's_lshl_b32 {s(sKV1)}, {s(sP)}, 16')
        g(f's_add_u32 {s(sKV1)}, {s(sKV1)}, {L.KV1}')
        g(f's_lshl_b32 {s(sKV2)}, {s(sP)}, 12')
        g(f's_add_u32 {s(sKV2)}, {s(sKV2)}, {L.KV2}')
        g(f's_mov_b32 {s(sFO)}, {L.FO}')
        g(f'v_lshlrev_b32 {v(vT)}, 7, {v(vLANE)}')
        g(f's_lshr_b32 {s(T0)}, {s(sCG)}, 1')
        g(f's_lshl_b32 {s(T0)}, {s(T0)}, 11')
        g(f's_add_u32 {s(T0)}, {s(T0)}, {L.FWO}')
        g.poll([(vT + 1, 1, vT, s(T0), 0)], 0xffff, 3)
        g(f's_lshr_b32 {s(T0)}, {s(sR128)}, 2')
        g(f's_mul_i32 {s(T0)}, {s(T0)}, 144')
        g(f's_mul_i32 {s(T1)}, {s(sW)}, 36')
        g(f's_add_u32 {s(T0)}, {s(T0)}, {s(T1)}')
        g(f's_lshl_b32 {s(T0)}, {s(T0)}, 7')
        g(f's_add_u32 {s(T0)}, {s(T0)}, {L.FC}')
        g.poll([(vT + 1, 1, vT, s(T0), 0)], (1 << 36) - 1, 4)
        g.barrier()
        if g.opt.stop == 'conv':
            g.branch('s_branch', 'L_fin')

        g.label('L_layer')
        g.stamp(8)
        XA = 112
        AC = [48, 76]
        GR = [104, 108]
        for j in range(36):
            if j and j % 4 == 0:
                g(f's_add_u32 {s(sXP)}, {s(sXP)}, 4096')
            off = f' offset:{(j % 4) * 1024}' if j % 4 else ''
            g(f'buffer_load_dwordx4 {v(XA + 4 * j, 4)}, {v(vL16)}, {s(rWS, 4)}, {s(sXP)} offen{off} sc1')
        g(f's_cmp_eq_u32 {s(sLAY)}, 0')
        with g.skip_if('s_cbranch_scc1'):
            g('s_barrier')
        vW1, vW2 = 6, 7
        g(f'v_add_u32 {v(vW1)}, {9 * 5120}, {v(vL16)}')
        g(f'v_add_u32 {v(vW2)}, {L.L_P2}, {v(vL16)}')

        def rdW(k, T):
            if T < 5:
                base, off = (vL16, k * 5120) if k < 9 else (vW1, (k - 9) * 5120)
                g(f'ds_read_b128 {a(20 * (k & 1) + 4 * T, 4)}, {v(base)} offset:{off + 1024 * T}')
            else:
                g(f'ds_read_b128 {a(40 + 8 * (k & 3) + 4 * (T - 5), 4)}, {v(vW2)} offset:{k * 2048 + 1024 * (T - 5)}')
        for T in range(5):
            rdW(0, T)
        for k in range(18):
            x = XA + 8 * k
            g(f'v_swap_b32 {v(x + 2)}, {v(x + 4)}')
            g(f'v_swap_b32 {v(x + 3)}, {v(x + 5)}')
            for t in range(2):
                g.mfma(v(GR[t], 4), v(x + 4 * t, 4), v(x + 4 * t, 4), v(GR[t], 4) if k else '0')
            for T in range(5):
                for t in range(2):
                    d = v(AC[t] + 4 * T, 4)
                    g.mfma(d, a(20 * (k & 1) + 4 * T, 4), v(x + 4 * t, 4), d if k else '0')
                    if t == 0 and k < 17:
                        rdW(k + 1, T)
        g.stamp(9)
        g.barrier()
        g(f's_mul_i32 {s(T0)}, {s(sCG)}, {L.WOSZ}')
        g(f's_mul_i32 {s(T1)}, {s(sW)}, {21 * 1024}')
        g(f's_add_u32 {s(T0)}, {s(T0)}, {s(T1)}')
        g(f's_add_u32 {s(T0)}, {s(T0)}, {L.WOF}')
        g.dma(T1, T0, 21)
        g(f'v_mov_b64 {v(8, 2)}, 0')
        g(f'v_mov_b64 {v(10, 2)}, 0')
        g(f'v_lshlrev_b32 {v(12)}, 4, {v(vTID)}')
        g(f'v_add_u32 {v(12)}, {L.L_KVT}, {v(12)}')
        g(f'ds_write_b128 {v(12)}, {v(8, 4)}')
        C = [8, 10]
        RSV = [12, 14]
        g(f'v_and_b32 {v(16)}, 3, {v(vI)}')
        for jj in range(1, 4):
            g(f'v_cmp_eq_u32 vcc, {jj}, {v(16)}')
            for t in range(2):
                g(f'v_cndmask_b32 {v(GR[t])}, {v(GR[t])}, {v(GR[t] + jj)}, vcc')
        g(f'v_lshrrev_b32 {v(16)}, 2, {v(vI)}')
        g(f'v_cmp_eq_u32 vcc, {v(16)}, {v(vG)}')
        for t in range(2):
            g(f'v_cndmask_b32 {v(GR[t])}, 0, {v(GR[t])}, vcc')
        g.xg_sum2(GR[0], GR[1], 16)
        for t in range(2):
            g.ln_coef(AC[t] + 18, GR[t], RSV[t], None)
        for t in range(2):
            g(f'v_mul_f32 {v(C[t])}, 0x3fb8aa3b, {v(RSV[t])}')
        TM = [16, 32]
        VP = [104, 108]
        vSC = 6
        get(vSC, aSCW)
        g(f'v_lshlrev_b32 {v(16)}, 4, {v(vG)}')
        g(f'v_sub_u32 {v(17)}, {v(vSC)}, {v(16)}')
        for t in range(2):
            b = AC[t]
            g(f'v_mul_f32 {v(b + 9)}, {v(RSV[t])}, {v(b + 9)}')
            for k in range(4):
                g(f'v_pk_mul_f32 {v(b + 10 + 2 * k, 2)}, {v(b + 10 + 2 * k, 2)}, {v(RSV[t], 2)} op_sel_hi:[1,0]')
            for d in range(4):
                g(f'v_cvt_pk_bf16_f32 {v(VP[t] + d)}, {v(b + 9 + 2 * d)}, {v(b + 10 + 2 * d)}')
            g(f'v_cvt_pk_bf16_f32 {v(b + 18)}, {v(b + 17)}, 1.0')
            o = 160 + 16 * 264 * t
            g(f'ds_write_b64 {v(17)}, {v(VP[t], 2)} offset:{o}')
            g(f'ds_write_b64 {v(17)}, {v(VP[t] + 2, 2)} offset:{o + 8}')
            g(f'ds_write_b32 {v(17)}, {v(b + 18)} offset:{o + 16}')
        g.drain(vm=False)
        PK = [[AC[t] + 10 + d for d in range(9)] for t in range(2)]
        g.softmax2([AC[0], AC[1]], False, C, TM, PK)
        for t in range(2):
            o = 16 * 264 * t
            for d in range(4):
                g(f'ds_write_b64 {v(vSC)}, {v(PK[t][2 * d], 2)} offset:{o + 8 * d}')
            g(f'ds_write_b32 {v(vSC)}, {v(PK[t][8])} offset:{o + 32}')
        vPA, vPB = 16, 19
        for Tm in range(3):
            get(vPA + Tm, aPA0 + Tm)
        get(vPB, aPB)
        g.barrier()
        g.stamp(10)
        KD = 20
        for ks in range(4):
            for rho in range(2):
                g(f'ds_read_b64_tr_b16 {a(72 + 16 * ks + 2 * rho, 2)}, {v(vPB)} offset:{(32 * ks + rho) * 264}')
            for Tm in range(3):
                for rho in range(2):
                    g(f'ds_read_b64_tr_b16 {a(72 + 16 * ks + 4 + 4 * Tm + 2 * rho, 2)}, {v(vPA + Tm)} offset:{(32 * ks + rho) * 264}')
            if ks == 1 or ks == 3:
                for k2 in (ks - 1, ks):
                    for Tm in range(3):
                        d = v(KD + 4 * Tm, 4)
                        g.mfma(d, a(72 + 16 * k2 + 4 + 4 * Tm, 4), a(72 + 16 * k2, 4), d if k2 else '0')
        for k in range(3):
            rdW(k, 5)
            rdW(k, 6)
        G1_, G2_ = 32, 36
        get(40, aKVS)
        g(f'v_mov_b32 {v(G1_ + 3)}, {v(vTAG)}')
        g(f'v_mov_b32 {v(G2_ + 3)}, {v(vTAG)}')
        g(f's_lshl_b32 {s(T0)}, {s(sR128)}, 12')
        g(f's_add_u32 {s(T0)}, {s(T0)}, {s(sKV1)}')
        g(f's_mov_b32 {s(sMA)}, 0xffff')
        g(f's_mov_b32 {s(sMA + 1)}, 0xffff')
        g(f's_and_b64 {s(sMA, 2)}, {s(sMA, 2)}, {s(sM0, 2)}')
        for d in range(3):
            g(f'v_cvt_pk_bf16_f32 {v(G1_ + d)}, {v(KD + 2 * d)}, {v(KD + 2 * d + 1)}')
        for d in range(3):
            g(f'v_cvt_pk_bf16_f32 {v(G2_ + d)}, {v(KD + 6 + 2 * d)}, {v(KD + 7 + 2 * d)}')
        g.setexec(s(sM0, 2))
        g(f'buffer_store_dwordx4 {v(G1_, 4)}, {v(40)}, {s(rWS, 4)}, {s(T0)} offen sc1')
        g.setexec(s(sMA, 2))
        g(f'buffer_store_dwordx4 {v(G2_, 4)}, {v(40)}, {s(rWS, 4)}, {s(T0)} offen offset:16 sc1')
        g.setexec(-1)
        g.stamp(11)
        for k in range(18):
            x = XA + 8 * k
            if k + 3 < 18:
                rdW(k + 3, 5)
            for T in (5, 6):
                for t in range(2):
                    d = v(AC[t] + 4 * T, 4)
                    g.mfma(d, a(40 + 8 * (k & 3) + 4 * (T - 5), 4), v(x + 4 * t, 4), d if k else '0')
                    if T == 5 and t == 1 and k + 3 < 18:
                        rdW(k + 3, 6)
        g.stamp(12)
        H1 = 112
        get(41, aH1)
        g(f'v_mov_b64 {v(H1, 2)}, 0')
        g(f'v_mov_b64 {v(H1 + 2, 2)}, 0')
        g.poll([(H1, 4, 41, s(sKV1), 0)], s(sM1, 2), 5)
        U = 116
        for d in range(3):
            g.unpack(U + 2 * d, U + 2 * d + 1, H1 + d)
        for sh in (8, 4, 2, 1):
            for d in range(6):
                g(f'v_add_f32_dpp {v(U + d)}, {v(U + d)}, {v(U + d)} row_ror:{sh} row_mask:0xf bank_mask:0xf')
        get(41, aH2)
        for d in range(3):
            g(f'v_cvt_pk_bf16_f32 {v(H1 + d)}, {v(U + 2 * d)}, {v(U + 2 * d + 1)}')
        g(f's_mov_b32 {s(sMA)}, 0x00010001')
        g(f's_mov_b32 {s(sMA + 1)}, 0x00010001')
        g(f's_and_b64 exec, {s(sMA, 2)}, {s(sM1, 2)}')
        g(f'buffer_store_dwordx4 {v(H1, 4)}, {v(41)}, {s(rWS, 4)}, {s(sKV2)} offen sc1')
        g.setexec(-1)
        g.stamp(13)
        PQ = [128, 140]
        for t in range(2):
            g(f'v_mov_b32 {v(PQ[t] + 9)}, 0')
            g(f'v_mov_b64 {v(PQ[t] + 10, 2)}, 0')
        g.softmax2([AC[0] + 19, AC[1] + 19], True, C, TM, [[PQ[t] + d for d in range(9)] for t in range(2)])
        g.stamp(14)
        g(f'v_lshlrev_b32 {v(41)}, 4, {v(vTID)}')
        get(42, aKT)
        g.poll([(H1, 4, 41, s(sKV2), 0)], s(sM2, 2), 6)
        g.setexec(s(sM2, 2))
        g(f'ds_write2_b32 {v(42)}, {v(H1)}, {v(H1 + 1)} offset0:0 offset1:1')
        g(f'ds_write_b32 {v(42)}, {v(H1 + 2)} offset:8')
        g.setexec(-1)
        for T in range(3):
            get(16 + T, aOA0 + T)
        g.barrier()
        g.stamp(15)
        for T in range(3):
            for kk in range(3):
                g(f'ds_read_b128 {a(72 + 12 * T + 4 * kk, 4)}, {v(16 + T)} offset:{16 * kk}')
        OD = [48, 60]
        for T in (2, 0, 1):
            for kk in range(3):
                for t in range(2):
                    d = v(OD[t] + 4 * T, 4)
                    g.mfma(d, a(72 + 12 * T + 4 * kk, 4), v(PQ[t] + 4 * kk, 4), d if kk else '0')
        get(20, aOS)
        get(21, aOE)
        RC = [22, 24]
        OP = [28, 32]
        OX = 36
        for t in range(2):
            g(f'v_add_f32 {v(RC[t])}, 0x358637bd, {v(OD[t] + 8)}')
        for t in range(2):
            g(f'v_rcp_f32 {v(RC[t])}, {v(RC[t])}')
        for t in range(2):
            g(f'v_mul_f32 {v(OD[t] + 9)}, {v(RC[t])}, {v(OD[t] + 9)}')
            g(f'v_mul_f32 {v(OD[t] + 10)}, {v(RC[t])}, {v(OD[t] + 10)}')
            g(f'v_cvt_pk_bf16_f32 {v(OX + t)}, {v(OD[t] + 9)}, {v(OD[t] + 10)}')
        for t in range(2):
            for k in range(4):
                g(f'v_pk_mul_f32 {v(OD[t] + 2 * k, 2)}, {v(OD[t] + 2 * k, 2)}, {v(RC[t], 2)} op_sel_hi:[1,0]')
            for k in range(4):
                g(f'v_cvt_pk_bf16_f32 {v(OP[t] + k)}, {v(OD[t] + 2 * k)}, {v(OD[t] + 2 * k + 1)}')
            g(f'buffer_store_dwordx4 {v(OP[t], 4)}, {v(20)}, {s(rWS, 4)}, {s(sOFB)} offen offset:{128 * t} sc1')
        g(f'v_permlane32_swap_b32 {v(OX)}, {v(OX + 1)}')
        g.setexec(0x0000ffff0000ffff)
        g(f'buffer_store_dwordx2 {v(OX, 2)}, {v(21)}, {s(rWS, 4)}, {s(sOFB)} offen sc1')
        g.setexec(-1)
        g(f's_lshl_b32 {s(T0)}, {s(sRB)}, 4')
        g(f's_add_u32 {s(T0)}, {s(T0)}, {s(sP)}')
        g(f's_lshl_b32 {s(T0)}, {s(T0)}, 7')
        g(f's_add_u32 {s(T0)}, {s(T0)}, {s(sFO)}')
        g.drain(lg=False)
        g.flag_store(T0)
        g.stamp(16)
        if g.opt.stop == 'o1':
            g.branch('s_branch', 'L_fin')
        X1, YY = 68, 78
        g(f's_cmp_lg_u32 {s(sLAY)}, 0')
        with g.skip_if('s_cbranch_scc1'):
            get(16, aX1)
            g(f's_mov_b32 {s(T1)}, {L.X1P}')
            g(f's_mov_b32 {s(T2)}, {L.YP}')
            for T in range(5):
                if T == 4:
                    g(f's_add_u32 {s(T1)}, {s(T1)}, 4096')
                    g(f's_add_u32 {s(T2)}, {s(T2)}, 4096')
                o = 1024 * (T & 3)
                g(f'buffer_load_dwordx2 {v(X1 + 2 * T, 2)}, {v(16)}, {s(rWS, 4)}, {s(T1)} offen offset:{o} sc1')
                g(f'buffer_load_dwordx2 {v(YY + 2 * T, 2)}, {v(16)}, {s(rWS, 4)}, {s(T2)} offen offset:{o} sc1')
        vWo1, vWo4, vWo5 = 6, 7, 8
        g(f'v_add_u32 {v(vWo1)}, {9 * 4608}, {v(vL16)}')
        get(vWo4, aW4)
        g(f'v_add_u32 {v(vWo5)}, {9 * 4608}, {v(vWo4)}')

        def rdO(k, T):
            hi = k >= 9
            base = ((vL16, vWo1) if T < 4 else (vWo4, vWo5))[hi]
            off = (k - 9 * hi) * 4608 + (1024 * T if T < 4 else 0)
            g(f'ds_read_b128 {a(20 * (k % 3) + 4 * T, 4)}, {v(base)} offset:{off}')
        for k in range(2):
            for T in range(5):
                rdO(k, T)
        g(f'v_lshlrev_b32 {v(17)}, 7, {v(vI)}')
        g(f's_lshl_b32 {s(T0)}, {s(sRB2)}, 11')
        g(f's_add_u32 {s(T0)}, {s(T0)}, {s(sFO)}')
        g.poll([(18, 1, 17, s(T0), 0)], 0xffff, 7)
        g.stamp(17)
        OA = 112
        g(f's_lshl_b32 {s(T0)}, {s(sR64)}, 2')
        g(f's_add_u32 {s(T0)}, {s(T0)}, {s(sW)}')
        g(f's_mul_i32 {s(T0)}, {s(T0)}, 18432')
        g(f's_add_u32 {s(T0)}, {s(T0)}, {s(sOFB)}')
        for k in range(18):
            if k and k % 4 == 0:
                g(f's_add_u32 {s(T0)}, {s(T0)}, 4096')
            off = f' offset:{(k % 4) * 1024}' if k % 4 else ''
            g(f'buffer_load_dwordx4 {v(OA + 4 * k, 4)}, {v(vL16)}, {s(rWS, 4)}, {s(T0)} offen{off} sc1')
        A2 = 48
        for k in range(18):
            for T in range(5):
                d = v(A2 + 4 * T, 4)
                g.mfma(d, a(20 * (k % 3) + 4 * T, 4), v(OA + 4 * k, 4), d if k else '0')
                if k + 2 < 18:
                    rdO(k + 2, T)
        g.stamp(18)
        g(f's_cmp_lg_u32 {s(sLAY)}, 0')
        g.branch('s_cbranch_scc1', 'L_last')
        g.barrier()
        sDL, sDG = T4, T5
        g(f's_mul_i32 {s(sDL)}, {s(sW)}, {23 * 1024}')
        g(f's_mul_i32 {s(sDG)}, {s(sP)}, {L.WPSZ}')
        g(f's_add_u32 {s(sDG)}, {s(sDG)}, {s(sDL)}')
        g(f's_add_u32 {s(sDG)}, {s(sDG)}, {L.WP}')
        UX = 112
        for T in range(5):
            for d in range(2):
                g.unpack(UX + 4 * T + 2 * d, UX + 4 * T + 2 * d + 1, X1 + 2 * T + d)
        for k in range(10):
            g(f'v_pk_add_f32 {v(A2 + 2 * k, 2)}, {v(A2 + 2 * k, 2)}, {v(UX + 2 * k, 2)}')
        g.setexec(0xffffffff00000000)
        g(f'v_mov_b64 {v(A2 + 16, 2)}, 0')
        g(f'v_mov_b64 {v(A2 + 18, 2)}, 0')
        g.setexec(-1)
        SS, SQ = 8, 10
        g(f'v_pk_add_f32 {v(SS, 2)}, {v(A2, 2)}, {v(A2 + 2, 2)}')
        g(f'v_pk_mul_f32 {v(SQ, 2)}, {v(A2, 2)}, {v(A2, 2)}')
        g(f'v_pk_fma_f32 {v(SQ, 2)}, {v(A2 + 2, 2)}, {v(A2 + 2, 2)}, {v(SQ, 2)}')
        for k in range(2, 10):
            g(f'v_pk_add_f32 {v(SS, 2)}, {v(SS, 2)}, {v(A2 + 2 * k, 2)}')
            g(f'v_pk_fma_f32 {v(SQ, 2)}, {v(A2 + 2 * k, 2)}, {v(A2 + 2 * k, 2)}, {v(SQ, 2)}')
        SP = 12
        g(f'v_add_f32 {v(SP)}, {v(SS)}, {v(SS + 1)}')
        g(f'v_add_f32 {v(SP + 1)}, {v(SQ)}, {v(SQ + 1)}')
        get(16, aSTP)
        g(f'v_mov_b32 {v(SP + 3)}, {v(vTAG)}')
        g(f'v_mov_b32 {v(SP + 2)}, 0')
        g.xg_sum2(SP, SP + 1, 17)
        g.setexec(0xffff)
        hs = g(f'buffer_store_dwordx4 {v(SP, 4)}, {v(16)}, {s(rWS, 4)}, 0 offen sc1')
        g.setexec(-1)
        g.dma(sDL, sDG, 8)
        UY = 132
        for T in range(5):
            for d in range(2):
                g.unpack(UY + 4 * T + 2 * d, UY + 4 * T + 2 * d + 1, YY + 2 * T + d)
        get(16, aSTG)
        g(f's_movk_i32 {s(T0)}, 4096')
        g.wait_vm(hs)
        g.stamp(19)
        SA, SB = 20, 24
        g.poll([(SA, 4, 16, '0', 0), (SB, 4, 16, s(T0), 0)], -1, 8)
        g.stamp(20)
        g(f'v_pk_add_f32 {v(SA, 2)}, {v(SA, 2)}, {v(SB, 2)}')
        g.xg_sum2(SA, SA + 1, 17)
        g.ln_coef(SA, SA + 1, 8, 10)
        for k in range(10):
            g(f'v_pk_fma_f32 {v(UX + 2 * k, 2)}, {v(A2 + 2 * k, 2)}, {v(8, 2)}, {v(10, 2)} op_sel_hi:[1,0,0]')
        X3 = 28
        for k in range(10):
            g(f'v_pk_fma_f32 {v(UX + 2 * k, 2)}, {v(UX + 2 * k, 2)}, {v(UY + 2 * k, 2)}, {v(A2 + 2 * k, 2)}')
        for k in range(10):
            g(f'v_cvt_pk_bf16_f32 {v(X3 + k)}, {v(UX + 2 * k)}, {v(UX + 2 * k + 1)}')
        for k in range(10):
            keep(aKEEP + k, X3 + k)
        get(16, aX3)
        g(f's_mov_b32 {s(T0)}, {L.X3P}')
        g(f's_mov_b32 {s(T1)}, {L.X3P + 4096}')
        for pr in range(3):
            b = X3 + 4 * pr
            if pr < 2:
                g(f'v_mov_b64 {v(18, 2)}, {v(b, 2)}')
                for d in range(2):
                    g(f'v_mov_b32_dpp {v(b + d)}, {v(b + 2 + d)} row_ror:8 row_mask:0xf bank_mask:0xc')
                for d in range(2):
                    g(f'v_mov_b32_dpp {v(b + 2 + d)}, {v(18 + d)} row_ror:8 row_mask:0xf bank_mask:0x3')
                hx = g(f'buffer_store_dwordx4 {v(b, 4)}, {v(16)}, {s(rWS, 4)}, {s(T0)} offen offset:{2048 * pr} sc1')
            else:
                g(f'v_mov_b64 {v(b + 2, 2)}, 0')
                for d in range(2):
                    g(f'v_mov_b32_dpp {v(b + 2 + d)}, {v(b + d)} row_ror:8 row_mask:0xf bank_mask:0x3')
                g.setexec(0x00ff00ff)
                hx = g(f'buffer_store_dwordx4 {v(b, 4)}, {v(16)}, {s(rWS, 4)}, {s(T1)} offen sc1')
                g.setexec(-1)
        g(f's_add_u32 {s(sDL)}, {s(sDL)}, 4096')
        g(f's_add_u32 {s(sDG)}, {s(sDG)}, 4096')
        g.dma(sDL, sDG, 8)
        g(f's_lshl_b32 {s(T0)}, {s(sRB2)}, 4')
        g(f's_lshl_b32 {s(T1)}, {s(sCG)}, 1')
        g(f's_add_u32 {s(T0)}, {s(T0)}, {s(T1)}')
        g(f's_and_b32 {s(T1)}, {s(sW)}, 1')
        g(f's_add_u32 {s(T0)}, {s(T0)}, {s(T1)}')
        g(f's_lshl_b32 {s(T0)}, {s(T0)}, 7')
        g(f's_add_u32 {s(T0)}, {s(T0)}, {L.FX}')
        g.wait_vm(hx)
        g.flag_store(T0)
        g.stamp(21)
        g(f's_add_u32 {s(sDL)}, {s(sDL)}, 4096')
        g(f's_add_u32 {s(sDG)}, {s(sDG)}, 4096')
        g.dma(sDL, sDG, 7)
        if g.opt.stop == 'x3':
            g.branch('s_branch', 'L_fin')
        g(f's_mov_b32 {s(sLAY)}, 1')
        g(f's_mul_i32 {s(sXP)}, {s(sRB)}, 36864')
        g(f's_add_u32 {s(sXP)}, {s(sXP)}, {L.X3P}')
        g(f's_add_u32 {s(sOFB)}, {s(sOFB)}, {L.ARR}')
        g(f's_add_u32 {s(sKV1)}, {s(sKV1)}, {256 * 4096}')
        g(f's_add_u32 {s(sKV2)}, {s(sKV2)}, {16 * 4096}')
        g(f's_add_u32 {s(sFO)}, {s(sFO)}, {1024 * 128}')
        g(f'v_lshlrev_b32 {v(17)}, 7, {v(vI)}')
        g(f's_lshl_b32 {s(T0)}, {s(sRB)}, 11')
        g(f's_add_u32 {s(T0)}, {s(T0)}, {L.FX}')
        g.poll([(18, 1, 17, s(T0), 0)], 0xffff, 9)
        if g.opt.stamps:
            g(f'v_accvgpr_read_b32 v47, a255')
            g(f'v_accvgpr_write_b32 a254, v47')
        assert not g.vm and not g.lg
        g.branch('s_branch', 'L_layer')
        g.label('L_last')
        g.vm, g.lg = [], []
        for k in range(10):
            get(X1 + k, aKEEP + k)
        get(16, aOUT)
        for k in range(10):
            g.unpack(UX + 2 * k, UX + 2 * k + 1, X1 + k)
        for k in range(10):
            g(f'v_pk_add_f32 {v(A2 + 2 * k, 2)}, {v(A2 + 2 * k, 2)}, {v(UX + 2 * k, 2)}')
        for k in range(10):
            g(f'v_cvt_pk_bf16_f32 {v(X3 + k)}, {v(A2 + 2 * k)}, {v(A2 + 2 * k + 1)}')
        g(f'v_mov_b64 {v(X3 + 10, 2)}, 0')
        for pr in range(3):
            b = X3 + 4 * pr
            g(f'v_permlane16_swap_b32 {v(b)}, {v(b + 2)}')
            g(f'v_permlane16_swap_b32 {v(b + 1)}, {v(b + 3)}')
            if pr == 2:
                g.setexec(0xffff)
            g(f'buffer_store_dwordx4 {v(b, 4)}, {v(16)}, {s(rOUT, 4)}, 0 offen offset:{64 * pr}')
        g.setexec(-1)
        g.stamp(22)

    def finish(self):
        g = self
        g.label('L_fin')
        g.vm, g.lg = [], []
        if g.opt.stamps:
            g(f's_lshl_b32 {s(T0)}, {s(sWG)}, 2')
            g(f's_add_u32 {s(T0)}, {s(T0)}, {s(sW)}')
            g(f's_lshl_b32 {s(T0)}, {s(T0)}, 8')
            g(f's_add_u32 {s(T0)}, {s(T0)}, {L.STAMP}')
            g('v_accvgpr_read_b32 v6, a255')
            g('v_accvgpr_read_b32 v7, a254')
            g(f'v_lshlrev_b32 v8, 2, {v(vLANE)}')
            g.setexec(0xffffffff)
            g(f'buffer_store_dword v6, v8, {s(rWS, 4)}, {s(T0)} offen offset:128')
            g(f'buffer_store_dword v7, v8, {s(rWS, 4)}, {s(T0)} offen')
            g.setexec(-1)
        g(f's_or_b32 {s(T0)}, {s(sWG)}, {s(sW)}')
        g(f's_cmp_lg_u32 {s(T0)}, 0')
        with g.skip_if('s_cbranch_scc1'):
            g(f's_mov_b32 {s(T0)}, {L.E}')
            g.flag_store(T0)
        g.label('L_end')
        g('s_endpgm')

    def build(self):
        g = self
        g.prologue()
        st = g.state()
        g(f's_cmp_ge_u32 {s(sWG)}, 208')
        g.branch('s_cbranch_scc1', 'L_role_w')
        g(f's_cmp_ge_u32 {s(sWG)}, 144')
        g.branch('s_cbranch_scc1', 'L_role_q')
        g.role_conv()
        g.drain(force=True)
        g.branch('s_branch', 'L_main')
        g.label('L_role_q')
        g.set_state(st)
        g.role_q()
        g.drain(force=True)
        g.branch('s_branch', 'L_main')
        g.label('L_role_w')
        g.set_state(st)
        g.role_w()
        g.drain(force=True)
        g.label('L_main')
        g.main()
        g.finish()


HEADER = '''; Persistent single-launch kernel: H3 long-conv (MFMA Hankel form) + two Hedgehog linear-attention layers.
; @launch grid=(256,1,1) block=(256,1,1) lds={lds}
.amdgcn_target "amdgcn-amd-amdhsa--gfx950"
.text
.globl {name}_kernel
.p2align 8
.type {name}_kernel,@function
{name}_kernel:
'''
FOOTER = '''.section .rodata,"a"
.p2align 6
.amdhsa_kernel {name}_kernel
  .amdhsa_next_free_vgpr 512
  .amdhsa_next_free_sgpr 102
  .amdhsa_accum_offset 256
  .amdhsa_group_segment_fixed_size 0
  .amdhsa_kernarg_size 104
  .amdhsa_user_sgpr_count 2
  .amdhsa_user_sgpr_kernarg_segment_ptr 1
  .amdhsa_system_sgpr_workgroup_id_x 1
  .amdhsa_float_denorm_mode_32 3
.end_amdhsa_kernel
'''


def generate(opt):
    k = K(opt)
    k.build()
    sys.stderr.write(f'instructions {k.stats["n"]} nop-states {k.stats["nop"]} maxv {k.maxv} maxa {k.maxa} maxs {k.maxs}\n')
    return HEADER.format(name=NAME, lds=L.LDS_SIZE) + k.text() + FOOTER.format(name=NAME)


if __name__ == '__main__':
    ap = argparse.ArgumentParser()
    ap.add_argument('-o', default=f'cdna_kernels/{NAME}.s')
    ap.add_argument('--stamps', action='store_true')
    ap.add_argument('--dbg', action='store_true')
    ap.add_argument('--stop', default='')
    opt = ap.parse_args()
    open(opt.o, 'w').write(generate(opt))
```

```python
import re

TRANS = ('v_exp_f32', 'v_log_f32', 'v_rcp_f32', 'v_rsq_f32', 'v_sqrt_f32', 'v_sin_f32', 'v_cos_f32')
RW_DST = ('v_fmac_f32', 'v_dot2c_f32_bf16', 'v_pk_fmac', 'v_writelane_b32', 'v_fmamk', 'v_fmaak')
NO_DST_S = ('s_cmp', 's_bitcmp', 's_waitcnt', 's_barrier', 's_nop', 's_branch', 's_cbranch', 's_endpgm',
            's_setprio', 's_sleep', 's_setpc')


def v(i, n=1):
    return f'v{i}' if n == 1 else f'v[{i}:{i + n - 1}]'


def a(i, n=1):
    return f'a{i}' if n == 1 else f'a[{i}:{i + n - 1}]'


def s(i, n=1):
    return f's{i}' if n == 1 else f's[{i}:{i + n - 1}]'


_reg_re = re.compile(r'^-?\|?(?:abs\()?([vas])(?:(\d+)|\[(\d+):(\d+)\])\)?\|?$')


def regs_of(op):
    op = op.strip()
    if op in ('vcc', 'vcc_lo', 'vcc_hi'):
        return {('s', 'vcc')}
    if op in ('exec', 'exec_lo', 'exec_hi'):
        return {('s', 'exec')}
    if op == 'm0':
        return {('s', 'm0')}
    m = _reg_re.match(op)
    if not m:
        return set()
    k = m.group(1)
    if m.group(2) is not None:
        return {(k, int(m.group(2)))}
    return {(k, i) for i in range(int(m.group(3)), int(m.group(4)) + 1)}


class Ins:
    def __init__(self, text):
        self.text = text
        t = text.strip()
        parts = t.split(None, 1)
        self.op = parts[0]
        rest = parts[1] if len(parts) > 1 else ''
        ops = [x.strip() for x in re.split(r',(?![^\[]*\])', rest)] if rest else []
        mods = ''
        if ops:
            last = ops[-1].split(None, 1)
            ops[-1] = last[0] if last else ''
            mods = last[1] if len(last) > 1 else ''
        self.ops, self.mods = ops, mods
        op = self.op
        self.kind = None
        self.w, self.r = set(), set()
        self.srcA = self.srcB = self.srcC = set()
        self.dpp = ('_dpp' in op) or ('row_' in mods) or ('quad_perm' in mods)
        self.store_data = set()
        self.lds_dma = False
        if op.startswith('v_mfma'):
            self.kind = 'mfma'
            self.w = regs_of(ops[0])
            self.srcA, self.srcB, self.srcC = regs_of(ops[1]), regs_of(ops[2]), regs_of(ops[3])
            self.r = self.srcA | self.srcB | self.srcC
            assert '16x16x32' in op, 'only 4-pass MFMA modelled'
        elif op.startswith('v_'):
            self.kind = 'valu'
            self.w = regs_of(ops[0]) if ops else set()
            for o in ops[1:]:
                self.r |= regs_of(o)
            if op.startswith(('v_swap', 'v_permlane')):
                self.w |= regs_of(ops[1])
                self.r |= regs_of(ops[0])
            if op.startswith(RW_DST) or self.dpp:
                self.r |= regs_of(ops[0])
            if op.startswith('v_cndmask') and len(ops) == 3:
                self.r |= {('s', 'vcc')}
            assert not op.startswith('v_cmpx')
            assert '_co_' not in op
        elif op.startswith(('buffer_', 'global_')):
            self.kind = 'vmem'
            assert op.startswith('buffer_'), 'use buffer ops only'
            if 'lds' in mods.split():
                self.lds_dma = True
                for o in ops:
                    self.r |= regs_of(o)
                self.r |= {('s', 'm0')}
            elif '_load' in op:
                self.w = regs_of(ops[0])
                for o in ops[1:]:
                    self.r |= regs_of(o)
                if 'd16' in op:
                    self.r |= self.w
            else:
                for o in ops:
                    self.r |= regs_of(o)
                if 'x4' in op or 'x3' in op:
                    self.store_data = regs_of(ops[0])
        elif op.startswith('ds_'):
            self.kind = 'ds'
            if op.startswith('ds_read'):
                self.w = regs_of(ops[0])
                self.r = regs_of(ops[1])
                if 'd16' in op:
                    self.r |= self.w
            else:
                for o in ops:
                    self.r |= regs_of(o)
        elif op.startswith(('s_load', 's_memtime', 's_memrealtime')):
            self.kind = 'smem'
            self.w = regs_of(ops[0])
            for o in ops[1:]:
                self.r |= regs_of(o)
        elif op.startswith('s_'):
            self.kind = 'salu'
            if op.startswith(NO_DST_S):
                for o in ops:
                    self.r |= regs_of(o)
                if 'vcc' in op:
                    self.r |= {('s', 'vcc')}
                if 'exec' in op:
                    self.r |= {('s', 'exec')}
            else:
                self.w = regs_of(ops[0])
                for o in ops[1:]:
                    self.r |= regs_of(o)
                if 'saveexec' in op:
                    self.w |= {('s', 'exec')}
                    self.r |= {('s', 'exec')}
                if op.startswith(('s_addk', 's_mulk', 's_cmov')):
                    self.r |= self.w
        else:
            raise ValueError('unknown instruction ' + text)
        self.trans = op.startswith(TRANS)


def need_ws(p, c):
    n = 0
    vw = {x for x in p.w if x[0] in 'va'}
    sw = {x for x in p.w if x[0] == 's'}
    if p.kind == 'valu':
        if c.kind == 'mfma' and vw & c.r:
            n = max(n, 2)
        if c.kind == 'valu':
            if c.op.startswith(('v_readfirstlane', 'v_readlane')) and vw & c.r:
                n = max(n, 1)
            if (c.dpp or c.op.startswith('v_permlane')) and vw & c.r:
                n = max(n, 2)
            if p.trans and not c.trans and vw & c.r:
                n = max(n, 1)
            if sw & c.r:
                n = max(n, 4 if c.op.startswith(('v_readlane', 'v_writelane')) else 2)
        if c.kind == 'mfma' and p.trans and vw & c.r:
            n = max(n, 2)
        if c.kind in ('vmem',) and sw & c.r:
            n = max(n, 5)
        if c.kind in ('salu', 'smem') and sw & c.r:
            n = max(n, 1)
        if p.trans and c.kind in ('vmem', 'ds') and vw & c.r:
            n = max(n, 1)
    elif p.kind == 'mfma':
        if c.kind == 'mfma':
            if p.w & (c.srcA | c.srcB):
                n = max(n, 8)
            if p.w & c.srcC and p.w != c.srcC:
                n = max(n, 6)
            if p.w & c.w and not (p.w == c.w):
                n = max(n, 8)
            if p.w & c.w and p.w == c.w and c.srcC != p.w:
                n = max(n, 8)
        elif c.kind in ('valu', 'vmem', 'ds'):
            if p.w & (c.r | c.w):
                n = max(n, 8)
            if c.kind == 'valu' and p.srcC & c.w:
                n = max(n, 3)
    elif p.kind == 'vmem':
        if p.store_data & c.w:
            n = max(n, 2)
    elif p.kind == 'salu':
        if ('s', 'm0') in p.w and c.kind == 'vmem' and c.lds_dma:
            n = max(n, 1)
    return n


class Gen:
    MAXWS = 8

    def __init__(self):
        self.lines = []
        self.hist = []
        self.vm = []
        self.lg = []
        self.nid = 0
        self.cond_depth = 0
        self.nlabel = 0
        self.maxv = self.maxa = self.maxs = 0
        self.stats = {'nop': 0, 'n': 0}
        self.bg = []
        self.bg_every = 1
        self.bg_cnt = 0
        self.bg_busy = False
        self.exec_full = True

    def raw(self, text):
        self.lines.append(text)

    def comment(self, text):
        self.lines.append('    ; ' + text)

    def _push(self, ins, states=1):
        self.lines.append('    ' + ins.text)
        self.hist.append((ins, states))
        self.hist = self.hist[-12:]
        self.stats['n'] += 1

    def _nop(self, n):
        if n <= 0:
            return
        self.stats['nop'] += n
        self._push(Ins(f's_nop {n - 1}'), n)

    def _wait(self, vm=None, lg=None):
        t = []
        if vm is not None:
            t.append(f'vmcnt({vm})')
        if lg is not None:
            t.append(f'lgkmcnt({lg})')
        self._push(Ins('s_waitcnt ' + ' '.join(t)))

    def _younger(self, q, i):
        return sum(1 for x in q[i + 1:] if not x['maybe'])

    def _der(self, q, i):
        del q[:i + 1]

    def e(self, text):
        ins = Ins(text)
        for k, i in ins.w | ins.r:
            if isinstance(i, int):
                if k == 'v':
                    assert i < 256, text
                    self.maxv = max(self.maxv, i + 1)
                elif k == 'a':
                    assert i < 256, text
                    self.maxa = max(self.maxa, i + 1)
                else:
                    assert i < 102, text
                    self.maxs = max(self.maxs, i + 1)
        touch = ins.r | ins.w
        vmw = lgw = None
        for i in range(len(self.vm) - 1, -1, -1):
            if self.vm[i]['w'] & touch:
                if ins.kind == 'vmem' and not (self.vm[i]['w'] & (ins.r - ins.w)) and not (ins.r & ins.w and 'd16' not in ins.op):
                    continue
                vmw = min(63, self._younger(self.vm, i))
                self._der(self.vm, i)
                break
        for i in range(len(self.lg) - 1, -1, -1):
            if self.lg[i]['w'] & touch:
                if ins.kind == 'ds' and 'd16' in ins.op and not (self.lg[i]['w'] & (ins.r - ins.w)):
                    continue
                if any(x['smem'] for x in self.lg):
                    lgw = 0
                    self.lg = []
                else:
                    lgw = min(15, self._younger(self.lg, i))
                    self._der(self.lg, i)
                break
        if vmw is not None or lgw is not None:
            self._wait(vmw, lgw)
        need, dist = 0, 0
        for p, st in reversed(self.hist):
            n = need_ws(p, ins)
            if n - dist > need:
                need = n - dist
            dist += st
            if dist >= self.MAXWS:
                break
        self._nop(need)
        self._push(ins)
        h = None
        if ins.kind == 'vmem':
            self.nid += 1
            h = self.nid
            self.vm.append(dict(w=set(ins.w), maybe=self.cond_depth > 0, id=h))
        elif ins.kind in ('ds', 'smem'):
            self.nid += 1
            h = self.nid
            self.lg.append(dict(w=set(ins.w), maybe=self.cond_depth > 0, id=h, smem=ins.kind == 'smem'))
        if ('s', 'exec') in ins.w:
            self.exec_full = ins.text.strip() == 's_mov_b64 exec, -1'
        if self.bg and not self.bg_busy and ins.kind in ('valu', 'mfma'):
            self.bg_cnt += 1
            if self.bg_cnt >= self.bg_every and self.exec_full and self.cond_depth == 0:
                self.bg_cnt = 0
                self.bg_busy = True
                self.bg.pop(0)()
                self.bg_busy = False
        return h

    def bg_start(self, items, every, phase=0):
        assert not self.bg
        self.bg, self.bg_every, self.bg_cnt = list(items), every, phase

    def bg_flush(self):
        self.bg_busy = True
        while self.bg:
            self.bg.pop(0)()
        self.bg_busy = False

    def __call__(self, text):
        h = None
        for ln in text.strip().split('\n'):
            ln = ln.split(';')[0].strip()
            if ln:
                h = self.e(ln)
        return h

    def wait_vm(self, h):
        for i, x in enumerate(self.vm):
            if x['id'] == h:
                self._wait(vm=min(63, self._younger(self.vm, i)))
                self._der(self.vm, i)
                return

    def wait_lg(self, h):
        for i, x in enumerate(self.lg):
            if x['id'] == h:
                if any(y['smem'] for y in self.lg):
                    self._wait(lg=0)
                    self.lg = []
                else:
                    self._wait(lg=min(15, self._younger(self.lg, i)))
                    self._der(self.lg, i)
                return

    def drain(self, vm=True, lg=True, force=False):
        a_ = 0 if vm and (self.vm or force) else None
        b_ = 0 if lg and (self.lg or force) else None
        if a_ is not None or b_ is not None:
            self._wait(a_, b_)
        if vm:
            self.vm = []
        if lg:
            self.lg = []

    def barrier(self):
        self.drain(vm=False, lg=True)
        self.e('s_barrier')

    def flush(self):
        need, dist = 0, 0
        for p, st in reversed(self.hist):
            n = {'mfma': 8, 'valu': 2, 'vmem': 2 if p.store_data else 0, 'salu': 1 if ('s', 'm0') in p.w else 0}.get(p.kind, 0)
            if p.kind == 'valu' and any(x[0] == 's' and x[1] != 'vcc' for x in p.w):
                n = 5
            need = max(need, n - dist)
            dist += st
            if dist >= self.MAXWS:
                break
        self._nop(need)

    def newlabel(self, base):
        self.nlabel += 1
        return f'L_{base}_{self.nlabel}'

    def label(self, name):
        self.flush()
        self.lines.append(name + ':')

    def branch(self, op, target):
        self.flush()
        self._push(Ins(f'{op} {target}'))

    class _Cond:
        def __init__(self, g, op, name):
            self.g, self.op, self.name = g, op, name

        def __enter__(self):
            g = self.g
            self.lab = g.newlabel(self.name)
            g.branch(self.op, self.lab)
            self.vm0 = [dict(x) for x in g.vm]
            self.lg0 = [dict(x) for x in g.lg]
            g.cond_depth += 1
            return self

        def __exit__(self, *exc):
            g = self.g
            g.cond_depth -= 1
            ids = {x['id'] for x in self.vm0}
            g.vm = self.vm0 + [x for x in g.vm if x['id'] not in ids]
            ids = {x['id'] for x in self.lg0}
            g.lg = self.lg0 + [x for x in g.lg if x['id'] not in ids]
            g.label(self.lab)
            return False

    def skip_if(self, op, name='skip'):
        return Gen._Cond(self, op, name)

    def state(self):
        return ([dict(x) for x in self.vm], [dict(x) for x in self.lg])

    def set_state(self, st):
        self.vm, self.lg = [dict(x) for x in st[0]], [dict(x) for x in st[1]]
        self.hist = []

    def text(self):
        return '\n'.join(self.lines) + '\n'
```

```python
import sys
import argparse
from asmgen import Gen, v, a, s
import layout as L

NAME = 'interleave_layers__ssm_conv_h3__linear_kernel_hedgehog__prompt'

sWG, sW, sTAG = 2, 3, 4
T0, T1, T2, T3, T4, T5, T6, T7 = 5, 6, 7, 8, 9, 10, 11, 12
pQ, pK, pV, pSH, pSK, pSD, pBX, pWQ = 16, 18, 20, 22, 24, 26, 28, 30
pPH, pWO, pOUT, pDBG, pWS = 32, 34, 36, 38, 40
sCNT, sLAY = 42, 43
rWS, rA, rB, rC, rD, rOUT = 44, 48, 52, 56, 60, 64
sR128, sP, sR64, sCG, sRB, sRB2 = 68, 69, 70, 71, 72, 73
sM0, sM1, sM2, sM3 = 74, 76, 78, 80
sMA, sMB = 82, 84
sXP, sOFB, sKV1, sKV2, sFO = 86, 87, 88, 89, 90
sBL, sBG = 91, 92
sSTP = 98
vTID, vLANE, vI, vG, vL16, vTAG = 0, 1, 2, 3, 4, 5
POLL_LIMIT = 40000
MASKHI = '0xffff0000'


class K(Gen):
    def __init__(self, opt):
        super().__init__()
        self.opt = opt
        self.nstamp = 0
        self.last_flag = None

    def srd(self, r, ptr, size):
        self(f's_mov_b64 {s(r, 2)}, {s(ptr, 2)}')
        self(f's_mov_b32 {s(r + 2)}, {size}')
        self(f's_mov_b32 {s(r + 3)}, 0x20000')

    def stamp(self, k, cyc=False):
        if not self.opt.stamps:
            return
        self(f's_memtime {s(sSTP, 2)}' if cyc else f's_memrealtime {s(sSTP, 2)}')
        self.drain(vm=False)
        self(f'v_accvgpr_read_b32 v{self.vtmp_stamp}, a255')
        self(f'v_writelane_b32 v{self.vtmp_stamp}, {s(sSTP)}, {k}')
        self(f'v_accvgpr_write_b32 a255, v{self.vtmp_stamp}')

    vtmp_stamp = 47

    def unpack(self, dlo, dhi, src):
        self(f'v_lshlrev_b32 {v(dlo)}, 16, {v(src)}')
        self(f'v_and_b32 {v(dhi)}, {MASKHI}, {v(src)}')

    def make_tag(self):
        self(f'v_readfirstlane_b32 {s(sTAG)}, {v(vTAG)}')
        self(f's_mul_i32 {s(sTAG)}, {s(sTAG)}, {hex(L.TAGA)}')
        self(f's_add_u32 {s(sTAG)}, {s(sTAG)}, {hex(L.TAGC)}')
        self(f'v_mov_b32 {v(vTAG)}, {s(sTAG)}')

    def setexec(self, m):
        if isinstance(m, int):
            m &= (1 << 64) - 1
            lo, hi = m & 0xffffffff, m >> 32
            if m == (1 << 64) - 1:
                self('s_mov_b64 exec, -1')
            elif hi == 0 and lo <= 64:
                self(f's_mov_b64 exec, {lo}')
            else:
                self(f's_mov_b32 exec_lo, {hex(lo)}')
                self(f's_mov_b32 exec_hi, {hex(hi)}')
        else:
            self(f's_mov_b64 exec, {m}')

    def flag_store(self, soff):
        self.setexec(15)
        h = self(f'buffer_store_dwordx4 {v(vTAG - 3, 4)}, {v(vL16)}, {s(rWS, 4)}, {s(soff)} offen sc1')
        self.setexec(-1)
        self.last_flag = h
        return h

    def poll(self, loads, mask, code):
        lp, done = self.newlabel('poll'), self.newlabel('polld')
        if self.opt.prewait:
            self.wait_vm(self.last_flag)
        self.setexec(mask)
        self(f's_mov_b32 {s(sCNT)}, {POLL_LIMIT}')
        self.label(lp)
        for dst, n, voff, soff, imm in loads:
            op = {1: 'buffer_load_dword', 4: 'buffer_load_dwordx4'}[n]
            imm += 12 if n == 1 else 0
            off = f' offset:{imm}' if imm else ''
            self(f'{op} {v(dst, n)}, {v(voff)}, {s(rWS, 4)}, {soff} offen{off} sc1')
        self.drain(lg=False)
        dst, n = loads[0][:2]
        self(f'v_cmp_ne_u32 vcc, {s(sTAG)}, {v(dst + n - 1)}')
        for dst, n, *_ in loads[1:]:
            self(f'v_cmp_ne_u32 {s(sMA, 2)}, {s(sTAG)}, {v(dst + n - 1)}')
            self(f's_or_b64 vcc, vcc, {s(sMA, 2)}')
        self.branch('s_cbranch_vccz', done)
        self('s_mov_b64 exec, vcc')
        self(f's_sub_u32 {s(sCNT)}, {s(sCNT)}, 1')
        self.branch('s_cbranch_scc0', lp)
        if self.opt.dbg:
            self.srd(rD, pDBG, 256)
            self(f'v_mov_b32 v{self.vtmp_stamp}, {code + 1}')
            self(f'buffer_store_dword v{self.vtmp_stamp}, off, {s(rD, 4)}, 0 offset:{4 * code}')
            self.drain(lg=False)
        self.label(done)
        self.setexec(-1)

    def dma(self, lds_base_s, soff_s, n, voff=vL16, srd=rWS, sc1=True):
        h = None
        for i in range(n):
            if i % 4 == 0:
                if i:
                    self(f's_add_u32 {s(lds_base_s)}, {s(lds_base_s)}, 4096')
                    self(f's_add_u32 {s(soff_s)}, {s(soff_s)}, 4096')
                self(f's_mov_b32 m0, {s(lds_base_s)}')
            off = f' offset:{(i % 4) * 1024}' if i % 4 else ''
            h = self(f'buffer_load_dwordx4 {v(voff)}, {s(srd, 4)}, {s(soff_s)} offen{off}{" sc1" if sc1 else ""} lds')
        return h

    def dma_items(self, n, voff=vL16, srd=rWS, sc1=True, stride=4096):
        def item(i):
            def f():
                if i % 4 == 0:
                    self(f's_mov_b32 m0, {s(sBL)}')
                off = f' offset:{(i % 4) * 1024}' if i % 4 else ''
                self.last_dma = self(f'buffer_load_dwordx4 {v(voff)}, {s(srd, 4)}, {s(sBG)} offen{off}{" sc1" if sc1 else ""} lds')
                if i % 4 == 3:
                    self(f's_add_u32 {s(sBL)}, {s(sBL)}, {stride}')
                    self(f's_add_u32 {s(sBG)}, {s(sBG)}, {stride}')
            return f
        return [item(i) for i in range(n)]

    def poll_issue(self, dst, voff, soff, mask):
        self.setexec(mask)
        self(f'buffer_load_dword {v(dst)}, {v(voff)}, {s(rWS, 4)}, {soff} offen offset:12 sc1')
        self.setexec(-1)

    def poll_finish(self, dst, voff, soff, mask, code):
        self.setexec(mask)
        self(f'v_cmp_ne_u32 vcc, {s(sTAG)}, {v(dst)}')
        self.setexec(-1)
        with self.skip_if('s_cbranch_vccz'):
            d = self.cond_depth
            self.poll([(dst, 1, voff, soff, 0)], mask, code)

    def xg_sum2(self, x, y, t):
        self(f'v_permlane16_swap_b32 {v(x)}, {v(y)}')
        self(f'v_add_f32 {v(x)}, {v(x)}, {v(y)}')
        self(f'v_mov_b32 {v(y)}, {v(x)}')
        self(f'v_permlane32_swap_b32 {v(x)}, {v(y)}')
        self(f'v_add_f32 {v(x)}, {v(x)}, {v(y)}')
        self(f'v_mov_b32 {v(y)}, {v(x)}')
        self(f'v_permlane16_swap_b32 {v(x)}, {v(y)}')

    def mfma(self, d, A, B, c):
        self(f'v_mfma_f32_16x16x32_bf16 {d}, {A}, {B}, {c}')

    def prologue(self):
        g = self
        g(f's_cmp_ge_u32 {s(sWG)}, 256')
        g.branch('s_cbranch_scc1', 'L_end')
        g(f's_load_dwordx16 {s(16, 16)}, s[0:1], 0')
        g(f's_load_dwordx8 {s(32, 8)}, s[0:1], 64')
        g(f's_load_dwordx2 {s(40, 2)}, s[0:1], 96')
        g(f'v_lshrrev_b32 v6, 6, {v(vTID)}')
        g(f'v_and_b32 {v(vLANE)}, 63, {v(vTID)}')
        g(f'v_readfirstlane_b32 {s(sW)}, v6')
        g(f'v_and_b32 {v(vI)}, 15, {v(vTID)}')
        g(f'v_lshrrev_b32 {v(vG)}, 4, {v(vLANE)}')
        g(f'v_lshlrev_b32 {v(vL16)}, 4, {v(vLANE)}')
        if g.opt.stamps:
            g('v_accvgpr_write_b32 a255, 0')
        g.srd(rWS, pWS, L.WSSZ)
        g(f'buffer_load_dword {v(vTAG)}, off, {s(rWS, 4)}, 0 offset:12 sc1')
        g.stamp(0)
        g.stamp(30, True)
        g(f's_and_b32 {s(T0)}, {s(sWG)}, 7')
        g(f's_lshr_b32 {s(T1)}, {s(sWG)}, 7')
        g(f's_lshl_b32 {s(T0)}, {s(T0)}, 1')
        g(f's_add_u32 {s(sR128)}, {s(T0)}, {s(T1)}')
        g(f's_bfe_u32 {s(sP)}, {s(sWG)}, 0x40003')
        g(f's_lshr_b32 {s(T0)}, {s(sP)}, 3')
        g(f's_lshl_b32 {s(sR64)}, {s(sR128)}, 1')
        g(f's_add_u32 {s(sR64)}, {s(sR64)}, {s(T0)}')
        g(f's_and_b32 {s(sCG)}, {s(sP)}, 7')
        g(f's_lshl_b32 {s(sRB)}, {s(sR128)}, 2')
        g(f's_add_u32 {s(sRB)}, {s(sRB)}, {s(sW)}')
        g(f's_lshr_b32 {s(T0)}, {s(sW)}, 1')
        g(f's_lshl_b32 {s(sRB2)}, {s(sR64)}, 1')
        g(f's_add_u32 {s(sRB2)}, {s(sRB2)}, {s(T0)}')
        g.srd(rOUT, pOUT, L.ARR)

    def role_conv(self):
        g = self
        vOK, vOA, vO2 = 6, 7, 48
        RK, RV, RW = 8, 30, 50
        UK, UW, UV, KS, OUT = 58, 102, 118, 150, 156
        sGam, sMu, sCh, sLB = T4, T5, T6, T7
        g.srd(rA, pK, L.ARR)
        g.srd(rB, pV, L.ARR)
        g.srd(rD, pSH, 576 * 8)
        g(f's_lshr_b32 {s(sGam)}, {s(sWG)}, 4')
        g(f's_and_b32 {s(sMu)}, {s(sWG)}, 15')
        g(f's_lshl_b32 {s(T0)}, {s(sMu)}, 7')
        g(f's_lshl_b32 {s(T1)}, {s(sW)}, 5')
        g(f's_add_u32 {s(T0)}, {s(T0)}, {s(T1)}')
        g(f's_mul_i32 {s(T1)}, {s(T0)}, 1152')
        g(f's_lshl_b32 {s(T2)}, {s(sGam)}, 7')
        g(f's_add_u32 {s(T1)}, {s(T1)}, {s(T2)}')
        g(f'v_mul_u32_u24 {v(vOK)}, 9216, {v(vG)}')
        g(f'v_lshl_add_u32 {v(vOK)}, {v(vI)}, 3, {v(vOK)}')
        g(f'v_add_u32 {v(vOK)}, {s(T1)}, {v(vOK)}')
        g(f'v_subrev_u32 {v(vOA)}, 3456, {v(vOK)}')
        g(f's_lshl_b32 {s(T2)}, {s(sGam)}, 9')
        g(f'v_lshlrev_b32 {v(vO2)}, 5, {v(vI)}')
        g(f's_movk_i32 {s(T3)}, 4608')
        g(f'buffer_load_dwordx4 {v(RW, 4)}, {v(vO2)}, {s(rD, 4)}, {s(T2)} offen')
        g(f'buffer_load_dwordx4 {v(RW + 4, 4)}, {v(vO2)}, {s(rD, 4)}, {s(T2)} offen offset:16')
        for j in range(11):
            if j < 3:
                g(f'buffer_load_dwordx2 {v(RK + 2 * j, 2)}, {v(vOA)}, {s(rA, 4)}, 0 offen offset:{1152 * j}')
            else:
                jj = j - 3
                so = '0' if jj < 4 else s(T3)
                g(f'buffer_load_dwordx2 {v(RK + 2 * j, 2)}, {v(vOK)}, {s(rA, 4)}, {so} offen offset:{1152 * (jj % 4)}')
        for j in range(8):
            so = '0' if j < 4 else s(T3)
            g(f'buffer_load_dwordx2 {v(RV + 2 * j, 2)}, {v(vOK)}, {s(rB, 4)}, {so} offen offset:{1152 * (j % 4)}')
        vK0, vDv, vS2 = 46, 172, 49
        g.srd(rC, pSK, L.ARR)
        g(f's_lshl_b32 {s(sCh)}, {s(sWG)}, 2')
        g(f's_add_u32 {s(sCh)}, {s(sCh)}, {s(sW)}')
        g(f's_mul_i32 {s(sLB)}, {s(sW)}, {L.CONVW}')
        g(f's_add_u32 {s(sLB)}, {s(sLB)}, {L.L_CONV}')
        g(f's_lshl_b32 {s(T2)}, {s(sCh)}, 12')
        g(f'v_lshlrev_b32 {v(vS2)}, 6, {v(vLANE)}')
        g(f'buffer_load_ushort {v(vK0)}, {v(vS2)}, {s(rC, 4)}, {s(T2)} offen')
        g.srd(rD, pSD, 1152)
        g(f's_lshl_b32 {s(T2)}, {s(sCh)}, 1')
        g(f'buffer_load_ushort {v(vDv)}, off, {s(rD, 4)}, {s(T2)}')
        vOU = vOA
        g(f's_lshl_b32 {s(T2)}, {s(sGam)}, 18')
        g(f's_lshl_b32 {s(T0)}, {s(T0)}, 1')
        g(f's_sub_u32 {s(T2)}, {s(T2)}, {s(T0)}')
        g(f's_add_u32 {s(T2)}, {s(T2)}, {L.UR + 4080}')
        g(f'v_lshlrev_b32 {v(vOU)}, 14, {v(vI)}')
        g(f'v_lshlrev_b32 {v(vO2)}, 4, {v(vG)}')
        g(f'v_sub_u32 {v(vOU)}, {v(vOU)}, {v(vO2)}')
        g(f'v_add_u32 {v(vOU)}, {s(T2)}, {v(vOU)}')
        for cc in range(4):
            for dd in range(2):
                b = UW + 8 * (cc >> 1) + (cc & 1)
                g.unpack(b + 4 * dd, b + 4 * dd + 2, RW + 2 * cc + dd)
        g.stamp(1)
        for j in range(11):
            for P in range(2):
                g.unpack(UK + 4 * j + 2 * P, UK + 4 * j + 2 * P + 1, RK + 2 * j + P)
        for j in range(8):
            for P in range(2):
                g.unpack(UV + 4 * j + 2 * P, UV + 4 * j + 2 * P + 1, RV + 2 * j + P)
            for P in range(2):
                g(f'v_pk_mul_f32 {v(KS + 2 * P, 2)}, {v(UK + 4 * (j + 3) + 2 * P, 2)}, {v(UW + 8 * P, 2)}')
            for aa in range(1, 4):
                for P in range(2):
                    g(f'v_pk_fma_f32 {v(KS + 2 * P, 2)}, {v(UK + 4 * (j + 3 - aa) + 2 * P, 2)}, {v(UW + 8 * P + 2 * aa, 2)}, {v(KS + 2 * P, 2)}')
            for P in range(2):
                g(f'v_pk_mul_f32 {v(UV + 4 * j + 2 * P, 2)}, {v(UV + 4 * j + 2 * P, 2)}, {v(KS + 2 * P, 2)}')
        for cc in range(4):
            for d in range(4):
                g(f'v_cvt_pk_bf16_f32 {v(OUT + 4 * cc + d)}, {v(UV + 4 * (7 - 2 * d) + cc)}, {v(UV + 4 * (6 - 2 * d) + cc)}')
            g(f's_movk_i32 {s(T2)}, {4096 * cc}')
            g(f'buffer_store_dwordx4 {v(OUT + 4 * cc, 4)}, {v(vOU)}, {s(rWS, 4)}, {s(T2)} offen sc1')
        g.make_tag()
        g(f's_lshl_b32 {s(T3)}, {s(sCh)}, 7')
        g(f's_add_u32 {s(T3)}, {s(T3)}, {L.FT}')
        g(f'v_add_u32 {v(vS2)}, 2, {v(vL16)}')
        g(f'v_readfirstlane_b32 {s(T1)}, {v(vK0)}')
        g.drain(lg=False)
        g.flag_store(T3)
        g.stamp(2)
        g(f's_lshl_b32 {s(T2)}, {s(sCh)}, 12')
        g(f's_add_u32 {s(T3)}, {s(sLB)}, {4608 + 32}')
        g.dma(T3, T2, 4, srd=rC, sc1=False)
        g(f's_add_u32 {s(T3)}, {s(sLB)}, {4608 + 4160 + 32}')
        hK = g.dma(T3, T2, 4, voff=vS2, srd=rC, sc1=False)
        g(f'v_mov_b32 {v(vK0)}, {s(T1)}')
        vT, vZ, vUB, vKA = 6, 8, 10, 12
        g(f'v_mov_b64 {v(vZ, 2)}, 0')
        g(f'v_lshl_add_u32 {v(vT)}, {v(vLANE)}, 3, {s(sLB)}')
        g(f'ds_write_b64 {v(vT)}, {v(vZ, 2)} offset:4096')
        g(f'v_and_b32 {v(vT)}, 7, {v(vLANE)}')
        g(f'v_lshrrev_b32 {v(vT + 1)}, 3, {v(vLANE)}')
        g(f'v_mul_u32_u24 {v(vT + 1)}, 4160, {v(vT + 1)}')
        g(f'v_lshl_add_u32 {v(vT)}, {v(vT)}, 2, {v(vT + 1)}')
        g(f'v_add_u32 {v(vT)}, {s(sLB)}, {v(vT)}')
        g(f'v_lshlrev_b32 {v(vK0)}, 16, {v(vK0)}')
        g(f'v_cmp_eq_u32 vcc, 15, {v(vLANE)}')
        g(f'v_cndmask_b32 {v(vK0)}, 0, {v(vK0)}, vcc')
        g.setexec(0xffff)
        g(f'ds_write_b32 {v(vT)}, {v(vK0)} offset:4608')
        g.setexec(-1)
        g(f'v_lshlrev_b32 {v(vT)}, 5, {v(vI)}')
        g(f'v_lshlrev_b32 {v(vT + 1)}, 4, {v(vG)}')
        g(f'v_sub_u32 {v(vUB)}, {v(vT + 1)}, {v(vT)}')
        g(f's_add_u32 {s(T2)}, {s(sLB)}, 480')
        g(f'v_add_u32 {v(vUB)}, {s(T2)}, {v(vUB)}')
        g(f'v_and_b32 {v(vT)}, 1, {v(vI)}')
        g(f'v_cmp_eq_u32 vcc, 1, {v(vT)}')
        g(f'v_mov_b32 {v(vKA + 1)}, 4160')
        g(f'v_cndmask_b32 {v(vKA)}, {v(vKA + 1)}, 2, vcc' if False else f'v_mov_b32 {v(vKA + 2)}, 2')
        g(f'v_cndmask_b32 {v(vKA)}, {v(vKA + 1)}, {v(vKA + 2)}, vcc')
        g(f'v_lshl_add_u32 {v(vKA)}, {v(vI)}, 1, {v(vKA)}')
        g(f'v_add_u32 {v(vKA)}, {v(vT + 1)}, {v(vKA)}')
        g(f's_add_u32 {s(T2)}, {s(sLB)}, 4608')
        g(f'v_add_u32 {v(vKA)}, {s(T2)}, {v(vKA)}')
        for b in range(1, 4):
            g(f'v_add_u32 {v(vKA + b)}, {1024 * b}, {v(vKA)}')

        def rdA(e, dst):
            b, ee = e >> 4, e & 15
            g(f'ds_read2_b32 {a(dst, 2)}, {v(vKA + b)} offset0:{16 * ee} offset1:{16 * ee + 1}')
            g(f'ds_read2_b32 {a(dst + 2, 2)}, {v(vKA + b)} offset0:{16 * ee + 2} offset1:{16 * ee + 3}')

        def rdB(m, rho, dst):
            g(f'ds_read_b128 {a(dst, 4)}, {v(vUB)} offset:{3584 - 512 * m + 64 * rho}')

        AS = lambda rho, aa: 64 * (rho & 1) + 4 * aa
        BS = lambda rho, m: 64 * (rho & 1) + 32 + 4 * m
        vAD = 16
        g(f'v_lshlrev_b32 {v(vT)}, 3, {v(vG)}')
        g(f'v_add_u32 {v(vT)}, {v(vT)}, {v(vI)}')
        g(f'v_sub_u32 {v(vT)}, 15, {v(vT)}')
        g(f'v_lshlrev_b32 {v(vT + 1)}, 16, {v(vDv)}')
        for d in range(4):
            g(f'v_cmp_eq_u32 vcc, {2 * d}, {v(vT)}')
            g(f'v_cndmask_b32 {v(vAD + d)}, 0, {v(vDv)}, vcc')
            g(f'v_cmp_eq_u32 vcc, {2 * d + 1}, {v(vT)}')
            g(f'v_cndmask_b32 {v(vAD + d)}, {v(vAD + d)}, {v(vT + 1)}, vcc')
        vF, vFO = 20, 21
        g(f'v_lshlrev_b32 {v(vFO)}, 7, {v(vLANE)}')
        g(f's_lshl_b32 {s(T2)}, {s(sGam)}, 13')
        g(f's_add_u32 {s(T2)}, {s(T2)}, {L.FT}')
        g.poll([(vF, 1, vFO, s(T2), 0)], -1, 0)
        g.stamp(3)
        g(f's_lshl_b32 {s(T2)}, {s(sCh)}, 12')
        g(f's_add_u32 {s(T2)}, {s(T2)}, {L.UR}')
        g(f's_mov_b32 {s(T3)}, {s(sLB)}')
        g.dma(T3, T2, 4)
        for aa in range(8):
            rdA(8 * aa, AS(0, aa))
        vPO, vYW, vYR = 22, 23, 24
        g(f's_mul_i32 {s(T2)}, {s(sW)}, {16 * 36864}')
        g(f's_lshl_b32 {s(T3)}, {s(sWG)}, 8')
        g(f's_add_u32 {s(T2)}, {s(T2)}, {s(T3)}')
        g(f'v_mul_u32_u24 {v(vPO)}, {2 * 36864}, {v(vG)}')
        g(f'v_lshl_add_u32 {v(vPO)}, {v(vI)}, 4, {v(vPO)}')
        g(f'v_add_u32 {v(vPO)}, {s(T2)}, {v(vPO)}')
        g(f'v_lshlrev_b32 {v(vYW)}, 5, {v(vI)}')
        g(f'v_lshl_add_u32 {v(vYW)}, {v(vG)}, 3, {v(vYW)}')
        g(f'v_add_u32 {v(vYW)}, {s(sLB)}, {v(vYW)}')
        g(f'v_bfe_u32 {v(vT)}, {v(vLANE)}, 2, 2')
        g(f'v_mul_u32_u24 {v(vYR)}, {L.CONVW}, {v(vT)}')
        g(f'v_and_b32 {v(vT)}, 3, {v(vLANE)}')
        g(f'v_lshl_add_u32 {v(vYR)}, {v(vT)}, 3, {v(vYR)}')
        g(f'v_lshl_add_u32 {v(vYR)}, {v(vG)}, 7, {v(vYR)}')
        g(f's_lshl_b32 {s(T2)}, {s(sW)}, 10')
        g(f's_add_u32 {s(T2)}, {s(T2)}, {L.L_CONV}')
        g(f'v_add_u32 {v(vYR)}, {s(T2)}, {v(vYR)}')
        g(f'v_lshlrev_b32 {v(vFO)}, 7, {v(vI)}')
        g(f's_lshl_b32 {s(T0)}, {s(sW)}, 11')
        g(f's_add_u32 {s(T0)}, {s(T0)}, {L.FQ}')
        vFW = 25
        g(f'v_lshlrev_b32 {v(vFW)}, 11, {v(vLANE)}')
        g(f's_lshl_b32 {s(T1)}, {s(sP)}, 7')
        g(f's_add_u32 {s(T1)}, {s(T1)}, {L.FW}')
        g.w_dma_setup()
        g.drain(lg=False)
        g.stamp(4)
        ACC = 32
        X0, N0 = 64, 80
        for m in range(8):
            rdB(m, 0, BS(0, m))
        for q in range(8):
            g.mfma(v(ACC + 4 * q, 4), v(vAD, 4), a(BS(0, q), 4), '0')
        for rho in range(8):
            nxt = []
            if rho < 7:
                for i in range(8):
                    nxt.append(lambda i=i: rdB(i, rho + 1, BS(rho + 1, i)))
                    nxt.append(lambda i=i: rdA(rho + 1 + 8 * i, AS(rho + 1, i)))
            if rho == 3:
                g.poll_issue(vF, vFO, s(T0), 0xffff)
            if rho == 6:
                g.poll_issue(vF, vFW, s(T1), 7)
            if rho == 5:
                g.poll_finish(vF, vFO, s(T0), 0xffff, 1)
                for j in range(4):
                    o = (8 * (j >> 1) + (j & 1)) * 36864
                    g(f's_mov_b32 {s(T2)}, {L.X0P + o}')
                    g(f'buffer_load_dwordx4 {v(X0 + 4 * j, 4)}, {v(vPO)}, {s(rWS, 4)}, {s(T2)} offen sc1')
                    g(f's_mov_b32 {s(T2)}, {L.N0P + o}')
                    g(f'buffer_load_dwordx4 {v(N0 + 4 * j, 4)}, {v(vPO)}, {s(rWS, 4)}, {s(T2)} offen sc1')
            n = 0
            for aa in range(8):
                for q in range(aa, 8):
                    g.mfma(v(ACC + 4 * q, 4), a(AS(rho, aa), 4), a(BS(rho, q - aa), 4), v(ACC + 4 * q, 4))
                    if n % 2 == 0 and nxt:
                        nxt.pop(0)()
                    n += 1
            assert not nxt
        g.stamp(5)
        g.poll_finish(vF, vFW, s(T1), 7, 2)
        items = g.dma_items(16, stride=16384)
        g.bg_start(items[:8], 18)
        YP_, YG, TMP, XO = 96, 112, 128, 152
        for q in range(8):
            g(f'v_cvt_pk_bf16_f32 {v(YP_ + 2 * q)}, {v(ACC + 4 * q)}, {v(ACC + 4 * q + 1)}')
            g(f'v_cvt_pk_bf16_f32 {v(YP_ + 2 * q + 1)}, {v(ACC + 4 * q + 2)}, {v(ACC + 4 * q + 3)}')
            g(f'ds_write_b64 {v(vYW)}, {v(YP_ + 2 * q, 2)} offset:{512 * q}')
        U2 = 176
        for j in range(4):
            for d in range(4):
                t = U2 + 16 * j + 4 * d
                if j < 2:
                    g.unpack(t, t + 1, N0 + 4 * j + d)
                    g.unpack(t + 2, t + 3, X0 + 4 * j + d)
        g.barrier()
        for j in range(4):
            o = (8 * (j >> 1) + (j & 1)) * 64
            g(f'ds_read_b64_tr_b16 {v(YG + 4 * j, 2)}, {v(vYR)} offset:{o}')
            g(f'ds_read_b64_tr_b16 {v(YG + 4 * j + 2, 2)}, {v(vYR)} offset:{o + 32}')
        for j in range(2, 4):
            for d in range(4):
                t = U2 + 16 * j + 4 * d
                g.unpack(t, t + 1, N0 + 4 * j + d)
                g.unpack(t + 2, t + 3, X0 + 4 * j + d)
        for j in range(4):
            o = (8 * (j >> 1) + (j & 1)) * 36864
            for d in range(4):
                g.unpack(TMP + 2 * d, TMP + 2 * d + 1, YG + 4 * j + d)
            for d in range(4):
                t = U2 + 16 * j + 4 * d
                g(f'v_pk_fma_f32 {v(t, 2)}, {v(TMP + 2 * d, 2)}, {v(t, 2)}, {v(t + 2, 2)}')
            for d in range(4):
                t = U2 + 16 * j + 4 * d
                g(f'v_cvt_pk_bf16_f32 {v(XO + 4 * j + d)}, {v(t)}, {v(t + 1)}')
            g(f's_mov_b32 {s(T2)}, {L.X1P + o}')
            hx = g(f'buffer_store_dwordx4 {v(XO + 4 * j, 4)}, {v(vPO)}, {s(rWS, 4)}, {s(T2)} offen sc1')
        g.bg_flush()
        for it in items[8:]:
            it()
        g(f's_mul_i32 {s(T3)}, {s(sW)}, 144')
        g(f's_add_u32 {s(T3)}, {s(T3)}, {s(sWG)}')
        g(f's_lshl_b32 {s(T3)}, {s(T3)}, 7')
        g(f's_add_u32 {s(T3)}, {s(T3)}, {L.FC}')
        g.wait_vm(hx)
        g.flag_store(T3)
        g.stamp(6)
        for j in range(4):
            o = (8 * (j >> 1) + (j & 1)) * 36864
            g(f's_mov_b32 {s(T2)}, {L.YP + o}')
            g(f'buffer_store_dwordx4 {v(YG + 4 * j, 4)}, {v(vPO)}, {s(rWS, 4)}, {s(T2)} offen sc1')
        g.barrier()

    def wperm(self, d, t):
        g = self
        g(f'v_and_b32 {v(t)}, 3, {v(vI)}')
        g(f'v_lshlrev_b32 {v(d)}, 8, {v(vG)}')
        g(f'v_lshl_add_u32 {v(d)}, {v(t)}, 6, {v(d)}')
        g(f'v_lshrrev_b32 {v(t)}, 2, {v(vI)}')
        g(f'v_lshl_add_u32 {v(d)}, {v(t)}, 4, {v(d)}')

    def w_dma_setup(self):
        g = self
        g(f's_lshl_b32 {s(sBL)}, {s(sW)}, 12')
        g(f's_mul_i32 {s(sBG)}, {s(sP)}, {L.WPSZ}')
        g(f's_add_u32 {s(sBG)}, {s(sBG)}, {s(sBL)}')
        g(f's_add_u32 {s(sBG)}, {s(sBG)}, {L.WP}')

    def w_first_half(self):
        g = self
        vT = 6
        g(f'v_lshlrev_b32 {v(vT)}, 11, {v(vLANE)}')
        g(f's_lshl_b32 {s(T0)}, {s(sP)}, 7')
        g(f's_add_u32 {s(T0)}, {s(T0)}, {L.FW}')
        g.w_dma_setup()
        g.poll([(vT + 1, 1, vT, s(T0), 0)], 7, 2)
        for it in g.dma_items(16, stride=16384):
            it()

    def role_q(self):
        g = self
        sJ = T7
        vO, vT = 6, 8
        R = 16
        g.srd(rA, pQ, L.ARR)
        g.srd(rB, pWO, 576 * 1152)
        g(f's_sub_u32 {s(sJ)}, {s(sWG)}, 144')
        g(f's_mul_i32 {s(T0)}, {s(sJ)}, {32 * 1152}')
        g(f's_lshl_b32 {s(T1)}, {s(sW)}, 6')
        g(f's_add_u32 {s(T0)}, {s(T0)}, {s(T1)}')
        g(f'v_mul_u32_u24 {v(vO)}, 1152, {v(vI)}')
        g(f'v_lshl_add_u32 {v(vO)}, {v(vG)}, 4, {v(vO)}')
        g(f'v_add_u32 {v(vO)}, {s(T0)}, {v(vO)}')
        g(f's_cmp_lt_u32 {s(sW)}, 2')
        g(f's_cselect_b32 {s(T2)}, 0, 0x40000000')
        g(f'v_add_u32 {v(vO + 1)}, {s(T2)}, {v(vO)}')
        g(f's_movk_i32 {s(T3)}, {16 * 1152}')
        for aa in range(5):
            vo = vO + (aa == 4)
            g(f'buffer_load_dwordx4 {v(R + 8 * aa, 4)}, {v(vo)}, {s(rA, 4)}, 0 offen offset:{256 * aa}')
            g(f'buffer_load_dwordx4 {v(R + 8 * aa + 4, 4)}, {v(vo)}, {s(rA, 4)}, {s(T3)} offen offset:{256 * aa}')
        sPp, sCq = T5, T6
        g(f's_and_b32 {s(sPp)}, {s(sJ)}, 15')
        g(f's_lshr_b32 {s(sCq)}, {s(sJ)}, 4')
        g(f's_mul_i32 {s(T0)}, {s(sPp)}, {36 * 1152}')
        g(f's_mul_i32 {s(T1)}, {s(sCq)}, 288')
        g(f's_add_u32 {s(T0)}, {s(T0)}, {s(T1)}')
        g(f's_mul_i32 {s(T1)}, {s(sW)}, 192')
        for i in range(3):
            g(f'v_add_u32 {v(vT)}, {s(T1)}, {v(vLANE)}')
            if i:
                g(f'v_add_u32 {v(vT)}, {64 * i}, {v(vT)}')
            g(f'v_mul_u32_u24 {v(vT + 1)}, 3641, {v(vT)}')
            g(f'v_lshrrev_b32 {v(vT + 1)}, 16, {v(vT + 1)}')
            g(f'v_mul_u32_u24 {v(vT + 1)}, {1152 - 288}, {v(vT + 1)}')
            g(f'v_lshl_add_u32 {v(vT)}, {v(vT)}, 4, {v(vT + 1)}')
            g(f's_lshl_b32 {s(T2)}, {s(T1)}, 4')
            g(f's_add_u32 {s(T2)}, {s(T2)}, {1024 * i}')
            g(f's_mov_b32 m0, {s(T2)}')
            g(f'buffer_load_dwordx4 {v(vT)}, {s(rB, 4)}, {s(T0)} offen lds')
        S_ = 56
        g(f'v_mov_b64 {v(S_, 2)}, 0')
        g(f'v_mov_b64 {v(S_ + 2, 2)}, 0')
        g(f's_mov_b32 {s(T2)}, 0x3f803f80')
        for aa in range(5):
            for hh in range(2):
                for d in range(4):
                    r = R + 8 * aa + 4 * hh + d
                    g(f'v_dot2c_f32_bf16 {v(S_ + 2 * hh)}, {s(T2)}, {v(r)}')
                    g(f'v_dot2c_f32_bf16 {v(S_ + 2 * hh + 1)}, {v(r)}, {v(r)}')
        g('s_nop 2')
        g.xg_sum2(S_, S_ + 1, vT)
        g.xg_sum2(S_ + 2, S_ + 3, vT)
        LS = 16384
        g(f's_lshl_b32 {s(T2)}, {s(sW)}, 8')
        g(f'v_lshl_add_u32 {v(vT)}, {v(vI)}, 4, {s(T2)}')
        g(f'ds_write_b128 {v(vT)}, {v(S_, 4)} offset:{LS}')
        g.make_tag()
        g.barrier()
        g(f'v_lshlrev_b32 {v(vT)}, 4, {v(vI)}')
        P_ = 60
        for w in range(4):
            g(f'ds_read_b128 {v(P_ + 4 * w, 4)}, {v(vT)} offset:{LS + 256 * w}')
        for h2 in range(2):
            g(f'v_pk_add_f32 {v(P_ + 2 * h2, 2)}, {v(P_ + 2 * h2, 2)}, {v(P_ + 4 + 2 * h2, 2)}')
            g(f'v_pk_add_f32 {v(P_ + 8 + 2 * h2, 2)}, {v(P_ + 8 + 2 * h2, 2)}, {v(P_ + 12 + 2 * h2, 2)}')
            g(f'v_pk_add_f32 {v(P_ + 2 * h2, 2)}, {v(P_ + 2 * h2, 2)}, {v(P_ + 8 + 2 * h2, 2)}')
        RS = 76
        for hh in range(2):
            self.ln_coef(P_ + 2 * hh, P_ + 2 * hh + 1, RS + 4 * hh, RS + 4 * hh + 2)
        g(f's_mul_i32 {s(T0)}, {s(sJ)}, 36864')
        g(f's_lshl_b32 {s(T1)}, {s(sW)}, 11')
        g(f's_add_u32 {s(T0)}, {s(T0)}, {s(T1)}')
        g(f'v_lshlrev_b32 {v(vO)}, 9, {v(vG)}')
        g(f'v_lshl_add_u32 {v(vO)}, {v(vI)}, 4, {v(vO)}')
        g(f'v_add_u32 {v(vO)}, {s(T0)}, {v(vO)}')
        g(f's_cmp_lt_u32 {s(sW)}, 2')
        g(f's_cselect_b32 {s(T2)}, 0, 0x40000000')
        g(f'v_add_u32 {v(vO + 1)}, {s(T2)}, {v(vO)}')
        N_, U_ = 88, 128
        for aa in range(5):
            vo = vO + (aa == 4)
            nb = N_ + 8 * aa
            for hh in range(2):
                for d in range(4):
                    t = U_ + 8 * hh + 2 * d
                    g.unpack(t, t + 1, R + 8 * aa + 4 * hh + d)
                for d in range(4):
                    t = U_ + 8 * hh + 2 * d
                    g(f'v_pk_fma_f32 {v(t, 2)}, {v(t, 2)}, {v(RS + 4 * hh, 2)}, {v(RS + 4 * hh + 2, 2)} op_sel_hi:[1,0,0]')
                for d in range(4):
                    t = U_ + 8 * hh + 2 * d
                    g(f'v_cvt_pk_bf16_f32 {v(nb + 4 * (d >> 1) + 2 * hh + (d & 1))}, {v(t)}, {v(t + 1)}')
            r = R + 8 * aa
            g(f'v_swap_b32 {v(r + 2)}, {v(r + 4)}')
            g(f'v_swap_b32 {v(r + 3)}, {v(r + 5)}')
            g(f's_mov_b32 {s(T2)}, {L.X0P + 8192 * aa}')
            g(f's_mov_b32 {s(T3)}, {L.N0P + 8192 * aa}')
            for qq in range(2):
                g(f'buffer_store_dwordx4 {v(r + 4 * qq, 4)}, {v(vo)}, {s(rWS, 4)}, {s(T2)} offen offset:{256 * qq} sc1')
                g(f'buffer_store_dwordx4 {v(nb + 4 * qq, 4)}, {v(vo)}, {s(rWS, 4)}, {s(T3)} offen offset:{256 * qq} sc1')
        g(f's_lshl_b32 {s(T3)}, {s(sJ)}, 7')
        g(f's_add_u32 {s(T3)}, {s(T3)}, {L.FQ}')
        g.drain()
        g.barrier()
        g(f's_cmp_lg_u32 {s(sW)}, 0')
        with g.skip_if('s_cbranch_scc1'):
            g.flag_store(T3)
        g.stamp(2)
        vA, vA2, vD_ = 8, 9, 10
        g(f'v_lshrrev_b32 {v(vT + 4)}, 1, {v(vG)}')
        g(f'v_mul_u32_u24 {v(vT + 4)}, 2, {v(vT + 4)}')
        g(f'v_lshl_add_u32 {v(vT + 4)}, {v(vG)}, 3, {v(vT + 4)}')
        g(f'v_bfe_u32 {v(vT + 5)}, {v(vLANE)}, 2, 2')
        g(f'v_add_u32 {v(vT + 4)}, {v(vT + 4)}, {v(vT + 5)}')
        g(f'v_mul_u32_u24 {v(vT + 4)}, 288, {v(vT + 4)}')
        g(f'v_and_b32 {v(vT + 6)}, 3, {v(vLANE)}')
        g(f'v_lshl_add_u32 {v(vT + 4)}, {v(vT + 6)}, 3, {v(vT + 4)}')
        g(f'v_lshrrev_b32 {v(vT + 7)}, 1, {v(vT + 5)}')
        g(f'v_mul_u32_u24 {v(vT + 7)}, 16, {v(vT + 7)}')
        g(f'v_add_u32 {v(vT + 7)}, {v(vT + 7)}, {v(vT + 5)}')
        g(f'v_add_u32 {v(vT + 7)}, 16, {v(vT + 7)}')
        g(f'v_mul_u32_u24 {v(vT + 7)}, 288, {v(vT + 7)}')
        g(f'v_lshl_add_u32 {v(vT + 7)}, {v(vT + 6)}, 3, {v(vT + 7)}')
        vM, vE = vT + 4, vT + 7
        vD4 = 17
        g(f'v_and_b32 {v(16)}, 7, {v(vI)}')
        g(f'v_lshlrev_b32 {v(16)}, 4, {v(16)}')
        g(f'v_lshl_add_u32 {v(vD4)}, {v(vG)}, 7, {v(16)}')
        g(f's_mul_i32 {s(T0)}, {s(sCq)}, {2 * L.WOSZ}')
        g(f's_add_u32 {s(T0)}, {s(T0)}, {L.WOF}')
        g(f's_mul_i32 {s(T1)}, {s(sPp)}, 4608')
        g(f's_add_u32 {s(T1)}, {s(T1)}, {s(T0)}')
        g(f's_lshr_b32 {s(T2)}, {s(sPp)}, 3')
        g(f's_add_u32 {s(T2)}, {s(T2)}, 16')
        g(f's_mul_i32 {s(T2)}, {s(T2)}, 4608')
        g(f's_add_u32 {s(T0)}, {s(T0)}, {s(T2)}')
        g(f's_and_b32 {s(T2)}, {s(sPp)}, 1')
        g(f's_lshl_b32 {s(T2)}, {s(T2)}, 3')
        g(f's_add_u32 {s(T0)}, {s(T0)}, {s(T2)}')
        g(f's_bfe_u32 {s(T4)}, {s(sPp)}, 0x20001')
        for w in range(4):
            lab = g.newlabel('wo')
            g(f's_cmp_lg_u32 {s(sW)}, {w}')
            with g.skip_if('s_cbranch_scc1'):
                for idx in range(w, 10, 4):
                    cgl, T = divmod(idx, 5)
                    co = cgl * 144 + T * 32
                    g(f'ds_read_b64_tr_b16 {v(20, 2)}, {v(vM)} offset:{co}')
                    g(f'ds_read_b64_tr_b16 {v(22, 2)}, {v(vM)} offset:{co + 4 * 288}')
                    g(f'ds_read_b64_tr_b16 {v(24, 2)}, {v(vE)} offset:{co}')
                    g(f's_add_u32 {s(T2)}, {s(T1)}, {cgl * L.WOSZ + T * 1024}')
                    g(f's_lshl_b32 {s(T3)}, {s(T4)}, {8 if T < 4 else 7}')
                    g(f's_add_u32 {s(T3)}, {s(T3)}, {s(T0)}')
                    g(f's_add_u32 {s(T3)}, {s(T3)}, {cgl * L.WOSZ + T * 1024}')
                    g(f'v_lshlrev_b32 {v(18)}, 4, {v(vI)}')
                    g.drain(vm=False)
                    if T == 4:
                        g.setexec(0x00ff00ff00ff00ff)
                    g(f'buffer_store_dwordx4 {v(20, 4)}, {v(vL16 if T < 4 else vD4)}, {s(rWS, 4)}, {s(T2)} offen sc1')
                    g.setexec(0xffff if T < 4 else 0xff)
                    g(f'buffer_store_dwordx2 {v(24, 2)}, {v(18)}, {s(rWS, 4)}, {s(T3)} offen sc1')
                    g.setexec(-1)
                    g('s_nop 1')
        g(f's_lshl_b32 {s(T3)}, {s(sJ)}, 7')
        g(f's_add_u32 {s(T3)}, {s(T3)}, {L.FWO}')
        g.drain(force=True)
        g.barrier()
        g(f's_cmp_lg_u32 {s(sW)}, 0')
        with g.skip_if('s_cbranch_scc1'):
            g.flag_store(T3)
        g.stamp(6)

    def ln_coef(self, vS, vQ, vRS, vB):
        g = self
        inv = '0x3ae38e39'
        g(f'v_mul_f32 {v(vS)}, {inv}, {v(vS)}')
        g(f'v_mul_f32 {v(vQ)}, {inv}, {v(vQ)}')
        g(f'v_fma_f32 {v(vQ)}, -{v(vS)}, {v(vS)}, {v(vQ)}')
        g(f'v_max_f32 {v(vQ)}, 0, {v(vQ)}')
        g(f'v_add_f32 {v(vQ)}, 0x3727c5ac, {v(vQ)}')
        g(f'v_rsq_f32 {v(vRS)}, {v(vQ)}')
        if vB is not None:
            g(f'v_mul_f32 {v(vB)}, {v(vS)}, {v(vRS)}')
            g(f'v_sub_f32 {v(vB)}, 0, {v(vB)}')

    def role_w(self):
        g = self
        sU, sPp, sPart = T7, T6, T5
        vO, vT = 6, 8
        RA = 16
        BV, BF = 96, 108
        ACC = 132
        g.srd(rA, pWQ, 576 * 3456)
        g.srd(rB, pPH, 32 * 648)
        g(f's_sub_u32 {s(sU)}, {s(sWG)}, 208')
        g(f's_and_b32 {s(sPp)}, {s(sU)}, 15')
        g(f's_lshr_b32 {s(sPart)}, {s(sU)}, 4')
        g(f's_add_u32 {s(T0)}, {s(sPart)}, 1')
        g(f's_cmp_eq_u32 {s(sPart)}, 2')
        g(f's_cselect_b32 {s(T0)}, 0, {s(T0)}')
        g(f's_mul_i32 {s(T0)}, {s(T0)}, 1152')
        g(f's_mul_i32 {s(T1)}, {s(sPp)}, 72')
        g(f's_add_u32 {s(T0)}, {s(T0)}, {s(T1)}')
        g(f's_mul_i32 {s(T1)}, {s(sW)}, {32 * 3456}')
        g(f's_add_u32 {s(T0)}, {s(T0)}, {s(T1)}')
        g(f'v_min_u32 {v(vT)}, 2, {v(vG)}')
        g(f'v_mul_u32_u24 {v(vO)}, 3456, {v(vI)}')
        g(f'v_lshl_add_u32 {v(vO)}, {v(vT)}, 4, {v(vO)}')
        g(f'v_add_u32 {v(vO)}, {s(T0)}, {v(vO)}')
        for kk in range(5):
            for half in range(2):
                g(f's_mov_b32 {s(T1)}, {(128 * kk + 16 * half) * 3456}')
                for hh in range(2):
                    i = (2 * kk + half) * 2 + hh
                    g(f'buffer_load_dwordx4 {v(RA + 4 * i, 4)}, {v(vO)}, {s(rA, 4)}, {s(T1)} offen offset:{36 * hh}')
        g(f's_lshl_b32 {s(T1)}, 1, {s(sPart)}')
        g(f's_sub_u32 {s(T1)}, {s(T1)}, 1')
        vF9, vHF, vHD, vFF = 9, 10, 11, 12
        g(f'v_and_b32 {v(vF9)}, 3, {v(vI)}')
        g(f'v_subrev_u32 {v(vF9)}, {s(T1)}, {v(vF9)}')
        g(f'v_bfe_u32 {v(vHF)}, {v(vI)}, 2, 1')
        g(f'v_mul_u32_u24 {v(vHF)}, 9, {v(vHF)}')
        g(f'v_lshrrev_b32 {v(vHD)}, 3, {v(vI)}')
        g(f's_mul_i32 {s(T2)}, {s(sPp)}, 1296')
        g(f'v_mul_u32_u24 {v(13)}, 648, {v(vHD)}')
        g(f'v_mul_u32_u24 {v(14)}, 288, {v(vG)}')
        g(f'v_add3_u32 {v(13)}, {v(13)}, {v(14)}, {s(T2)}')
        masks = [sM0, sM1, sM2]
        for Tp in range(3):
            g(f'v_add_u32 {v(vT)}, {4 * Tp}, {v(vF9)}')
            g(f'v_cmp_gt_u32 {s(masks[Tp], 2)}, 9, {v(vT)}')
            g(f'v_add_u32 {v(vFF)}, {v(vT)}, {v(vHF)}')
            g(f'v_mov_b64 {v(BV + 4 * Tp, 2)}, 0')
            g(f'v_mov_b64 {v(BV + 4 * Tp + 2, 2)}, 0')
            for d in range(4):
                g(f'v_mov_b64 {v(ACC + 8 * Tp + 2 * d, 2)}, 0')
            g(f's_cmp_eq_u32 {s(sPart)}, 1')
            lab_v, lab_d = g.newlabel('wv'), g.newlabel('wd')
            st0 = g.state()
            g.branch('s_cbranch_scc1', lab_v)
            g.cond_depth += 1
            g(f'v_lshl_add_u32 {v(14)}, {v(vFF)}, 1, {v(13)}')
            for jj in range(8):
                if jj in (0, 2):
                    m = 0xffffffffffff if jj < 2 else 0xffffffff
                    g(f's_mov_b32 {s(sMA)}, {hex(m & 0xffffffff)}')
                    g(f's_mov_b32 {s(sMA + 1)}, {hex(m >> 32)}')
                    g(f's_and_b64 exec, {s(sMA, 2)}, {s(masks[Tp], 2)}')
                g(f'buffer_load_ushort {v(ACC + 8 * Tp + jj)}, {v(14)}, {s(rB, 4)}, 0 offen offset:{36 * jj}')
            g.setexec(-1)
            g.cond_depth -= 1
            st1 = g.state()
            g.branch('s_branch', lab_d)
            g.label(lab_v)
            g(f'v_lshlrev_b32 {v(14)}, 3, {v(vG)}')
            g(f'v_sub_u32 {v(14)}, {v(vFF)}, {v(14)}')
            g(f'v_mov_b32 {v(15)}, 0x3f80')
            g(f'v_mov_b32 {v(vT)}, 0x3f800000')
            g(f's_mov_b64 exec, {s(masks[Tp], 2)}')
            vm_keep = g.vm
            g.vm = st0[0]
            for d in range(4):
                g(f'v_cmp_eq_u32 vcc, {2 * d}, {v(14)}')
                g(f'v_cndmask_b32 {v(BV + 4 * Tp + d)}, 0, {v(15)}, vcc')
                g(f'v_cmp_eq_u32 vcc, {2 * d + 1}, {v(14)}')
                g(f'v_cndmask_b32 {v(BV + 4 * Tp + d)}, {v(BV + 4 * Tp + d)}, {v(vT)}, vcc')
            g.setexec(-1)
            g.vm = st1[0]
            g.label(lab_d)
        g.vtmp_stamp = 255
        g.stamp(1)
        g.make_tag()
        for Tp in range(3):
            for d in range(4):
                g(f'v_lshl_or_b32 {v(14)}, {v(ACC + 8 * Tp + 2 * d + 1)}, 16, {v(ACC + 8 * Tp + 2 * d)}')
                g(f'v_or_b32 {v(BV + 4 * Tp + d)}, {v(14)}, {v(BV + 4 * Tp + d)}')
        g(f'v_cmp_eq_u32 vcc, 0, {v(vHD)}')
        for Tp in range(3):
            for d in range(4):
                g(f'v_cndmask_b32 {v(BF + 8 * Tp + d)}, 0, {v(BV + 4 * Tp + d)}, vcc')
                g(f'v_cndmask_b32 {v(BF + 8 * Tp + 4 + d)}, {v(BV + 4 * Tp + d)}, 0, vcc' if False else
                  f'v_sub_u32 {v(BF + 8 * Tp + 4 + d)}, {v(BV + 4 * Tp + d)}, {v(BF + 8 * Tp + d)}')
        g.stamp(2)
        for mt in range(10):
            for Tp in range(3):
                d = v(ACC + 12 * mt + 4 * Tp, 4)
                g.mfma(d, v(RA + 8 * mt, 4), v(BF + 8 * Tp, 4), '0')
            for Tp in range(3):
                d = v(ACC + 12 * mt + 4 * Tp, 4)
                g.mfma(d, v(RA + 8 * mt + 4, 4), v(BF + 8 * Tp + 4, 4), d)
        g.stamp(3)
        SM = 16
        for Tp in range(3):
            g(f'v_pk_add_f32 {v(SM + 2 * Tp, 2)}, {v(ACC + 4 * Tp, 2)}, {v(ACC + 4 * Tp + 2, 2)}')
        for mt in range(1, 10):
            for hf in range(2):
                for Tp in range(3):
                    g(f'v_pk_add_f32 {v(SM + 2 * Tp, 2)}, {v(SM + 2 * Tp, 2)}, {v(ACC + 12 * mt + 4 * Tp + 2 * hf, 2)}')
        CS = 24
        for Tp in range(3):
            g(f'v_add_f32 {v(CS + Tp)}, {v(SM + 2 * Tp)}, {v(SM + 2 * Tp + 1)}')
        g(f'v_mov_b32 {v(CS + 3)}, 0')
        g.xg_sum2(CS, CS + 1, vT)
        g.xg_sum2(CS + 2, CS + 3, vT)
        g(f's_lshl_b32 {s(T2)}, {s(sW)}, 8')
        g(f'v_lshl_add_u32 {v(vT)}, {v(vI)}, 4, {s(T2)}')
        g(f'ds_write_b128 {v(vT)}, {v(CS, 4)}')
        g.barrier()
        g(f'v_lshlrev_b32 {v(vT)}, 4, {v(vI)}')
        P_ = 28
        for w in range(4):
            g(f'ds_read_b128 {v(P_ + 4 * w, 4)}, {v(vT)} offset:{256 * w}')
        for h2 in range(2):
            g(f'v_pk_add_f32 {v(P_ + 2 * h2, 2)}, {v(P_ + 2 * h2, 2)}, {v(P_ + 4 + 2 * h2, 2)}')
            g(f'v_pk_add_f32 {v(P_ + 8 + 2 * h2, 2)}, {v(P_ + 8 + 2 * h2, 2)}, {v(P_ + 12 + 2 * h2, 2)}')
            g(f'v_pk_add_f32 {v(P_ + 2 * h2, 2)}, {v(P_ + 2 * h2, 2)}, {v(P_ + 8 + 2 * h2, 2)}')
        MN = 44
        for Tp in range(3):
            g(f'v_mul_f32 {v(MN + 2 * Tp)}, 0xbae38e39, {v(P_ + Tp)}')
        g(f's_cmp_eq_u32 {s(sPart)}, 1')
        g(f's_cselect_b32 {s(sM3)}, 0x44444444, 0')
        g(f's_mov_b32 {s(sM3 + 1)}, {s(sM3)}')
        g(f's_or_b64 {s(sM2, 2)}, {s(sM2, 2)}, {s(sM3, 2)}')
        g(f'v_mov_b32 {v(50)}, 0x3f803f80')
        g(f's_mul_i32 {s(T0)}, {s(sPp)}, {L.WPSZ}')
        g(f's_add_u32 {s(T0)}, {s(T0)}, {L.WP}')
        bases, steps = [T1, T2, T3], [T4, 13, 14]
        for Tp in range(3):
            g(f's_lshl_b32 {s(15)}, {s(sPart)}, 1')
            g(f's_add_u32 {s(15)}, {s(15)}, {Tp}')
            g(f's_lshl_b32 {s(bases[Tp])}, {s(15)}, 10')
            g(f's_cmp_lt_u32 {s(15)}, 5')
            g(f's_cselect_b32 {s(steps[Tp])}, 3072, 0')
            g(f's_cselect_b32 {s(15)}, 0, {L.L_P2 - 5120}')
            g(f's_add_u32 {s(steps[Tp])}, {s(steps[Tp])}, 2048')
            g(f's_add_u32 {s(bases[Tp])}, {s(bases[Tp])}, {s(15)}')
            g(f's_add_u32 {s(bases[Tp])}, {s(bases[Tp])}, {s(T0)}')
            g(f's_mul_i32 {s(15)}, {s(steps[Tp])}, {s(sW)}')
            g(f's_add_u32 {s(bases[Tp])}, {s(bases[Tp])}, {s(15)}')
            g(f's_lshl_b32 {s(steps[Tp])}, {s(steps[Tp])}, 2')
        O_ = 52
        g.wperm(51, 14)

        def emit_k(kk):
            for Tp in range(3):
                o = O_ + 4 * ((3 * kk + Tp) % 4)
                for half in range(2):
                    b = ACC + 12 * (2 * kk + half) + 4 * Tp
                    for hf in range(2):
                        g(f'v_pk_add_f32 {v(b + 2 * hf, 2)}, {v(b + 2 * hf, 2)}, {v(MN + 2 * Tp, 2)} op_sel_hi:[1,0]')
                    for hf in range(2):
                        g(f'v_cvt_pk_bf16_f32 {v(o + 2 * half + hf)}, {v(b + 2 * hf)}, {v(b + 2 * hf + 1)}')
                if Tp == 2:
                    for d in range(4):
                        g(f'v_cndmask_b32 {v(o + d)}, {v(o + d)}, {v(50)}, {s(sM3, 2)}')
                g(f's_mov_b64 exec, {s(masks[Tp], 2)}')
                g(f'buffer_store_dwordx4 {v(o, 4)}, {v(51)}, {s(rWS, 4)}, {s(bases[Tp])} offen sc1')
                g.setexec(-1)
                g(f's_add_u32 {s(bases[Tp])}, {s(bases[Tp])}, {s(steps[Tp])}')
        g.stamp(4)
        for kk in range(4):
            emit_k(kk)
        g(f's_cmp_ge_u32 {s(sW)}, 2')
        with g.skip_if('s_cbranch_scc1'):
            emit_k(4)
        g(f's_lshl_b32 {s(T3)}, {s(sU)}, 7')
        g(f's_add_u32 {s(T3)}, {s(T3)}, {L.FW}')
        g.stamp(5)
        g.drain(force=True)
        g.barrier()
        g(f's_cmp_lg_u32 {s(sW)}, 0')
        with g.skip_if('s_cbranch_scc1'):
            g.flag_store(T3)
        g.stamp(6)

    def softmax2(self, X, single_first, C, TMP, outs):
        g = self
        R = range(2)
        sg = [x if single_first else x + 8 for x in X]
        pb = [x + 1 if single_first else x for x in X]
        val = lambda t, f: X[t] + f
        EN = [TMP[t] for t in R]
        SG = [TMP[t] + 8 for t in R]
        MX = [TMP[t] + 10 for t in R]
        SM = [TMP[t] + 12 for t in R]
        for t in R:
            g(f'v_max3_f32 {v(MX[t])}, {v(val(t, 0))}, {v(val(t, 1))}, {v(val(t, 2))}')
            g(f'v_max3_f32 {v(MX[t] + 1)}, -{v(val(t, 0))}, -{v(val(t, 1))}, -{v(val(t, 2))}')
        for k in range(3):
            for t in R:
                g(f'v_max3_f32 {v(MX[t])}, {v(MX[t])}, {v(val(t, 3 + 2 * k))}, {v(val(t, 4 + 2 * k))}')
                g(f'v_max3_f32 {v(MX[t] + 1)}, {v(MX[t] + 1)}, -{v(val(t, 3 + 2 * k))}, -{v(val(t, 4 + 2 * k))}')
        for t in R:
            g(f'v_permlane16_swap_b32 {v(MX[t])}, {v(MX[t] + 1)}')
        for t in R:
            g(f'v_max_f32 {v(MX[t])}, {v(MX[t])}, {v(MX[t] + 1)}')
        for t in R:
            g(f'v_mul_f32 {v(MX[t])}, {v(C[t])}, {v(MX[t])}')
        for t in R:
            g(f'v_mov_b32 {v(MX[t] + 1)}, {v(MX[t])}')
        for t in R:
            g(f'v_permlane16_swap_b32 {v(MX[t])}, {v(MX[t] + 1)}')
        for k in range(4):
            for t in R:
                g(f'v_pk_fma_f32 {v(EN[t] + 2 * k, 2)}, {v(pb[t] + 2 * k, 2)}, {v(C[t], 2)}, {v(MX[t], 2)} op_sel:[0,0,1] op_sel_hi:[1,0,1] neg_lo:[1,0,1] neg_hi:[1,0,1]')
                g(f'v_pk_fma_f32 {v(pb[t] + 2 * k, 2)}, {v(pb[t] + 2 * k, 2)}, {v(C[t], 2)}, {v(MX[t], 2)} op_sel_hi:[1,0,0] neg_lo:[0,0,1] neg_hi:[0,0,1]')
        for t in R:
            g(f'v_fma_f32 {v(SG[t])}, {v(sg[t])}, {v(C[t])}, -{v(MX[t])}')
            g(f'v_fma_f32 {v(SG[t] + 1)}, -{v(sg[t])}, {v(C[t])}, -{v(MX[t] + 1)}')
        for t in R:
            for k in range(8):
                g(f'v_exp_f32 {v(pb[t] + k)}, {v(pb[t] + k)}')
                g(f'v_exp_f32 {v(EN[t] + k)}, {v(EN[t] + k)}')
            g(f'v_exp_f32 {v(SG[t])}, {v(SG[t])}')
            g(f'v_exp_f32 {v(SG[t] + 1)}, {v(SG[t] + 1)}')
        for t in R:
            g(f'v_pk_add_f32 {v(SM[t], 2)}, {v(pb[t], 2)}, {v(pb[t] + 2, 2)}')
            g(f'v_pk_add_f32 {v(SM[t] + 2, 2)}, {v(EN[t], 2)}, {v(EN[t] + 2, 2)}')
        for k in (2, 3):
            for t in R:
                g(f'v_pk_add_f32 {v(SM[t], 2)}, {v(SM[t], 2)}, {v(pb[t] + 2 * k, 2)}')
                g(f'v_pk_add_f32 {v(SM[t] + 2, 2)}, {v(SM[t] + 2, 2)}, {v(EN[t] + 2 * k, 2)}')
        for t in R:
            g(f'v_add_f32 {v(MX[t])}, {v(SM[t])}, {v(SM[t] + 1)}')
            g(f'v_add_f32 {v(MX[t] + 1)}, {v(SM[t] + 2)}, {v(SM[t] + 3)}')
        for t in R:
            g(f'v_pk_add_f32 {v(MX[t], 2)}, {v(MX[t], 2)}, {v(SG[t], 2)}')
        for t in R:
            g(f'v_permlane16_swap_b32 {v(MX[t])}, {v(MX[t] + 1)}')
        for t in R:
            g(f'v_add_f32 {v(MX[t])}, {v(MX[t])}, {v(MX[t] + 1)}')
        for t in R:
            g(f'v_rcp_f32 {v(MX[t])}, {v(MX[t])}')
        for t in R:
            g(f'v_mov_b32 {v(MX[t] + 1)}, {v(MX[t])}')
        for t in R:
            g(f'v_permlane16_swap_b32 {v(MX[t])}, {v(MX[t] + 1)}')
        for k in range(4):
            for t in R:
                g(f'v_pk_mul_f32 {v(pb[t] + 2 * k, 2)}, {v(pb[t] + 2 * k, 2)}, {v(MX[t], 2)} op_sel_hi:[1,0]')
                g(f'v_pk_mul_f32 {v(EN[t] + 2 * k, 2)}, {v(EN[t] + 2 * k, 2)}, {v(MX[t], 2)} op_sel:[0,1] op_sel_hi:[1,1]')
        for t in R:
            g(f'v_pk_mul_f32 {v(SG[t], 2)}, {v(SG[t], 2)}, {v(MX[t], 2)}')
        for t in R:
            if single_first:
                pos = [SG[t]] + [pb[t] + k for k in range(8)]
                neg = [SG[t] + 1] + [EN[t] + k for k in range(8)]
            else:
                pos = [pb[t] + k for k in range(8)] + [SG[t]]
                neg = [EN[t] + k for k in range(8)] + [SG[t] + 1]
            seq = pos + neg
            for d in range(9):
                g(f'v_cvt_pk_bf16_f32 {v(outs[t][d])}, {v(seq[2 * d])}, {v(seq[2 * d + 1])}')

    def main(self):
        g = self
        vT = 6
        aSCW, aPA0, aPB, aKVS, aH1, aH2, aKT, aOA0, aOS, aOE = 200, 201, 204, 205, 206, 207, 208, 209, 212, 213
        aX1, aSTP, aSTG, aX3, aOUT, aW4 = 214, 215, 216, 217, 218, 219
        aKVS2, aH3, aWP, aOX = 220, 221, 222, 223
        aKEEP = 240

        def keep(ar, vr):
            g(f'v_accvgpr_write_b32 {a(ar)}, {v(vr)}')

        def get(vr, ar):
            g(f'v_accvgpr_read_b32 {v(vr)}, {a(ar)}')

        g.stamp(7)
        g.bg_start(g.dma_items(16, stride=16384), 9)
        c3, r3 = 8, 9
        g(f's_movk_i32 {s(T7)}, 240')
        g(f'v_and_b32 {v(c3)}, 3, {v(vLANE)}')
        g(f'v_bfe_u32 {v(r3)}, {v(vLANE)}, 2, 2')
        g(f's_mul_i32 {s(T0)}, {s(sW)}, {32 * 264}')
        g(f's_add_u32 {s(T0)}, {s(T0)}, {L.L_SCR}')
        g(f'v_mul_u32_u24 {v(vT)}, 264, {v(vI)}')
        g(f'v_mad_u32_u24 {v(vT)}, {v(vG)}, 40, {v(vT)}')
        g(f'v_add_u32 {v(vT)}, {s(T0)}, {v(vT)}')
        keep(aSCW, vT)
        g(f'v_and_b32 {v(vT)}, 1, {v(vG)}')
        g(f'v_lshlrev_b32 {v(vT)}, 4, {v(vT)}')
        g(f'v_lshl_add_u32 {v(vT)}, {v(r3)}, 2, {v(vT)}')
        g(f'v_and_b32 {v(vT + 1)}, 2, {v(vG)}')
        g(f'v_add_u32 {v(vT)}, {v(vT)}, {v(vT + 1)}')
        g(f'v_mul_u32_u24 {v(10)}, 264, {v(vT)}')
        g(f'v_add_u32 {v(10)}, {L.L_SCR}, {v(10)}')
        g(f's_lshr_b32 {s(T2)}, {s(sW)}, 1')
        g(f's_mul_i32 {s(T0)}, {s(T2)}, 80')
        g(f'v_lshrrev_b32 {v(vT)}, 1, {v(c3)}')
        g(f'v_mad_u32_u24 {v(11)}, {v(vT)}, 40, {v(10)}')
        g(f'v_add_u32 {v(11)}, {s(T0)}, {v(11)}')
        g(f'v_and_b32 {v(vT)}, 1, {v(c3)}')
        for Tm in range(3):
            g(f'v_mad_u32_u24 {v(vT + 1)}, {v(vT)}, {8 * (min(3 + Tm, 4) - Tm)}, {v(11)}')
            g(f'v_add_u32 {v(vT + 1)}, {8 * Tm}, {v(vT + 1)}')
            keep(aPA0 + Tm, vT + 1)
        g(f's_mul_i32 {s(T0)}, {s(sW)}, 24')
        g(f's_add_u32 {s(T0)}, {s(T0)}, 160')
        g(f'v_min_u32 {v(vT)}, 2, {v(c3)}')
        g(f'v_lshl_add_u32 {v(vT)}, {v(vT)}, 3, {v(10)}')
        g(f'v_add_u32 {v(vT)}, {s(T0)}, {v(vT)}')
        keep(aPB, vT)
        g(f's_mul_i32 {s(T0)}, {s(sW)}, 960')
        g(f'v_lshlrev_b32 {v(vT)}, 6, {v(vI)}')
        g(f'v_lshl_add_u32 {v(vT)}, {v(vG)}, 4, {v(vT)}')
        g(f'v_add_u32 {v(vT)}, {s(T0)}, {v(vT)}')
        keep(aKVS, vT)
        g(f'v_lshrrev_b32 {v(vT)}, 1, {v(vG)}')
        g(f'v_lshl_add_u32 {v(vT)}, {v(vI)}, 1, {v(vT)}')
        g(f'v_lshlrev_b32 {v(vT)}, 4, {v(vT)}')
        g(f's_add_u32 {s(T0)}, {s(T0)}, 640')
        g(f'v_add_u32 {v(vT)}, {s(T0)}, {v(vT)}')
        keep(aKVS2, vT)
        g(f's_mul_i32 {s(T0)}, {s(sR128)}, 15')
        g(f'v_lshrrev_b32 {v(vT)}, 4, {v(vTID)}')
        g(f'v_min_u32 {v(vT + 1)}, 14, {v(vT)}')
        g(f'v_add_u32 {v(vT + 1)}, {s(T0)}, {v(vT + 1)}')
        g(f'v_lshlrev_b32 {v(vT + 1)}, 4, {v(vT + 1)}')
        g(f'v_lshl_add_u32 {v(vT + 1)}, {v(vI)}, 12, {v(vT + 1)}')
        keep(aH1, vT + 1)
        g(f's_lshl_b32 {s(T0)}, {s(sR128)}, 8')
        g(f'v_lshl_add_u32 {v(vT)}, {v(vT)}, 4, {s(T0)}')
        keep(aH2, vT)
        g(f'v_mul_u32_u24 {v(vT)}, 4370, {v(vTID)}')
        g(f'v_lshrrev_b32 {v(vT)}, 16, {v(vT)}')
        g(f'v_add_lshl_u32 {v(vT)}, {v(vT)}, {v(vTID)}, 4')
        keep(aH3, vT)
        g(f'v_cmp_gt_u32 {s(sM1, 2)}, {s(T7)}, {v(vTID)}')
        g(f'v_mul_u32_u24 {v(12)}, 1093, {v(vTID)}')
        g(f'v_lshrrev_b32 {v(12)}, 16, {v(12)}')
        g(f'v_mul_u32_u24 {v(13)}, 60, {v(12)}')
        g(f'v_sub_u32 {v(13)}, {v(vTID)}, {v(13)}')
        g(f'v_cmp_le_u32 vcc, 40, {v(13)}')
        g(f'v_lshrrev_b32 {v(14)}, 2, {v(13)}')
        g(f'v_subrev_u32 {v(15)}, 40, {v(13)}')
        g(f'v_lshrrev_b32 {v(15)}, 1, {v(15)}')
        g(f'v_cndmask_b32 {v(14)}, {v(14)}, {v(15)}, vcc')
        g(f'v_and_b32 {v(15)}, 3, {v(13)}')
        g(f'v_mul_u32_u24 {v(15)}, 24, {v(15)}')
        g(f'v_and_b32 {v(16)}, 1, {v(13)}')
        g(f'v_mad_u32_u24 {v(16)}, {v(16)}, 48, 12')
        g(f'v_cndmask_b32 {v(15)}, {v(15)}, {v(16)}, vcc')
        g(f'v_and_b32 {v(16)}, 1, {v(12)}')
        g(f'v_mad_u32_u24 {v(16)}, {v(16)}, 9, {v(14)}')
        g(f'v_cmp_ne_u32 vcc, 18, {v(16)}')
        g(f's_and_b64 {s(sM2, 2)}, {s(sM1, 2)}, vcc')
        g(f'v_cmp_eq_u32 vcc, 9, {v(14)}')
        g(f'v_mov_b32 {v(17)}, 18')
        g(f'v_cndmask_b32 {v(16)}, {v(16)}, {v(17)}, vcc')
        g(f'v_lshrrev_b32 {v(12)}, 1, {v(12)}')
        g(f'v_mad_u32_u24 {v(16)}, {v(12)}, 19, {v(16)}')
        g(f'v_mul_u32_u24 {v(16)}, 96, {v(16)}')
        g(f'v_add_u32 {v(16)}, {v(16)}, {v(15)}')
        g(f'v_add_u32 {v(16)}, {L.L_KVT}, {v(16)}')
        keep(aKT, 16)
        g(f'v_lshrrev_b32 {v(12)}, 3, {v(vI)}')
        g(f'v_lshrrev_b32 {v(13)}, 1, {v(vG)}')
        g(f'v_cmp_eq_u32 vcc, {v(12)}, {v(13)}')
        g(f'v_mul_u32_u24 {v(12)}, {19 * 96}, {v(12)}')
        g(f'v_and_b32 {v(13)}, 1, {v(vG)}')
        g(f'v_mad_u32_u24 {v(12)}, {v(13)}, 48, {v(12)}')
        g(f'v_add_u32 {v(12)}, {L.L_KVT}, {v(12)}')
        g(f'v_bfe_u32 {v(13)}, {v(vI)}, 2, 1')
        g(f'v_and_b32 {v(14)}, 3, {v(vI)}')
        g(f'v_lshl_add_u32 {v(13)}, {v(13)}, 3, {v(14)}')
        g(f'v_mov_b32 {v(17)}, {L.L_ZERO}')
        g(f's_movk_i32 {s(T0)}, 96')
        for T in range(3):
            if T < 2:
                g(f'v_add_u32 {v(15)}, {4 * T}, {v(13)}')
            else:
                g(f'v_lshlrev_b32 {v(15)}, 3, {v(14)}')
                g(f'v_lshrrev_b32 {v(15)}, {v(15)}, {v(18)}' if False else f'v_mov_b32 {v(18)}, 0x12111012')
                g(f'v_lshrrev_b32 {v(15)}, {v(15)}, {v(18)}')
                g(f'v_and_b32 {v(15)}, 0xff, {v(15)}')
            g(f'v_mad_u32_u24 {v(15)}, {v(15)}, {s(T0)}, {v(12)}')
            g(f'v_cndmask_b32 {v(15)}, {v(17)}, {v(15)}, vcc')
            keep(aOA0 + T, 15)
        g(f's_mul_i32 {s(T0)}, {s(sRB)}, 36864')
        g(f'v_lshrrev_b32 {v(12)}, 3, {v(vI)}')
        g(f'v_mul_u32_u24 {v(12)}, 18432, {v(12)}')
        g(f'v_and_b32 {v(13)}, 7, {v(vI)}')
        g(f'v_lshl_add_u32 {v(12)}, {v(13)}, 4, {v(12)}')
        g(f'v_add_u32 {v(12)}, {s(T0)}, {v(12)}')
        g(f's_lshl_b32 {s(T0)}, {s(sP)}, 10')
        g(f'v_lshl_add_u32 {v(14)}, {v(vG)}, 8, {v(12)}')
        g(f'v_add_u32 {v(14)}, {s(T0)}, {v(14)}')
        keep(aOS, 14)
        g(f's_lshl_b32 {s(T0)}, {s(sP)}, 7')
        g(f's_add_u32 {s(T0)}, {s(T0)}, {64 * 256}')
        g(f'v_lshlrev_b32 {v(14)}, 3, {v(13)}')
        g(f'v_sub_u32 {v(14)}, {v(12)}, {v(14)}')
        g(f'v_lshrrev_b32 {v(15)}, 1, {v(vG)}')
        g(f'v_lshl_add_u32 {v(14)}, {v(15)}, 6, {v(14)}')
        g(f'v_add_u32 {v(14)}, {s(T0)}, {v(14)}')
        keep(aOE, 14)
        g(f's_and_b32 {s(T3)}, {s(sW)}, 1')
        g(f's_mul_i32 {s(T0)}, {s(sRB2)}, 36864')
        g(f's_mul_i32 {s(T1)}, {s(sCG)}, 4608')
        g(f's_add_u32 {s(T0)}, {s(T0)}, {s(T1)}')
        g(f's_lshl_b32 {s(T1)}, {s(T3)}, 7')
        g(f's_add_u32 {s(T0)}, {s(T0)}, {s(T1)}')
        g(f'v_lshlrev_b32 {v(12)}, 8, {v(vG)}')
        g(f'v_lshl_add_u32 {v(12)}, {v(13)}, 4, {v(12)}')
        g(f'v_add_u32 {v(12)}, {s(T0)}, {v(12)}')
        g(f'v_lshrrev_b32 {v(14)}, 3, {v(vI)}')
        g(f'v_lshl_add_u32 {v(15)}, {v(14)}, 3, {v(12)}')
        keep(aX1, 15)
        g(f'v_lshl_add_u32 {v(15)}, {v(14)}, 10, {v(12)}')
        keep(aX3, 15)
        g(f's_lshl_b32 {s(T0)}, {s(sR64)}, 13')
        g(f's_lshl_b32 {s(T1)}, {s(sW)}, 8')
        g(f's_add_u32 {s(T0)}, {s(T0)}, {s(T1)}')
        g(f's_add_u32 {s(T0)}, {s(T0)}, {L.ST}')
        g(f'v_lshl_add_u32 {v(15)}, {v(vI)}, 4, {s(T0)}')
        g(f'v_lshl_add_u32 {v(16)}, {v(vG)}, 10, {v(15)}')
        keep(aSTG, 16)
        g(f's_lshl_b32 {s(T1)}, {s(sCG)}, 10')
        g(f'v_add_u32 {v(15)}, {s(T1)}, {v(15)}')
        keep(aSTP, 15)
        g(f's_lshl_b32 {s(T0)}, {s(sRB2)}, 5')
        g(f's_lshl_b32 {s(T1)}, {s(T3)}, 3')
        g(f's_add_u32 {s(T0)}, {s(T0)}, {s(T1)}')
        g(f's_mul_i32 {s(T0)}, {s(T0)}, 1152')
        g(f's_mul_i32 {s(T1)}, {s(sCG)}, 144')
        g(f's_add_u32 {s(T0)}, {s(T0)}, {s(T1)}')
        g(f'v_lshl_add_u32 {v(15)}, {v(14)}, 4, {v(13)}')
        g(f'v_mul_u32_u24 {v(15)}, 1152, {v(15)}')
        g(f'v_and_b32 {v(16)}, 1, {v(vG)}')
        g(f'v_lshl_add_u32 {v(15)}, {v(16)}, 5, {v(15)}')
        g(f'v_lshrrev_b32 {v(16)}, 1, {v(vG)}')
        g(f'v_lshl_add_u32 {v(15)}, {v(16)}, 4, {v(15)}')
        g(f'v_add_u32 {v(15)}, {s(T0)}, {v(15)}')
        keep(aOUT, 15)
        g(f'v_lshlrev_b32 {v(15)}, 7, {v(vG)}')
        g(f'v_lshl_add_u32 {v(15)}, {v(13)}, 4, {v(15)}')
        g(f'v_add_u32 {v(15)}, 4096, {v(15)}')
        keep(aW4, 15)
        g.wperm(15, 16)
        keep(aWP, 15)
        g.bg_flush()
        g(f's_mov_b32 {s(sLAY)}, 0')
        g(f's_mul_i32 {s(sXP)}, {s(sRB)}, 36864')
        g(f's_add_u32 {s(sXP)}, {s(sXP)}, {L.X1P}')
        g(f's_mov_b32 {s(sOFB)}, {L.OF}')
        g(f's_lshl_b32 {s(sKV1)}, {s(sP)}, 16')
        g(f's_add_u32 {s(sKV1)}, {s(sKV1)}, {L.KV1}')
        g(f's_lshl_b32 {s(sKV2)}, {s(sP)}, 12')
        g(f's_add_u32 {s(sKV2)}, {s(sKV2)}, {L.KV2}')
        g(f's_mov_b32 {s(sFO)}, {L.FO}')
        g(f'v_lshlrev_b32 {v(vT)}, 7, {v(vLANE)}')
        g(f's_lshr_b32 {s(T0)}, {s(sCG)}, 1')
        g(f's_lshl_b32 {s(T0)}, {s(T0)}, 11')
        g(f's_add_u32 {s(T0)}, {s(T0)}, {L.FWO}')
        g.poll([(vT + 1, 1, vT, s(T0), 0)], 0xffff, 3)
        g(f's_lshr_b32 {s(T0)}, {s(sR128)}, 2')
        g(f's_mul_i32 {s(T0)}, {s(T0)}, 144')
        g(f's_mul_i32 {s(T1)}, {s(sW)}, 36')
        g(f's_add_u32 {s(T0)}, {s(T0)}, {s(T1)}')
        g(f's_lshl_b32 {s(T0)}, {s(T0)}, 7')
        g(f's_add_u32 {s(T0)}, {s(T0)}, {L.FC}')
        g.poll([(vT + 1, 1, vT, s(T0), 0)], (1 << 36) - 1, 4)
        g.barrier()
        if g.opt.stop == 'conv':
            g.branch('s_branch', 'L_fin')

        g.label('L_layer')
        g.stamp(8)
        XA = 112
        AC = [48, 76]
        GR = [104, 108]
        def ldX(j):
            if j >= 36:
                return
            if j and j % 4 == 0:
                g(f's_add_u32 {s(sXP)}, {s(sXP)}, 4096')
            off = f' offset:{(j % 4) * 1024}' if j % 4 else ''
            g(f'buffer_load_dwordx4 {v(XA + 4 * j, 4)}, {v(vL16)}, {s(rWS, 4)}, {s(sXP)} offen{off} sc1')
        NPRE = g.opt.npre
        for j in range(NPRE):
            ldX(j)
        g(f's_cmp_eq_u32 {s(sLAY)}, 0')
        with g.skip_if('s_cbranch_scc1'):
            g('s_barrier')
        vW1, vW2, vW0 = 6, 7, 8
        get(vW0, aWP)
        g(f'v_add_u32 {v(vW1)}, {9 * 5120}, {v(vW0)}')
        g(f'v_add_u32 {v(vW2)}, {L.L_P2}, {v(vW0)}')

        def rdW(k, T):
            if T < 5:
                base, off = (vW0, k * 5120) if k < 9 else (vW1, (k - 9) * 5120)
                g(f'ds_read_b128 {a(20 * (k & 1) + 4 * T, 4)}, {v(base)} offset:{off + 1024 * T}')
            else:
                g(f'ds_read_b128 {a(40 + 8 * (k & 3) + 4 * (T - 5), 4)}, {v(vW2)} offset:{k * 2048 + 1024 * (T - 5)}')
        for T in range(5):
            rdW(0, T)
        for k in range(18):
            x = XA + 8 * k
            g(f'v_swap_b32 {v(x + 2)}, {v(x + 4)}')
            g(f'v_swap_b32 {v(x + 3)}, {v(x + 5)}')
            for t in range(2):
                g.mfma(v(GR[t], 4), v(x + 4 * t, 4), v(x + 4 * t, 4), v(GR[t], 4) if k else '0')
            for T in range(5):
                for t in range(2):
                    d = v(AC[t] + 4 * T, 4)
                    g.mfma(d, a(20 * (k & 1) + 4 * T, 4), v(x + 4 * t, 4), d if k else '0')
                    if t == 0 and k < 17:
                        rdW(k + 1, T)
                    if t == 1 and T in (0, 2):
                        ldX(NPRE + 2 * k + (T >> 1))
        g.stamp(9)
        g.barrier()
        g(f's_mul_i32 {s(sBG)}, {s(sCG)}, {L.WOSZ}')
        g(f's_mul_i32 {s(sBL)}, {s(sW)}, {21 * 1024}')
        g(f's_add_u32 {s(sBG)}, {s(sBG)}, {s(sBL)}')
        g(f's_add_u32 {s(sBG)}, {s(sBG)}, {L.WOF}')
        g.bg_start(g.dma_items(21), g.opt.wo_every, g.opt.wo_every)
        g(f'v_mov_b64 {v(8, 2)}, 0')
        g(f'v_mov_b64 {v(10, 2)}, 0')
        g(f'v_lshlrev_b32 {v(12)}, 4, {v(vTID)}')
        g(f'v_add_u32 {v(12)}, {L.L_KVT}, {v(12)}')
        g(f'ds_write_b128 {v(12)}, {v(8, 4)}')
        C = [8, 10]
        RSV = [12, 14]
        g(f'v_and_b32 {v(16)}, 3, {v(vI)}')
        for jj in range(1, 4):
            g(f'v_cmp_eq_u32 vcc, {jj}, {v(16)}')
            for t in range(2):
                g(f'v_cndmask_b32 {v(GR[t])}, {v(GR[t])}, {v(GR[t] + jj)}, vcc')
        g(f'v_lshrrev_b32 {v(16)}, 2, {v(vI)}')
        g(f'v_cmp_eq_u32 vcc, {v(16)}, {v(vG)}')
        for t in range(2):
            g(f'v_cndmask_b32 {v(GR[t])}, 0, {v(GR[t])}, vcc')
        g.xg_sum2(GR[0], GR[1], 16)
        for t in range(2):
            g.ln_coef(AC[t] + 18, GR[t], RSV[t], None)
        for t in range(2):
            g(f'v_mul_f32 {v(C[t])}, 0x3fb8aa3b, {v(RSV[t])}')
        TM = [16, 32]
        VP = [104, 108]
        vSC = 6
        get(vSC, aSCW)
        g(f'v_lshlrev_b32 {v(16)}, 4, {v(vG)}')
        g(f'v_sub_u32 {v(17)}, {v(vSC)}, {v(16)}')
        for t in range(2):
            b = AC[t]
            g(f'v_mul_f32 {v(b + 9)}, {v(RSV[t])}, {v(b + 9)}')
            for k in range(4):
                g(f'v_pk_mul_f32 {v(b + 10 + 2 * k, 2)}, {v(b + 10 + 2 * k, 2)}, {v(RSV[t], 2)} op_sel_hi:[1,0]')
            for d in range(4):
                g(f'v_cvt_pk_bf16_f32 {v(VP[t] + d)}, {v(b + 9 + 2 * d)}, {v(b + 10 + 2 * d)}')
            g(f'v_cvt_pk_bf16_f32 {v(b + 18)}, {v(b + 17)}, 1.0')
            o = 160 + 16 * 264 * t
            g(f'ds_write_b64 {v(17)}, {v(VP[t], 2)} offset:{o}')
            g(f'ds_write_b64 {v(17)}, {v(VP[t] + 2, 2)} offset:{o + 8}')
            g(f'ds_write_b32 {v(17)}, {v(b + 18)} offset:{o + 16}')
        PK = [[AC[t] + 10 + d for d in range(9)] for t in range(2)]
        g.softmax2([AC[0], AC[1]], False, C, TM, PK)
        for t in range(2):
            o = 16 * 264 * t
            for d in range(4):
                g(f'ds_write_b64 {v(vSC)}, {v(PK[t][2 * d], 2)} offset:{o + 8 * d}')
            g(f'ds_write_b32 {v(vSC)}, {v(PK[t][8])} offset:{o + 32}')
        vPA, vPB = 16, 19
        for Tm in range(3):
            get(vPA + Tm, aPA0 + Tm)
        get(vPB, aPB)
        g.bg_flush()
        g.barrier()
        g.stamp(10)
        KD = 20
        for ks in range(4):
            for rho in range(2):
                g(f'ds_read_b64_tr_b16 {a(72 + 16 * ks + 2 * rho, 2)}, {v(vPB)} offset:{(32 * ks + rho) * 264}')
            for Tm in range(3):
                for rho in range(2):
                    g(f'ds_read_b64_tr_b16 {a(72 + 16 * ks + 4 + 4 * Tm + 2 * rho, 2)}, {v(vPA + Tm)} offset:{(32 * ks + rho) * 264}')
            if ks == 1 or ks == 3:
                for k2 in (ks - 1, ks):
                    for Tm in range(3):
                        d = v(KD + 4 * Tm, 4)
                        g.mfma(d, a(72 + 16 * k2 + 4 + 4 * Tm, 4), a(72 + 16 * k2, 4), d if k2 else '0')
        for k in range(3):
            rdW(k, 5)
            rdW(k, 6)
        G1_, G2_ = 32, 36
        get(40, aKVS)
        get(41, aKVS2)
        g(f'v_mov_b32 {v(G1_ + 3)}, {v(vTAG)}')
        g(f'v_mov_b32 {v(G2_ + 3)}, {v(vTAG)}')
        g(f's_lshl_b32 {s(T0)}, {s(sR128)}, 12')
        g(f's_add_u32 {s(T0)}, {s(T0)}, {s(sKV1)}')
        for d in range(3):
            g(f'v_cvt_pk_bf16_f32 {v(G1_ + d)}, {v(KD + 2 * d)}, {v(KD + 2 * d + 1)}')
        for d in range(3):
            g(f'v_cvt_pk_bf16_f32 {v(G2_ + d)}, {v(KD + 6 + 2 * d)}, {v(KD + 7 + 2 * d)}')
        g.setexec(0x03ff03ff03ff03ff)
        g(f'buffer_store_dwordx4 {v(G1_, 4)}, {v(40)}, {s(rWS, 4)}, {s(T0)} offen sc1')
        g.setexec(0x000003ff000003ff)
        g.last_flag = g(f'buffer_store_dwordx4 {v(G2_, 4)}, {v(41)}, {s(rWS, 4)}, {s(T0)} offen sc1')
        g.setexec(-1)
        g.stamp(11)
        for k in range(18):
            x = XA + 8 * k
            if k + 3 < 18:
                rdW(k + 3, 5)
            for T in (5, 6):
                for t in range(2):
                    d = v(AC[t] + 4 * T, 4)
                    g.mfma(d, a(40 + 8 * (k & 3) + 4 * (T - 5), 4), v(x + 4 * t, 4), d if k else '0')
                    if T == 5 and t == 1 and k + 3 < 18:
                        rdW(k + 3, 6)
        g.stamp(12)
        H1 = 112
        get(41, aH1)
        g.poll([(H1, 4, 41, s(sKV1), 0)], -1, 5)
        U = 116
        for d in range(3):
            g.unpack(U + 2 * d, U + 2 * d + 1, H1 + d)
        for sh in (8, 4, 2, 1):
            for d in range(6):
                g(f'v_add_f32_dpp {v(U + d)}, {v(U + d)}, {v(U + d)} row_ror:{sh} row_mask:0xf bank_mask:0xf')
        get(41, aH2)
        for d in range(3):
            g(f'v_cvt_pk_bf16_f32 {v(H1 + d)}, {v(U + 2 * d)}, {v(U + 2 * d + 1)}')
        g.setexec(0x0001000100010001)
        g.last_flag = g(f'buffer_store_dwordx4 {v(H1, 4)}, {v(41)}, {s(rWS, 4)}, {s(sKV2)} offen sc1')
        g.setexec(-1)
        g.stamp(13)
        PQ = [128, 140]
        for t in range(2):
            g(f'v_mov_b32 {v(PQ[t] + 9)}, 0')
            g(f'v_mov_b64 {v(PQ[t] + 10, 2)}, 0')
        g.softmax2([AC[0] + 19, AC[1] + 19], True, C, TM, [[PQ[t] + d for d in range(9)] for t in range(2)])
        g.stamp(14)
        get(41, aH3)
        get(42, aKT)
        g.poll([(H1, 4, 41, s(sKV2), 0)], s(sM1, 2), 6)
        g.setexec(s(sM2, 2))
        g(f'ds_write2_b32 {v(42)}, {v(H1)}, {v(H1 + 1)} offset0:0 offset1:1')
        g(f'ds_write_b32 {v(42)}, {v(H1 + 2)} offset:8')
        g.setexec(-1)
        for T in range(3):
            get(16 + T, aOA0 + T)
        g.barrier()
        g.stamp(15)
        for T in range(3):
            for kk in range(3):
                g(f'ds_read_b128 {a(72 + 12 * T + 4 * kk, 4)}, {v(16 + T)} offset:{16 * kk}')
        OD = [48, 60]
        for T in (2, 0, 1):
            for kk in range(3):
                for t in range(2):
                    d = v(OD[t] + 4 * T, 4)
                    g.mfma(d, a(72 + 12 * T + 4 * kk, 4), v(PQ[t] + 4 * kk, 4), d if kk else '0')
        get(20, aOS)
        get(21, aOE)
        RC = [22, 24]
        OP = [28, 32]
        OX = 36
        for t in range(2):
            g(f'v_add_f32 {v(RC[t])}, 0x358637bd, {v(OD[t] + 8)}')
        for t in range(2):
            g(f'v_rcp_f32 {v(RC[t])}, {v(RC[t])}')
        for t in range(2):
            g(f'v_mul_f32 {v(OD[t] + 9)}, {v(RC[t])}, {v(OD[t] + 9)}')
            g(f'v_mul_f32 {v(OD[t] + 10)}, {v(RC[t])}, {v(OD[t] + 10)}')
            g(f'v_cvt_pk_bf16_f32 {v(OX + t)}, {v(OD[t] + 9)}, {v(OD[t] + 10)}')
        for t in range(2):
            for k in range(4):
                g(f'v_pk_mul_f32 {v(OD[t] + 2 * k, 2)}, {v(OD[t] + 2 * k, 2)}, {v(RC[t], 2)} op_sel_hi:[1,0]')
            for k in range(4):
                g(f'v_cvt_pk_bf16_f32 {v(OP[t] + k)}, {v(OD[t] + 2 * k)}, {v(OD[t] + 2 * k + 1)}')
            g(f'buffer_store_dwordx4 {v(OP[t], 4)}, {v(20)}, {s(rWS, 4)}, {s(sOFB)} offen offset:{128 * t} sc1')
        g(f'v_permlane32_swap_b32 {v(OX)}, {v(OX + 1)}')
        g.setexec(0x0000ffff0000ffff)
        g(f'buffer_store_dwordx2 {v(OX, 2)}, {v(21)}, {s(rWS, 4)}, {s(sOFB)} offen sc1')
        g.setexec(-1)
        g(f's_lshl_b32 {s(T0)}, {s(sRB)}, 4')
        g(f's_add_u32 {s(T0)}, {s(T0)}, {s(sP)}')
        g(f's_lshl_b32 {s(T0)}, {s(T0)}, 7')
        g(f's_add_u32 {s(T0)}, {s(T0)}, {s(sFO)}')
        g.drain(lg=False)
        g.flag_store(T0)
        g.stamp(16)
        if g.opt.stop == 'o1':
            g.branch('s_branch', 'L_fin')
        X1, YY = 68, 78
        g(f's_cmp_lg_u32 {s(sLAY)}, 0')
        with g.skip_if('s_cbranch_scc1'):
            get(16, aX1)
            g(f's_mov_b32 {s(T1)}, {L.X1P}')
            for T in range(5):
                if T == 4:
                    g(f's_add_u32 {s(T1)}, {s(T1)}, 4096')
                o = 1024 * (T & 3)
                g(f'buffer_load_dwordx2 {v(X1 + 2 * T, 2)}, {v(16)}, {s(rWS, 4)}, {s(T1)} offen offset:{o} sc1')
        vWo1, vWo4, vWo5 = 6, 7, 8
        g(f'v_add_u32 {v(vWo1)}, {9 * 4608}, {v(vL16)}')
        get(vWo4, aW4)
        g(f'v_add_u32 {v(vWo5)}, {9 * 4608}, {v(vWo4)}')
        g(f'v_lshlrev_b32 {v(9)}, 8, {v(vG)}')
        g(f'v_lshl_add_u32 {v(9)}, {v(vI)}, 3, {v(9)}')

        def rdO(k, T):
            hi = k >= 9
            base = ((vL16, vWo1) if T < 4 else (vWo4, vWo5))[hi]
            off = (k - 9 * hi) * 4608 + (1024 * T if T < 4 else 0)
            g(f'ds_read_b128 {a(20 * (k % 3) + 4 * T, 4)}, {v(base)} offset:{off}')
        for k in range(2):
            for T in range(5):
                rdO(k, T)
        g(f'v_lshlrev_b32 {v(17)}, 7, {v(vI)}')
        g(f's_lshl_b32 {s(T0)}, {s(sRB2)}, 11')
        g(f's_add_u32 {s(T0)}, {s(T0)}, {s(sFO)}')
        g.poll([(18, 1, 17, s(T0), 0)], 0xffff, 7)
        g.stamp(17)
        OA = 112
        g(f's_lshl_b32 {s(T0)}, {s(sR64)}, 2')
        g(f's_add_u32 {s(T0)}, {s(T0)}, {s(sW)}')
        g(f's_mul_i32 {s(T0)}, {s(T0)}, 18432')
        g(f's_add_u32 {s(T0)}, {s(T0)}, {s(sOFB)}')
        def ldO(k):
            if k >= 18:
                return
            if k and k % 4 == 0:
                g(f's_add_u32 {s(T0)}, {s(T0)}, 4096')
            off = f' offset:{(k % 4) * 1024}' if k % 4 else ''
            if k < 16:
                g(f'buffer_load_dwordx4 {v(OA + 4 * k, 4)}, {v(vL16)}, {s(rWS, 4)}, {s(T0)} offen{off} sc1')
            else:
                for hf in range(2):
                    g(f'buffer_load_dwordx2 {v(OA + 4 * k + 2 * hf, 2)}, {v(9)}, {s(rWS, 4)}, {s(T0)} offen offset:{(k % 4) * 1024 + 128 * hf} sc1')
        NP2 = g.opt.np2
        for k in range(NP2):
            ldO(k)
        A2 = 48
        for k in range(18):
            for T in range(5):
                d = v(A2 + 4 * T, 4)
                g.mfma(d, a(20 * (k % 3) + 4 * T, 4), v(OA + 4 * k, 4), d if k else '0')
                if k + 2 < 18:
                    rdO(k + 2, T)
                if T == 0:
                    ldO(NP2 + k)
        g.stamp(18)
        g(f's_cmp_lg_u32 {s(sLAY)}, 0')
        g.branch('s_cbranch_scc1', 'L_last')
        g(f's_mov_b32 {s(T2)}, {L.YP}')
        for T in range(5):
            if T == 4:
                g(f's_add_u32 {s(T2)}, {s(T2)}, 4096')
            g(f'buffer_load_dwordx2 {v(YY + 2 * T, 2)}, {v(16)}, {s(rWS, 4)}, {s(T2)} offen offset:{1024 * (T & 3)} sc1')
        g.barrier()
        sDL, sDG = T4, T5
        g(f's_mul_i32 {s(sDL)}, {s(sW)}, {23 * 1024}')
        g(f's_mul_i32 {s(sDG)}, {s(sP)}, {L.WPSZ}')
        g(f's_add_u32 {s(sDG)}, {s(sDG)}, {s(sDL)}')
        g(f's_add_u32 {s(sDG)}, {s(sDG)}, {L.WP}')
        UX = 112
        for T in range(5):
            for d in range(2):
                g.unpack(UX + 4 * T + 2 * d, UX + 4 * T + 2 * d + 1, X1 + 2 * T + d)
        for k in range(10):
            g(f'v_pk_add_f32 {v(A2 + 2 * k, 2)}, {v(A2 + 2 * k, 2)}, {v(UX + 2 * k, 2)}')
        g.setexec(0xffffffff00000000)
        g(f'v_mov_b64 {v(A2 + 16, 2)}, 0')
        g(f'v_mov_b64 {v(A2 + 18, 2)}, 0')
        g.setexec(-1)
        SS, SQ = 8, 10
        g(f'v_pk_add_f32 {v(SS, 2)}, {v(A2, 2)}, {v(A2 + 2, 2)}')
        g(f'v_pk_mul_f32 {v(SQ, 2)}, {v(A2, 2)}, {v(A2, 2)}')
        g(f'v_pk_fma_f32 {v(SQ, 2)}, {v(A2 + 2, 2)}, {v(A2 + 2, 2)}, {v(SQ, 2)}')
        for k in range(2, 10):
            g(f'v_pk_add_f32 {v(SS, 2)}, {v(SS, 2)}, {v(A2 + 2 * k, 2)}')
            g(f'v_pk_fma_f32 {v(SQ, 2)}, {v(A2 + 2 * k, 2)}, {v(A2 + 2 * k, 2)}, {v(SQ, 2)}')
        SP = 12
        g(f'v_add_f32 {v(SP)}, {v(SS)}, {v(SS + 1)}')
        g(f'v_add_f32 {v(SP + 1)}, {v(SQ)}, {v(SQ + 1)}')
        get(16, aSTP)
        g(f'v_mov_b32 {v(SP + 3)}, {v(vTAG)}')
        g(f'v_mov_b32 {v(SP + 2)}, 0')
        g.xg_sum2(SP, SP + 1, 17)
        g.setexec(0xffff)
        hs = g(f'buffer_store_dwordx4 {v(SP, 4)}, {v(16)}, {s(rWS, 4)}, 0 offen sc1')
        g.setexec(-1)
        g.dma(sDL, sDG, 8)
        UY = 132
        for T in range(5):
            for d in range(2):
                g.unpack(UY + 4 * T + 2 * d, UY + 4 * T + 2 * d + 1, YY + 2 * T + d)
        get(16, aSTG)
        g(f's_movk_i32 {s(T0)}, 4096')
        g.wait_vm(hs)
        g.stamp(19)
        SA, SB = 20, 24
        g.poll([(SA, 4, 16, '0', 0), (SB, 4, 16, s(T0), 0)], -1, 8)
        g.stamp(20)
        g(f'v_pk_add_f32 {v(SA, 2)}, {v(SA, 2)}, {v(SB, 2)}')
        g.xg_sum2(SA, SA + 1, 17)
        g.ln_coef(SA, SA + 1, 8, 10)
        for k in range(10):
            g(f'v_pk_fma_f32 {v(UX + 2 * k, 2)}, {v(A2 + 2 * k, 2)}, {v(8, 2)}, {v(10, 2)} op_sel_hi:[1,0,0]')
        X3 = 28
        for k in range(10):
            g(f'v_pk_fma_f32 {v(UX + 2 * k, 2)}, {v(UX + 2 * k, 2)}, {v(UY + 2 * k, 2)}, {v(A2 + 2 * k, 2)}')
        for k in range(10):
            g(f'v_cvt_pk_bf16_f32 {v(X3 + k)}, {v(UX + 2 * k)}, {v(UX + 2 * k + 1)}')
        for k in range(10):
            keep(aKEEP + k, X3 + k)
        get(16, aX3)
        g(f's_mov_b32 {s(T0)}, {L.X3P}')
        g(f's_mov_b32 {s(T1)}, {L.X3P + 4096}')
        for pr in range(3):
            b = X3 + 4 * pr
            if pr < 2:
                g(f'v_mov_b64 {v(18, 2)}, {v(b, 2)}')
                for d in range(2):
                    g(f'v_mov_b32_dpp {v(b + d)}, {v(b + 2 + d)} row_ror:8 row_mask:0xf bank_mask:0xc')
                for d in range(2):
                    g(f'v_mov_b32_dpp {v(b + 2 + d)}, {v(18 + d)} row_ror:8 row_mask:0xf bank_mask:0x3')
                hx = g(f'buffer_store_dwordx4 {v(b, 4)}, {v(16)}, {s(rWS, 4)}, {s(T0)} offen offset:{2048 * pr} sc1')
            else:
                g(f'v_mov_b64 {v(b + 2, 2)}, 0')
                for d in range(2):
                    g(f'v_mov_b32_dpp {v(b + 2 + d)}, {v(b + d)} row_ror:8 row_mask:0xf bank_mask:0x3')
                g.setexec(0x00ff00ff)
                hx = g(f'buffer_store_dwordx4 {v(b, 4)}, {v(16)}, {s(rWS, 4)}, {s(T1)} offen sc1')
                g.setexec(-1)
        g(f's_add_u32 {s(sDL)}, {s(sDL)}, 4096')
        g(f's_add_u32 {s(sDG)}, {s(sDG)}, 4096')
        g.dma(sDL, sDG, 8)
        g(f's_lshl_b32 {s(T0)}, {s(sRB2)}, 4')
        g(f's_lshl_b32 {s(T1)}, {s(sCG)}, 1')
        g(f's_add_u32 {s(T0)}, {s(T0)}, {s(T1)}')
        g(f's_and_b32 {s(T1)}, {s(sW)}, 1')
        g(f's_add_u32 {s(T0)}, {s(T0)}, {s(T1)}')
        g(f's_lshl_b32 {s(T0)}, {s(T0)}, 7')
        g(f's_add_u32 {s(T0)}, {s(T0)}, {L.FX}')
        g.wait_vm(hx)
        g.flag_store(T0)
        g.stamp(21)
        g(f's_add_u32 {s(sDL)}, {s(sDL)}, 4096')
        g(f's_add_u32 {s(sDG)}, {s(sDG)}, 4096')
        g.dma(sDL, sDG, 7)
        if g.opt.stop == 'x3':
            g.branch('s_branch', 'L_fin')
        g(f's_mov_b32 {s(sLAY)}, 1')
        g(f's_mul_i32 {s(sXP)}, {s(sRB)}, 36864')
        g(f's_add_u32 {s(sXP)}, {s(sXP)}, {L.X3P}')
        g(f's_add_u32 {s(sOFB)}, {s(sOFB)}, {L.ARR}')
        g(f's_add_u32 {s(sKV1)}, {s(sKV1)}, {256 * 4096}')
        g(f's_add_u32 {s(sKV2)}, {s(sKV2)}, {16 * 4096}')
        g(f's_add_u32 {s(sFO)}, {s(sFO)}, {1024 * 128}')
        g(f'v_lshlrev_b32 {v(17)}, 7, {v(vI)}')
        g(f's_lshl_b32 {s(T0)}, {s(sRB)}, 11')
        g(f's_add_u32 {s(T0)}, {s(T0)}, {L.FX}')
        g.poll([(18, 1, 17, s(T0), 0)], 0xffff, 9)
        if g.opt.stamps:
            g(f'v_accvgpr_read_b32 v47, a255')
            g(f'v_accvgpr_write_b32 a254, v47')
        assert not g.vm and not g.lg
        g.branch('s_branch', 'L_layer')
        g.label('L_last')
        g.vm, g.lg = [], []
        for k in range(10):
            get(X1 + k, aKEEP + k)
        get(16, aOUT)
        for k in range(10):
            g.unpack(UX + 2 * k, UX + 2 * k + 1, X1 + k)
        for k in range(10):
            g(f'v_pk_add_f32 {v(A2 + 2 * k, 2)}, {v(A2 + 2 * k, 2)}, {v(UX + 2 * k, 2)}')
        for k in range(10):
            g(f'v_cvt_pk_bf16_f32 {v(X3 + k)}, {v(A2 + 2 * k)}, {v(A2 + 2 * k + 1)}')
        g(f'v_mov_b64 {v(X3 + 10, 2)}, 0')
        for pr in range(3):
            b = X3 + 4 * pr
            g(f'v_permlane16_swap_b32 {v(b)}, {v(b + 2)}')
            g(f'v_permlane16_swap_b32 {v(b + 1)}, {v(b + 3)}')
            if pr == 2:
                g.setexec(0xffff)
            g(f'buffer_store_dwordx4 {v(b, 4)}, {v(16)}, {s(rOUT, 4)}, 0 offen offset:{64 * pr}')
        g.setexec(-1)
        g.stamp(22)
        g.stamp(31, True)

    def finish(self):
        g = self
        g.label('L_fin')
        g.vm, g.lg = [], []
        if g.opt.stamps:
            g(f's_lshl_b32 {s(T0)}, {s(sWG)}, 2')
            g(f's_add_u32 {s(T0)}, {s(T0)}, {s(sW)}')
            g(f's_lshl_b32 {s(T0)}, {s(T0)}, 8')
            g(f's_add_u32 {s(T0)}, {s(T0)}, {L.STAMP}')
            g('v_accvgpr_read_b32 v6, a255')
            g('v_accvgpr_read_b32 v7, a254')
            g(f'v_lshlrev_b32 v8, 2, {v(vLANE)}')
            g.setexec(0xffffffff)
            g(f'buffer_store_dword v6, v8, {s(rWS, 4)}, {s(T0)} offen offset:128')
            g(f'buffer_store_dword v7, v8, {s(rWS, 4)}, {s(T0)} offen')
            g.setexec(-1)
        g(f's_or_b32 {s(T0)}, {s(sWG)}, {s(sW)}')
        g(f's_cmp_lg_u32 {s(T0)}, 0')
        with g.skip_if('s_cbranch_scc1'):
            g(f's_mov_b32 {s(T0)}, {L.E}')
            g.flag_store(T0)
        g.label('L_end')
        g('s_endpgm')

    def build(self):
        g = self
        g.prologue()
        st = g.state()
        g(f's_cmp_ge_u32 {s(sWG)}, 208')
        g.branch('s_cbranch_scc1', 'L_role_w')
        g(f's_cmp_ge_u32 {s(sWG)}, 144')
        g.branch('s_cbranch_scc1', 'L_role_q')
        g.vtmp_stamp = 250
        g.role_conv()
        g.vtmp_stamp = 47
        stc, lf = g.state(), g.last_flag
        g.branch('s_branch', 'L_main')
        g.label('L_role_q')
        g.set_state(st)
        g.role_q()
        g.branch('s_branch', 'L_main_nc')
        g.label('L_role_w')
        g.set_state(st)
        g.role_w()
        g.vtmp_stamp = 47
        g.label('L_main_nc')
        g.vm, g.lg = [], []
        g.w_first_half()
        g.label('L_main')
        g.set_state(stc)
        g.last_flag = lf
        g.main()
        g.finish()


HEADER = '''; Persistent single-launch kernel: H3 long-conv (MFMA Hankel form) + two Hedgehog linear-attention layers.
; @launch grid=(256,1,1) block=(256,1,1) lds={lds}
.amdgcn_target "amdgcn-amd-amdhsa--gfx950"
.text
.globl {name}_kernel
.p2align 8
.type {name}_kernel,@function
{name}_kernel:
'''
FOOTER = '''.section .rodata,"a"
.p2align 6
.amdhsa_kernel {name}_kernel
  .amdhsa_next_free_vgpr 512
  .amdhsa_next_free_sgpr 102
  .amdhsa_accum_offset 256
  .amdhsa_group_segment_fixed_size 0
  .amdhsa_kernarg_size 104
  .amdhsa_user_sgpr_count 2
  .amdhsa_user_sgpr_kernarg_segment_ptr 1
  .amdhsa_system_sgpr_workgroup_id_x 1
  .amdhsa_float_denorm_mode_32 3
.end_amdhsa_kernel
'''


def generate(opt):
    k = K(opt)
    k.build()
    sys.stderr.write(f'instructions {k.stats["n"]} nop-states {k.stats["nop"]} maxv {k.maxv} maxa {k.maxa} maxs {k.maxs}\n')
    return HEADER.format(name=NAME, lds=L.LDS_SIZE) + k.text() + FOOTER.format(name=NAME)


if __name__ == '__main__':
    ap = argparse.ArgumentParser()
    ap.add_argument('-o', default=f'cdna_kernels/{NAME}.s')
    ap.add_argument('--stamps', action='store_true')
    ap.add_argument('--dbg', action='store_true')
    ap.add_argument('--stop', default='')
    ap.add_argument('--prewait', type=int, default=1)
    ap.add_argument('--npre', type=int, default=8)
    ap.add_argument('--np2', type=int, default=8)
    ap.add_argument('--wo_every', type=int, default=13)
    opt = ap.parse_args()
    open(opt.o, 'w').write(generate(opt))
```

```python
import sys
import argparse
from asmgen import Gen, v, a, s
import layout as L

NAME = 'interleave_layers__ssm_conv_h3__linear_kernel_hedgehog__prompt'

sWG, sW, sTAG = 2, 3, 4
T0, T1, T2, T3, T4, T5, T6, T7 = 5, 6, 7, 8, 9, 10, 11, 12
pQ, pK, pV, pSH, pSK, pSD, pBX, pWQ = 16, 18, 20, 22, 24, 26, 28, 30
pPH, pWO, pOUT, pDBG, pWS = 32, 34, 36, 38, 40
sCNT, sLAY = 42, 43
rWS, rA, rB, rC, rD, rOUT = 44, 48, 52, 56, 60, 64
sR128, sP, sR64, sCG, sRB, sRB2 = 68, 69, 70, 71, 72, 73
sM0, sM1, sM2, sM3 = 74, 76, 78, 80
sMA, sMB = 82, 84
sXP, sOFB, sKV1, sKV2, sFO = 86, 87, 88, 89, 90
sBL, sBG = 91, 92
sSTP = 98
vTID, vLANE, vI, vG, vL16, vTAG = 0, 1, 2, 3, 4, 5
POLL_LIMIT = 40000
MASKHI = '0xffff0000'


class K(Gen):
    def __init__(self, opt):
        super().__init__()
        self.opt = opt
        self.nstamp = 0
        self.last_flag = None

    def srd(self, r, ptr, size):
        self(f's_mov_b64 {s(r, 2)}, {s(ptr, 2)}')
        self(f's_mov_b32 {s(r + 2)}, {size}')
        self(f's_mov_b32 {s(r + 3)}, 0x20000')

    def stamp(self, k, cyc=False):
        if not self.opt.stamps:
            return
        self(f's_memtime {s(sSTP, 2)}' if cyc else f's_memrealtime {s(sSTP, 2)}')
        self.drain(vm=False)
        self(f'v_accvgpr_read_b32 v{self.vtmp_stamp}, a255')
        self(f'v_writelane_b32 v{self.vtmp_stamp}, {s(sSTP)}, {k}')
        self(f'v_accvgpr_write_b32 a255, v{self.vtmp_stamp}')

    vtmp_stamp = 47

    def unpack(self, dlo, dhi, src):
        self(f'v_lshlrev_b32 {v(dlo)}, 16, {v(src)}')
        self(f'v_and_b32 {v(dhi)}, {MASKHI}, {v(src)}')

    def make_tag(self):
        self(f'v_readfirstlane_b32 {s(sTAG)}, {v(vTAG)}')
        self(f's_mul_i32 {s(sTAG)}, {s(sTAG)}, {hex(L.TAGA)}')
        self(f's_add_u32 {s(sTAG)}, {s(sTAG)}, {hex(L.TAGC)}')
        self(f's_or_b32 {s(sTAG)}, {s(sTAG)}, 1')
        self(f'v_mov_b32 {v(vTAG)}, {s(sTAG)}')

    def setexec(self, m):
        if isinstance(m, int):
            m &= (1 << 64) - 1
            lo, hi = m & 0xffffffff, m >> 32
            if m == (1 << 64) - 1:
                self('s_mov_b64 exec, -1')
            elif hi == 0 and lo <= 64:
                self(f's_mov_b64 exec, {lo}')
            else:
                self(f's_mov_b32 exec_lo, {hex(lo)}')
                self(f's_mov_b32 exec_hi, {hex(hi)}')
        else:
            self(f's_mov_b64 exec, {m}')

    def flag_store(self, soff):
        self.setexec(0xff)
        h = self(f'buffer_store_dwordx4 {v(vTAG - 3, 4)}, {v(vL16)}, {s(rWS, 4)}, {s(soff)} offen sc1')
        self.setexec(-1)
        self.last_flag = h
        return h

    def poll(self, loads, mask, code):
        lp, done = self.newlabel('poll'), self.newlabel('polld')
        if self.opt.prewait:
            self.wait_vm(self.last_flag)
        self.setexec(mask)
        self(f's_mov_b32 {s(sCNT)}, {POLL_LIMIT}')
        self.label(lp)
        for dst, n, voff, soff, imm in loads:
            op = {1: 'buffer_load_dword', 4: 'buffer_load_dwordx4'}[n]
            imm += 12 if n == 1 else 0
            off = f' offset:{imm}' if imm else ''
            self(f'{op} {v(dst, n)}, {v(voff)}, {s(rWS, 4)}, {soff} offen{off} sc1')
        self.drain(lg=False)
        dst, n = loads[0][:2]
        self(f'v_cmp_ne_u32 vcc, {s(sTAG)}, {v(dst + n - 1)}')
        for dst, n, *_ in loads[1:]:
            self(f'v_cmp_ne_u32 {s(sMA, 2)}, {s(sTAG)}, {v(dst + n - 1)}')
            self(f's_or_b64 vcc, vcc, {s(sMA, 2)}')
        self.branch('s_cbranch_vccz', done)
        self('s_mov_b64 exec, vcc')
        if self.opt.sleep:
            self(f's_sleep {self.opt.sleep}')
        self(f's_sub_u32 {s(sCNT)}, {s(sCNT)}, 1')
        self.branch('s_cbranch_scc0', lp)
        if self.opt.dbg:
            self.srd(rD, pDBG, 256)
            self(f'v_mov_b32 v{self.vtmp_stamp}, {code + 1}')
            self(f'buffer_store_dword v{self.vtmp_stamp}, off, {s(rD, 4)}, 0 offset:{4 * code}')
            self.drain(lg=False)
        self.label(done)
        self.setexec(-1)

    def dma(self, lds_base_s, soff_s, n, voff=vL16, srd=rWS, sc1=True):
        h = None
        for i in range(n):
            if i % 4 == 0:
                if i:
                    self(f's_add_u32 {s(lds_base_s)}, {s(lds_base_s)}, 4096')
                    self(f's_add_u32 {s(soff_s)}, {s(soff_s)}, 4096')
                self(f's_mov_b32 m0, {s(lds_base_s)}')
            off = f' offset:{(i % 4) * 1024}' if i % 4 else ''
            h = self(f'buffer_load_dwordx4 {v(voff)}, {s(srd, 4)}, {s(soff_s)} offen{off}{" sc1" if sc1 else ""} lds')
        return h

    def dma_items(self, n, voff=vL16, srd=rWS, sc1=True, stride=4096, gate=None):
        def item(i):
            def f():
                if i % 4 == 0:
                    self(f's_mov_b32 m0, {s(sBL)}')
                off = f' offset:{(i % 4) * 1024}' if i % 4 else ''
                if gate is not None:
                    self.setexec(s(gate, 2))
                    self.cond_depth += 1
                self.last_dma = self(f'buffer_load_dwordx4 {v(voff)}, {s(srd, 4)}, {s(sBG)} offen{off}{" sc1" if sc1 else ""} lds')
                if gate is not None:
                    self.cond_depth -= 1
                    self.setexec(-1)
                if i % 4 == 3:
                    self(f's_add_u32 {s(sBL)}, {s(sBL)}, {stride}')
                    self(f's_add_u32 {s(sBG)}, {s(sBG)}, {stride}')
            return f
        return [item(i) for i in range(n)]

    def poll_issue(self, dst, voff, soff, mask):
        self.setexec(mask)
        self(f'buffer_load_dword {v(dst)}, {v(voff)}, {s(rWS, 4)}, {soff} offen offset:12 sc1')
        self.setexec(-1)

    def poll_finish(self, dst, voff, soff, mask, code, n=1):
        if mask != -1:
            self.setexec(mask)
        self(f'v_cmp_ne_u32 vcc, {s(sTAG)}, {v(dst + n - 1)}')
        if mask != -1:
            self.setexec(-1)
        with self.skip_if('s_cbranch_vccz'):
            self.poll([(dst, n, voff, soff, 0)], 'vcc', code)

    def xg_sum2(self, x, y, t):
        self(f'v_permlane16_swap_b32 {v(x)}, {v(y)}')
        self(f'v_add_f32 {v(x)}, {v(x)}, {v(y)}')
        self(f'v_mov_b32 {v(y)}, {v(x)}')
        self(f'v_permlane32_swap_b32 {v(x)}, {v(y)}')
        self(f'v_add_f32 {v(x)}, {v(x)}, {v(y)}')
        self(f'v_mov_b32 {v(y)}, {v(x)}')
        self(f'v_permlane16_swap_b32 {v(x)}, {v(y)}')

    def mfma(self, d, A, B, c):
        self(f'v_mfma_f32_16x16x32_bf16 {d}, {A}, {B}, {c}')

    def prologue(self):
        g = self
        g(f's_cmp_ge_u32 {s(sWG)}, 256')
        g.branch('s_cbranch_scc1', 'L_end')
        g(f's_load_dwordx16 {s(16, 16)}, s[0:1], 0')
        g(f's_load_dwordx8 {s(32, 8)}, s[0:1], 64')
        g(f's_load_dwordx2 {s(40, 2)}, s[0:1], 96')
        g(f'v_lshrrev_b32 v6, 6, {v(vTID)}')
        g(f'v_and_b32 {v(vLANE)}, 63, {v(vTID)}')
        g(f'v_readfirstlane_b32 {s(sW)}, v6')
        g(f'v_and_b32 {v(vI)}, 15, {v(vTID)}')
        g(f'v_lshrrev_b32 {v(vG)}, 4, {v(vLANE)}')
        g(f'v_lshlrev_b32 {v(vL16)}, 4, {v(vLANE)}')
        if g.opt.stamps:
            g('v_accvgpr_write_b32 a255, 0')
        g.srd(rWS, pWS, L.WSSZ)
        g(f'buffer_load_dword {v(vTAG)}, off, {s(rWS, 4)}, 0 offset:12 sc1')
        g.stamp(0)
        g.stamp(30, True)
        g(f's_and_b32 {s(T0)}, {s(sWG)}, 7')
        g(f's_lshr_b32 {s(T1)}, {s(sWG)}, 7')
        g(f's_lshl_b32 {s(T0)}, {s(T0)}, 1')
        g(f's_add_u32 {s(sR128)}, {s(T0)}, {s(T1)}')
        g(f's_bfe_u32 {s(sP)}, {s(sWG)}, 0x40003')
        g(f's_lshr_b32 {s(T0)}, {s(sP)}, 3')
        g(f's_lshl_b32 {s(sR64)}, {s(sR128)}, 1')
        g(f's_add_u32 {s(sR64)}, {s(sR64)}, {s(T0)}')
        g(f's_and_b32 {s(sCG)}, {s(sP)}, 7')
        g(f's_lshl_b32 {s(sRB)}, {s(sR128)}, 2')
        g(f's_add_u32 {s(sRB)}, {s(sRB)}, {s(sW)}')
        g(f's_lshr_b32 {s(T0)}, {s(sW)}, 1')
        g(f's_lshl_b32 {s(sRB2)}, {s(sR64)}, 1')
        g(f's_add_u32 {s(sRB2)}, {s(sRB2)}, {s(T0)}')
        g.srd(rOUT, pOUT, L.ARR)

    def role_conv(self):
        g = self
        vOK, vOA, vO2 = 6, 7, 48
        RK, RV, RW = 8, 30, 50
        UK, UW, UV, KS, OUT = 58, 102, 118, 150, 156
        sGam, sMu, sCh, sLB = T4, T5, T6, T7
        g.srd(rA, pK, L.ARR)
        g.srd(rB, pV, L.ARR)
        g.srd(rD, pSH, 576 * 8)
        g(f's_lshr_b32 {s(sGam)}, {s(sWG)}, 4')
        g(f's_and_b32 {s(sMu)}, {s(sWG)}, 15')
        g(f's_lshl_b32 {s(T0)}, {s(sMu)}, 7')
        g(f's_lshl_b32 {s(T1)}, {s(sW)}, 5')
        g(f's_add_u32 {s(T0)}, {s(T0)}, {s(T1)}')
        g(f's_mul_i32 {s(T1)}, {s(T0)}, 1152')
        g(f's_lshl_b32 {s(T2)}, {s(sGam)}, 7')
        g(f's_add_u32 {s(T1)}, {s(T1)}, {s(T2)}')
        g(f'v_mul_u32_u24 {v(vOK)}, 9216, {v(vG)}')
        g(f'v_lshl_add_u32 {v(vOK)}, {v(vI)}, 3, {v(vOK)}')
        g(f'v_add_u32 {v(vOK)}, {s(T1)}, {v(vOK)}')
        g(f'v_subrev_u32 {v(vOA)}, 3456, {v(vOK)}')
        g(f's_lshl_b32 {s(T2)}, {s(sGam)}, 9')
        g(f'v_lshlrev_b32 {v(vO2)}, 5, {v(vI)}')
        g(f's_movk_i32 {s(T3)}, 4608')
        g(f'buffer_load_dwordx4 {v(RW, 4)}, {v(vO2)}, {s(rD, 4)}, {s(T2)} offen')
        g(f'buffer_load_dwordx4 {v(RW + 4, 4)}, {v(vO2)}, {s(rD, 4)}, {s(T2)} offen offset:16')
        for j in range(11):
            if j < 3:
                g(f'buffer_load_dwordx2 {v(RK + 2 * j, 2)}, {v(vOA)}, {s(rA, 4)}, 0 offen offset:{1152 * j}')
            else:
                jj = j - 3
                so = '0' if jj < 4 else s(T3)
                g(f'buffer_load_dwordx2 {v(RK + 2 * j, 2)}, {v(vOK)}, {s(rA, 4)}, {so} offen offset:{1152 * (jj % 4)}')
        for j in range(8):
            so = '0' if j < 4 else s(T3)
            g(f'buffer_load_dwordx2 {v(RV + 2 * j, 2)}, {v(vOK)}, {s(rB, 4)}, {so} offen offset:{1152 * (j % 4)}')
        vK0, vDv, vS2 = 46, 172, 49
        g.srd(rC, pSK, L.ARR)
        g(f's_lshl_b32 {s(sCh)}, {s(sWG)}, 2')
        g(f's_add_u32 {s(sCh)}, {s(sCh)}, {s(sW)}')
        g(f's_mul_i32 {s(sLB)}, {s(sW)}, {L.CONVW}')
        g(f's_add_u32 {s(sLB)}, {s(sLB)}, {L.L_CONV}')
        g(f's_lshl_b32 {s(T2)}, {s(sCh)}, 12')
        g(f'v_lshlrev_b32 {v(vS2)}, 6, {v(vLANE)}')
        g(f'buffer_load_ushort {v(vK0)}, {v(vS2)}, {s(rC, 4)}, {s(T2)} offen')
        g.srd(rD, pSD, 1152)
        g(f's_lshl_b32 {s(T2)}, {s(sCh)}, 1')
        g(f'buffer_load_ushort {v(vDv)}, off, {s(rD, 4)}, {s(T2)}')
        g(f's_lshl_b32 {s(T2)}, {s(sCh)}, 7')
        g(f's_add_u32 {s(T2)}, {s(T2)}, {L.FT}')
        g.clear_line(T2)
        vOU = vOA
        g(f's_lshl_b32 {s(T2)}, {s(sGam)}, 18')
        g(f's_lshl_b32 {s(T0)}, {s(T0)}, 1')
        g(f's_sub_u32 {s(T2)}, {s(T2)}, {s(T0)}')
        g(f's_add_u32 {s(T2)}, {s(T2)}, {L.UR + 4080}')
        g(f'v_lshlrev_b32 {v(vOU)}, 14, {v(vI)}')
        g(f'v_lshlrev_b32 {v(vO2)}, 4, {v(vG)}')
        g(f'v_sub_u32 {v(vOU)}, {v(vOU)}, {v(vO2)}')
        g(f'v_add_u32 {v(vOU)}, {s(T2)}, {v(vOU)}')
        for cc in range(4):
            for dd in range(2):
                b = UW + 8 * (cc >> 1) + (cc & 1)
                g.unpack(b + 4 * dd, b + 4 * dd + 2, RW + 2 * cc + dd)
        g.stamp(1)
        for j in range(11):
            for P in range(2):
                g.unpack(UK + 4 * j + 2 * P, UK + 4 * j + 2 * P + 1, RK + 2 * j + P)
        for j in range(8):
            for P in range(2):
                g.unpack(UV + 4 * j + 2 * P, UV + 4 * j + 2 * P + 1, RV + 2 * j + P)
            for P in range(2):
                g(f'v_pk_mul_f32 {v(KS + 2 * P, 2)}, {v(UK + 4 * (j + 3) + 2 * P, 2)}, {v(UW + 8 * P, 2)}')
            for aa in range(1, 4):
                for P in range(2):
                    g(f'v_pk_fma_f32 {v(KS + 2 * P, 2)}, {v(UK + 4 * (j + 3 - aa) + 2 * P, 2)}, {v(UW + 8 * P + 2 * aa, 2)}, {v(KS + 2 * P, 2)}')
            for P in range(2):
                g(f'v_pk_mul_f32 {v(UV + 4 * j + 2 * P, 2)}, {v(UV + 4 * j + 2 * P, 2)}, {v(KS + 2 * P, 2)}')
        for cc in range(4):
            for d in range(4):
                g(f'v_cvt_pk_bf16_f32 {v(OUT + 4 * cc + d)}, {v(UV + 4 * (7 - 2 * d) + cc)}, {v(UV + 4 * (6 - 2 * d) + cc)}')
            g(f's_movk_i32 {s(T2)}, {4096 * cc}')
            g(f'buffer_store_dwordx4 {v(OUT + 4 * cc, 4)}, {v(vOU)}, {s(rWS, 4)}, {s(T2)} offen sc1')
        g.make_tag()
        g(f's_lshl_b32 {s(T3)}, {s(sCh)}, 7')
        g(f's_add_u32 {s(T3)}, {s(T3)}, {L.FT}')
        g(f'v_add_u32 {v(vS2)}, 2, {v(vL16)}')
        g(f'v_readfirstlane_b32 {s(T1)}, {v(vK0)}')
        g.drain(lg=False)
        g.flag_store(T3)
        g.stamp(2)
        g(f's_lshl_b32 {s(T2)}, {s(sCh)}, 12')
        g(f's_add_u32 {s(T3)}, {s(sLB)}, {4608 + 32}')
        g.dma(T3, T2, 4, srd=rC, sc1=False)
        g(f's_add_u32 {s(T3)}, {s(sLB)}, {4608 + 4160 + 32}')
        hK = g.dma(T3, T2, 4, voff=vS2, srd=rC, sc1=False)
        g(f'v_mov_b32 {v(vK0)}, {s(T1)}')
        if g.opt.clear:
            g(f'v_mov_b64 {v(176, 2)}, 0')
            g(f'v_mov_b64 {v(178, 2)}, 0')
            g(f's_mul_i32 {s(T3)}, {s(sW)}, 144')
            g(f's_add_u32 {s(T3)}, {s(T3)}, {s(sWG)}')
            g(f's_lshl_b32 {s(T3)}, {s(T3)}, 7')
            g(f's_add_u32 {s(T3)}, {s(T3)}, {L.FC}')
            g.setexec(0xff)
            g(f'buffer_store_dwordx4 {v(176, 4)}, {v(vL16)}, {s(rWS, 4)}, {s(T3)} offen sc1')
            g.setexec(-1)
        vT, vZ, vUB, vKA = 6, 8, 10, 12
        g(f'v_mov_b64 {v(vZ, 2)}, 0')
        g(f'v_lshl_add_u32 {v(vT)}, {v(vLANE)}, 3, {s(sLB)}')
        g(f'ds_write_b64 {v(vT)}, {v(vZ, 2)} offset:4096')
        g(f'v_and_b32 {v(vT)}, 7, {v(vLANE)}')
        g(f'v_lshrrev_b32 {v(vT + 1)}, 3, {v(vLANE)}')
        g(f'v_mul_u32_u24 {v(vT + 1)}, 4160, {v(vT + 1)}')
        g(f'v_lshl_add_u32 {v(vT)}, {v(vT)}, 2, {v(vT + 1)}')
        g(f'v_add_u32 {v(vT)}, {s(sLB)}, {v(vT)}')
        g(f'v_lshlrev_b32 {v(vK0)}, 16, {v(vK0)}')
        g(f'v_cmp_eq_u32 vcc, 15, {v(vLANE)}')
        g(f'v_cndmask_b32 {v(vK0)}, 0, {v(vK0)}, vcc')
        g.setexec(0xffff)
        g(f'ds_write_b32 {v(vT)}, {v(vK0)} offset:4608')
        g.setexec(-1)
        g(f'v_lshlrev_b32 {v(vT)}, 5, {v(vI)}')
        g(f'v_lshlrev_b32 {v(vT + 1)}, 4, {v(vG)}')
        g(f'v_sub_u32 {v(vUB)}, {v(vT + 1)}, {v(vT)}')
        g(f's_add_u32 {s(T2)}, {s(sLB)}, 480')
        g(f'v_add_u32 {v(vUB)}, {s(T2)}, {v(vUB)}')
        g(f'v_and_b32 {v(vT)}, 1, {v(vI)}')
        g(f'v_cmp_eq_u32 vcc, 1, {v(vT)}')
        g(f'v_mov_b32 {v(vKA + 1)}, 4160')
        g(f'v_cndmask_b32 {v(vKA)}, {v(vKA + 1)}, 2, vcc' if False else f'v_mov_b32 {v(vKA + 2)}, 2')
        g(f'v_cndmask_b32 {v(vKA)}, {v(vKA + 1)}, {v(vKA + 2)}, vcc')
        g(f'v_lshl_add_u32 {v(vKA)}, {v(vI)}, 1, {v(vKA)}')
        g(f'v_add_u32 {v(vKA)}, {v(vT + 1)}, {v(vKA)}')
        g(f's_add_u32 {s(T2)}, {s(sLB)}, 4608')
        g(f'v_add_u32 {v(vKA)}, {s(T2)}, {v(vKA)}')
        for b in range(1, 4):
            g(f'v_add_u32 {v(vKA + b)}, {1024 * b}, {v(vKA)}')

        def rdA(e, dst):
            b, ee = e >> 4, e & 15
            g(f'ds_read2_b32 {a(dst, 2)}, {v(vKA + b)} offset0:{16 * ee} offset1:{16 * ee + 1}')
            g(f'ds_read2_b32 {a(dst + 2, 2)}, {v(vKA + b)} offset0:{16 * ee + 2} offset1:{16 * ee + 3}')

        def rdB(m, rho, dst):
            g(f'ds_read_b128 {a(dst, 4)}, {v(vUB)} offset:{3584 - 512 * m + 64 * rho}')

        AS = lambda rho, aa: 64 * (rho & 1) + 4 * aa
        BS = lambda rho, m: 64 * (rho & 1) + 32 + 4 * m
        vAD = 16
        g(f'v_lshlrev_b32 {v(vT)}, 3, {v(vG)}')
        g(f'v_add_u32 {v(vT)}, {v(vT)}, {v(vI)}')
        g(f'v_sub_u32 {v(vT)}, 15, {v(vT)}')
        g(f'v_lshlrev_b32 {v(vT + 1)}, 16, {v(vDv)}')
        for d in range(4):
            g(f'v_cmp_eq_u32 vcc, {2 * d}, {v(vT)}')
            g(f'v_cndmask_b32 {v(vAD + d)}, 0, {v(vDv)}, vcc')
            g(f'v_cmp_eq_u32 vcc, {2 * d + 1}, {v(vT)}')
            g(f'v_cndmask_b32 {v(vAD + d)}, {v(vAD + d)}, {v(vT + 1)}, vcc')
        vF, vFO = 20, 21
        g(f'v_lshlrev_b32 {v(vFO)}, 7, {v(vLANE)}')
        g(f's_lshl_b32 {s(T2)}, {s(sGam)}, 13')
        g(f's_add_u32 {s(T2)}, {s(T2)}, {L.FT}')
        g.poll([(vF, 1, vFO, s(T2), 0)], -1, 0)
        g.stamp(3)
        g(f's_lshl_b32 {s(T2)}, {s(sCh)}, 12')
        g(f's_add_u32 {s(T2)}, {s(T2)}, {L.UR}')
        g(f's_mov_b32 {s(T3)}, {s(sLB)}')
        g.dma(T3, T2, 4)
        for aa in range(8):
            rdA(8 * aa, AS(0, aa))
        vPO, vYW, vYR = 22, 23, 24
        g(f's_mul_i32 {s(T2)}, {s(sW)}, {16 * 36864}')
        g(f's_lshl_b32 {s(T3)}, {s(sWG)}, 8')
        g(f's_add_u32 {s(T2)}, {s(T2)}, {s(T3)}')
        g(f'v_mul_u32_u24 {v(vPO)}, {2 * 36864}, {v(vG)}')
        g(f'v_lshl_add_u32 {v(vPO)}, {v(vI)}, 4, {v(vPO)}')
        g(f'v_add_u32 {v(vPO)}, {s(T2)}, {v(vPO)}')
        g(f'v_lshlrev_b32 {v(vYW)}, 5, {v(vI)}')
        g(f'v_lshl_add_u32 {v(vYW)}, {v(vG)}, 3, {v(vYW)}')
        g(f'v_add_u32 {v(vYW)}, {s(sLB)}, {v(vYW)}')
        g(f'v_bfe_u32 {v(vT)}, {v(vLANE)}, 2, 2')
        g(f'v_mul_u32_u24 {v(vYR)}, {L.CONVW}, {v(vT)}')
        g(f'v_and_b32 {v(vT)}, 3, {v(vLANE)}')
        g(f'v_lshl_add_u32 {v(vYR)}, {v(vT)}, 3, {v(vYR)}')
        g(f'v_lshl_add_u32 {v(vYR)}, {v(vG)}, 7, {v(vYR)}')
        g(f's_lshl_b32 {s(T2)}, {s(sW)}, 10')
        g(f's_add_u32 {s(T2)}, {s(T2)}, {L.L_CONV}')
        g(f'v_add_u32 {v(vYR)}, {s(T2)}, {v(vYR)}')
        g(f'v_lshlrev_b32 {v(vFO)}, 7, {v(vI)}')
        g(f's_lshl_b32 {s(T0)}, {s(sW)}, 11')
        g(f's_add_u32 {s(T0)}, {s(T0)}, {L.FQ}')
        vFW, vSO = 25, 26
        g(f's_lshl_b32 {s(T2)}, {s(sW)}, 12')
        g(f'v_lshlrev_b32 {v(vSO)}, 9, {v(vG)}')
        g(f'v_lshl_add_u32 {v(vSO)}, {v(vI)}, 4, {v(vSO)}')
        g(f'v_add_u32 {v(vSO)}, {s(T2)}, {v(vSO)}')
        g(f'v_lshlrev_b32 {v(vFW)}, 11, {v(vLANE)}')
        g(f's_lshl_b32 {s(T1)}, {s(sP)}, 7')
        g(f's_add_u32 {s(T1)}, {s(T1)}, {L.FW}')
        g.w_dma_setup()
        g.drain(lg=False)
        g.stamp(4)
        ACC = 32
        X0, N0 = 64, 80
        for m in range(8):
            rdB(m, 0, BS(0, m))
        for q in range(8):
            g.mfma(v(ACC + 4 * q, 4), v(vAD, 4), a(BS(0, q), 4), '0')
        for rho in range(8):
            nxt = []
            if rho < 7:
                for i in range(8):
                    nxt.append(lambda i=i: rdB(i, rho + 1, BS(rho + 1, i)))
                    nxt.append(lambda i=i: rdA(rho + 1 + 8 * i, AS(rho + 1, i)))
            if rho == 3:
                g.poll_issue(vF, vFO, s(T0), 0xffff)
            if rho == 6:
                g.poll_issue(vF, vFW, s(T1), 7)
            if rho == 5:
                g.poll_finish(vF, vFO, s(T0), 0xffff, 1)
                for j in range(4):
                    o = (8 * (j >> 1) + (j & 1)) * 36864
                    g(f's_mov_b32 {s(T2)}, {L.X0P + o}')
                    g(f'buffer_load_dwordx4 {v(X0 + 4 * j, 4)}, {v(vPO)}, {s(rWS, 4)}, {s(T2)} offen sc1')
                    g(f's_mov_b32 {s(T2)}, {L.N0P + o // 144}')
                    g(f'buffer_load_dwordx4 {v(N0 + 4 * j, 4)}, {v(vSO)}, {s(rWS, 4)}, {s(T2)} offen sc1')
            n = 0
            for aa in range(8):
                for q in range(aa, 8):
                    g.mfma(v(ACC + 4 * q, 4), a(AS(rho, aa), 4), a(BS(rho, q - aa), 4), v(ACC + 4 * q, 4))
                    if n % 2 == 0 and nxt:
                        nxt.pop(0)()
                    n += 1
            assert not nxt
        g.stamp(5)
        g.setexec(7)
        g(f'v_cmp_ne_u32 vcc, {s(sTAG)}, {v(vF)}')
        g.setexec(-1)
        g('s_cmp_eq_u64 vcc, 0')
        g(f's_cselect_b64 {s(sM3, 2)}, -1, 0')
        items = g.dma_items(16, stride=16384, gate=sM3)
        g.bg_start(items[:8], 18)
        YP_, YG, TMP, XO = 96, 112, 128, 152
        for q in range(8):
            g(f'v_cvt_pk_bf16_f32 {v(YP_ + 2 * q)}, {v(ACC + 4 * q)}, {v(ACC + 4 * q + 1)}')
            g(f'v_cvt_pk_bf16_f32 {v(YP_ + 2 * q + 1)}, {v(ACC + 4 * q + 2)}, {v(ACC + 4 * q + 3)}')
            g(f'ds_write_b64 {v(vYW)}, {v(YP_ + 2 * q, 2)} offset:{512 * q}')
        U2 = 176

        def prep(j):
            for d in range(4):
                t = U2 + 16 * j + 4 * d
                g.unpack(t + 2, t + 3, X0 + 4 * j + d)
            for d in range(4):
                t = U2 + 16 * j + 4 * d
                c = N0 + 4 * j + 2 * (d >> 1)
                g(f'v_pk_fma_f32 {v(t, 2)}, {v(t + 2, 2)}, {v(c, 2)}, {v(c, 2)} op_sel:[0,0,1] op_sel_hi:[1,0,1]')
        prep(0)
        prep(1)
        g.barrier()
        for j in range(4):
            o = (8 * (j >> 1) + (j & 1)) * 64
            g(f'ds_read_b64_tr_b16 {v(YG + 4 * j, 2)}, {v(vYR)} offset:{o}')
            g(f'ds_read_b64_tr_b16 {v(YG + 4 * j + 2, 2)}, {v(vYR)} offset:{o + 32}')
        prep(2)
        prep(3)
        for j in range(4):
            o = (8 * (j >> 1) + (j & 1)) * 36864
            for d in range(4):
                g.unpack(TMP + 2 * d, TMP + 2 * d + 1, YG + 4 * j + d)
            for d in range(4):
                t = U2 + 16 * j + 4 * d
                g(f'v_pk_fma_f32 {v(t, 2)}, {v(TMP + 2 * d, 2)}, {v(t, 2)}, {v(t + 2, 2)}')
            for d in range(4):
                t = U2 + 16 * j + 4 * d
                g(f'v_cvt_pk_bf16_f32 {v(XO + 4 * j + d)}, {v(t)}, {v(t + 1)}')
            g(f's_mov_b32 {s(T2)}, {L.X1P + o}')
            hx = g(f'buffer_store_dwordx4 {v(XO + 4 * j, 4)}, {v(vPO)}, {s(rWS, 4)}, {s(T2)} offen sc1')
        g.bg_flush()
        for it in items[8:]:
            it()
        g(f's_mul_i32 {s(T3)}, {s(sW)}, 144')
        g(f's_add_u32 {s(T3)}, {s(T3)}, {s(sWG)}')
        g(f's_lshl_b32 {s(T3)}, {s(T3)}, 7')
        g(f's_add_u32 {s(T3)}, {s(T3)}, {L.FC}')
        g.wait_vm(hx)
        g.flag_store(T3)
        g.stamp(6)
        for j in range(4):
            o = (8 * (j >> 1) + (j & 1)) * 36864
            g(f's_mov_b32 {s(T2)}, {L.YP + o}')
            g(f'buffer_store_dwordx4 {v(YG + 4 * j, 4)}, {v(vPO)}, {s(rWS, 4)}, {s(T2)} offen sc1')
        g.barrier()
        g(f's_cmp_eq_u64 {s(sM3, 2)}, 0')

    def wperm(self, d, t):
        g = self
        g(f'v_and_b32 {v(t)}, 3, {v(vI)}')
        g(f'v_lshlrev_b32 {v(d)}, 8, {v(vG)}')
        g(f'v_lshl_add_u32 {v(d)}, {v(t)}, 6, {v(d)}')
        g(f'v_lshrrev_b32 {v(t)}, 2, {v(vI)}')
        g(f'v_lshl_add_u32 {v(d)}, {v(t)}, 4, {v(d)}')

    def fx_off(self, d, t):
        g = self
        g(f's_lshl_b32 {s(d)}, {s(sRB2)}, 4')
        g(f's_lshl_b32 {s(t)}, {s(sCG)}, 1')
        g(f's_add_u32 {s(d)}, {s(d)}, {s(t)}')
        g(f's_and_b32 {s(t)}, {s(sW)}, 1')
        g(f's_add_u32 {s(d)}, {s(d)}, {s(t)}')
        g(f's_lshl_b32 {s(d)}, {s(d)}, 7')
        g(f's_add_u32 {s(d)}, {s(d)}, {L.FX}')

    def clear_line(self, soff, z=None):
        g = self
        if not g.opt.clear:
            return
        z = 248 if z is None else z
        g(f'v_mov_b64 {v(z, 2)}, 0')
        g(f'v_mov_b64 {v(z + 2, 2)}, 0')
        g.setexec(0xff)
        g(f'buffer_store_dwordx4 {v(z, 4)}, {v(vL16)}, {s(rWS, 4)}, {s(soff)} offen sc1')
        g.setexec(-1)

    def delay_start(self):
        g = self
        if 'delay' in g.opt.exp:
            g.make_tag()
            g(f'v_lshlrev_b32 {v(6)}, 7, {v(vLANE)}')
            g(f's_and_b32 {s(T0)}, {s(sWG)}, 7')
            g(f's_lshl_b32 {s(T0)}, {s(T0)}, 13')
            g(f's_add_u32 {s(T0)}, {s(T0)}, {L.FT}')
            g.poll([(7, 1, 6, s(T0), 0)], g.opt.dmask, 10)
            g.make_tag = lambda: None

    def w_dma_setup(self):
        g = self
        g(f's_lshl_b32 {s(sBL)}, {s(sW)}, 12')
        g(f's_mul_i32 {s(sBG)}, {s(sP)}, {L.WPSZ}')
        g(f's_add_u32 {s(sBG)}, {s(sBG)}, {s(sBL)}')
        g(f's_add_u32 {s(sBG)}, {s(sBG)}, {L.WP}')

    def w_first_half(self):
        g = self
        vT = 6
        g(f'v_lshlrev_b32 {v(vT)}, 11, {v(vLANE)}')
        g(f's_lshl_b32 {s(T0)}, {s(sP)}, 7')
        g(f's_add_u32 {s(T0)}, {s(T0)}, {L.FW}')
        g.w_dma_setup()
        g.poll([(vT + 1, 1, vT, s(T0), 0)], 7, 2)
        for it in g.dma_items(16, stride=16384):
            it()

    def role_q(self):
        g = self
        sJ = T7
        vO, vT = 6, 8
        R = 16
        g.srd(rA, pQ, L.ARR)
        g.srd(rB, pWO, 576 * 1152)
        g(f's_sub_u32 {s(sJ)}, {s(sWG)}, 144')
        g(f's_lshl_b32 {s(T0)}, {s(sJ)}, 7')
        g(f's_add_u32 {s(T1)}, {s(T0)}, {L.FWO}')
        g(f's_add_u32 {s(T0)}, {s(T0)}, {L.FQ}')
        g(f's_cmp_eq_u32 {s(sW)}, 0')
        g(f's_cselect_b32 {s(T0)}, {s(T0)}, {s(T1)}')
        g(f's_cmp_ge_u32 {s(sW)}, 2')
        with g.skip_if('s_cbranch_scc1'):
            g.clear_line(T0)
        mt = g.make_tag
        g.delay_start()
        LQ = 16384
        g(f's_mul_i32 {s(T0)}, {s(sJ)}, {32 * 1152}')
        g(f's_mul_i32 {s(T1)}, {s(sW)}, 640')
        for i in range(10):
            g(f'v_add_u32 {v(vT)}, {s(T1)}, {v(vLANE)}')
            g(f'v_mul_u32_u24 {v(vT + 1)}, 3592, {v(vT)}')
            g(f'v_lshrrev_b32 {v(vT + 1)}, 18, {v(vT + 1)}')
            g(f'v_sub_u32 {v(vT)}, {v(vT)}, {v(vT + 1)}')
            g(f'v_lshlrev_b32 {v(vT)}, 4, {v(vT)}')
            g(f's_lshl_b32 {s(T2)}, {s(T1)}, 4')
            g(f's_add_u32 {s(T2)}, {s(T2)}, {LQ}')
            g(f's_mov_b32 m0, {s(T2)}')
            g(f's_add_u32 {s(T1)}, {s(T1)}, 64')
            hq = g(f'buffer_load_dwordx4 {v(vT)}, {s(rA, 4)}, {s(T0)} offen lds')
        sPp, sCq = T5, T6
        g(f's_and_b32 {s(sPp)}, {s(sJ)}, 15')
        g(f's_lshr_b32 {s(sCq)}, {s(sJ)}, 4')
        g(f's_mul_i32 {s(T0)}, {s(sPp)}, {36 * 1152}')
        g(f's_mul_i32 {s(T1)}, {s(sCq)}, 288')
        g(f's_add_u32 {s(T0)}, {s(T0)}, {s(T1)}')
        g(f's_mul_i32 {s(T1)}, {s(sW)}, 192')
        for i in range(3):
            g(f'v_add_u32 {v(vT)}, {s(T1)}, {v(vLANE)}')
            if i:
                g(f'v_add_u32 {v(vT)}, {64 * i}, {v(vT)}')
            g(f'v_mul_u32_u24 {v(vT + 1)}, 3641, {v(vT)}')
            g(f'v_lshrrev_b32 {v(vT + 1)}, 16, {v(vT + 1)}')
            g(f'v_mul_u32_u24 {v(vT + 1)}, {1152 - 288}, {v(vT + 1)}')
            g(f'v_lshl_add_u32 {v(vT)}, {v(vT)}, 4, {v(vT + 1)}')
            g(f's_lshl_b32 {s(T2)}, {s(T1)}, 4')
            g(f's_add_u32 {s(T2)}, {s(T2)}, {1024 * i}')
            g(f's_mov_b32 m0, {s(T2)}')
            g(f'buffer_load_dwordx4 {v(vT)}, {s(rB, 4)}, {s(T0)} offen lds')
        g(f's_mul_i32 {s(T0)}, {s(sJ)}, 36864')
        g(f's_lshl_b32 {s(T1)}, {s(sW)}, 11')
        g(f's_add_u32 {s(T0)}, {s(T0)}, {s(T1)}')
        g(f'v_lshlrev_b32 {v(vO)}, 9, {v(vG)}')
        g(f'v_lshl_add_u32 {v(vO)}, {v(vI)}, 4, {v(vO)}')
        g(f'v_add_u32 {v(vO)}, {s(T0)}, {v(vO)}')
        g(f's_cmp_lt_u32 {s(sW)}, 2')
        g(f's_cselect_b32 {s(T2)}, 0, 0x40000000')
        g(f's_cselect_b32 {s(T4)}, -1, 0')
        g(f'v_add_u32 {v(vO + 1)}, {s(T2)}, {v(vO)}')
        g(f's_lshl_b32 {s(T1)}, {s(sW)}, 6')
        g(f's_add_u32 {s(T1)}, {s(T1)}, {LQ}')
        g(f'v_mul_u32_u24 {v(vT)}, 1168, {v(vI)}')
        g(f'v_lshl_add_u32 {v(vT)}, {v(vG)}, 4, {v(vT)}')
        g(f'v_add_u32 {v(vT)}, {s(T1)}, {v(vT)}')
        S_ = 56
        g(f'v_mov_b64 {v(S_, 2)}, 0')
        g(f'v_mov_b64 {v(S_ + 2, 2)}, 0')
        g.make_tag()
        g.wait_vm(hq)
        g.barrier()
        for aa in range(5):
            for hh in range(2):
                g(f'ds_read_b128 {v(R + 8 * aa + 4 * hh, 4)}, {v(vT)} offset:{256 * aa + 16 * 1168 * hh}')
        g(f's_mov_b32 {s(T2)}, 0x3f803f80')
        for aa in range(5):
            r = R + 8 * aa
            if aa == 4:
                for d in range(8):
                    g(f'v_and_b32 {v(r + d)}, {s(T4)}, {v(r + d)}')
            g(f'v_swap_b32 {v(r + 2)}, {v(r + 4)}')
            g(f'v_swap_b32 {v(r + 3)}, {v(r + 5)}')
            g(f's_mov_b32 {s(T3)}, {L.X0P + 8192 * aa}')
            for qq in range(2):
                g(f'buffer_store_dwordx4 {v(r + 4 * qq, 4)}, {v(vO + (aa == 4))}, {s(rWS, 4)}, {s(T3)} offen offset:{256 * qq} sc1')
            for d in range(8):
                hh = (d >> 1) & 1
                g(f'v_dot2c_f32_bf16 {v(S_ + 2 * hh)}, {s(T2)}, {v(r + d)}')
                g(f'v_dot2c_f32_bf16 {v(S_ + 2 * hh + 1)}, {v(r + d)}, {v(r + d)}')
        g('s_nop 2')
        g.xg_sum2(S_, S_ + 1, vT)
        g.xg_sum2(S_ + 2, S_ + 3, vT)
        LS = 13312
        g(f's_lshl_b32 {s(T2)}, {s(sW)}, 8')
        g(f'v_lshl_add_u32 {v(vT)}, {v(vI)}, 4, {s(T2)}')
        g(f'ds_write_b128 {v(vT)}, {v(S_, 4)} offset:{LS}')
        g.barrier()
        g(f's_cmp_lg_u32 {s(sW)}, 0')
        with g.skip_if('s_cbranch_scc1'):
            g(f'v_lshlrev_b32 {v(vT)}, 4, {v(vI)}')
            P_ = 60
            for w in range(4):
                g(f'ds_read_b128 {v(P_ + 4 * w, 4)}, {v(vT)} offset:{LS + 256 * w}')
            for h2 in range(2):
                g(f'v_pk_add_f32 {v(P_ + 2 * h2, 2)}, {v(P_ + 2 * h2, 2)}, {v(P_ + 4 + 2 * h2, 2)}')
                g(f'v_pk_add_f32 {v(P_ + 8 + 2 * h2, 2)}, {v(P_ + 8 + 2 * h2, 2)}, {v(P_ + 12 + 2 * h2, 2)}')
                g(f'v_pk_add_f32 {v(P_ + 2 * h2, 2)}, {v(P_ + 2 * h2, 2)}, {v(P_ + 8 + 2 * h2, 2)}')
            RS = 76
            for hh in range(2):
                self.ln_coef(P_ + 2 * hh, P_ + 2 * hh + 1, RS + 2 * hh, RS + 2 * hh + 1)
            g(f's_lshl_b32 {s(T2)}, {s(sJ)}, 8')
            g(f's_add_u32 {s(T2)}, {s(T2)}, {L.N0P}')
            g.setexec(0xffff)
            g(f'buffer_store_dwordx4 {v(RS, 4)}, {v(vL16)}, {s(rWS, 4)}, {s(T2)} offen sc1')
            g.setexec(-1)
        g(f's_lshl_b32 {s(T3)}, {s(sJ)}, 7')
        g(f's_add_u32 {s(T3)}, {s(T3)}, {L.FQ}')
        g.drain(force=True)
        g.barrier()
        g(f's_cmp_lg_u32 {s(sW)}, 0')
        with g.skip_if('s_cbranch_scc1'):
            g.flag_store(T3)
        g.stamp(2)
        vA, vA2, vD_ = 8, 9, 10
        g(f'v_lshrrev_b32 {v(vT + 4)}, 1, {v(vG)}')
        g(f'v_mul_u32_u24 {v(vT + 4)}, 2, {v(vT + 4)}')
        g(f'v_lshl_add_u32 {v(vT + 4)}, {v(vG)}, 3, {v(vT + 4)}')
        g(f'v_bfe_u32 {v(vT + 5)}, {v(vLANE)}, 2, 2')
        g(f'v_add_u32 {v(vT + 4)}, {v(vT + 4)}, {v(vT + 5)}')
        g(f'v_mul_u32_u24 {v(vT + 4)}, 288, {v(vT + 4)}')
        g(f'v_and_b32 {v(vT + 6)}, 3, {v(vLANE)}')
        g(f'v_lshl_add_u32 {v(vT + 4)}, {v(vT + 6)}, 3, {v(vT + 4)}')
        g(f'v_lshrrev_b32 {v(vT + 7)}, 1, {v(vT + 5)}')
        g(f'v_mul_u32_u24 {v(vT + 7)}, 16, {v(vT + 7)}')
        g(f'v_add_u32 {v(vT + 7)}, {v(vT + 7)}, {v(vT + 5)}')
        g(f'v_add_u32 {v(vT + 7)}, 16, {v(vT + 7)}')
        g(f'v_mul_u32_u24 {v(vT + 7)}, 288, {v(vT + 7)}')
        g(f'v_lshl_add_u32 {v(vT + 7)}, {v(vT + 6)}, 3, {v(vT + 7)}')
        vM, vE = vT + 4, vT + 7
        vD4 = 17
        g(f'v_and_b32 {v(16)}, 7, {v(vI)}')
        g(f'v_lshlrev_b32 {v(16)}, 4, {v(16)}')
        g(f'v_lshl_add_u32 {v(vD4)}, {v(vG)}, 7, {v(16)}')
        g(f's_mul_i32 {s(T0)}, {s(sCq)}, {2 * L.WOSZ}')
        g(f's_add_u32 {s(T0)}, {s(T0)}, {L.WOF}')
        g(f's_mul_i32 {s(T1)}, {s(sPp)}, 4608')
        g(f's_add_u32 {s(T1)}, {s(T1)}, {s(T0)}')
        g(f's_lshr_b32 {s(T2)}, {s(sPp)}, 3')
        g(f's_add_u32 {s(T2)}, {s(T2)}, 16')
        g(f's_mul_i32 {s(T2)}, {s(T2)}, 4608')
        g(f's_add_u32 {s(T0)}, {s(T0)}, {s(T2)}')
        g(f's_and_b32 {s(T2)}, {s(sPp)}, 1')
        g(f's_lshl_b32 {s(T2)}, {s(T2)}, 3')
        g(f's_add_u32 {s(T0)}, {s(T0)}, {s(T2)}')
        g(f's_bfe_u32 {s(T4)}, {s(sPp)}, 0x20001')
        for w in range(4):
            lab = g.newlabel('wo')
            g(f's_cmp_lg_u32 {s(sW)}, {w}')
            with g.skip_if('s_cbranch_scc1'):
                for idx in range(w, 10, 4):
                    cgl, T = divmod(idx, 5)
                    co = cgl * 144 + T * 32
                    g(f'ds_read_b64_tr_b16 {v(20, 2)}, {v(vM)} offset:{co}')
                    g(f'ds_read_b64_tr_b16 {v(22, 2)}, {v(vM)} offset:{co + 4 * 288}')
                    g(f'ds_read_b64_tr_b16 {v(24, 2)}, {v(vE)} offset:{co}')
                    g(f's_add_u32 {s(T2)}, {s(T1)}, {cgl * L.WOSZ + T * 1024}')
                    g(f's_lshl_b32 {s(T3)}, {s(T4)}, {8 if T < 4 else 7}')
                    g(f's_add_u32 {s(T3)}, {s(T3)}, {s(T0)}')
                    g(f's_add_u32 {s(T3)}, {s(T3)}, {cgl * L.WOSZ + T * 1024}')
                    g(f'v_lshlrev_b32 {v(18)}, 4, {v(vI)}')
                    g.drain(vm=False)
                    if T == 4:
                        g.setexec(0x00ff00ff00ff00ff)
                    g(f'buffer_store_dwordx4 {v(20, 4)}, {v(vL16 if T < 4 else vD4)}, {s(rWS, 4)}, {s(T2)} offen sc1')
                    g.setexec(0xffff if T < 4 else 0xff)
                    g(f'buffer_store_dwordx2 {v(24, 2)}, {v(18)}, {s(rWS, 4)}, {s(T3)} offen sc1')
                    g.setexec(-1)
                    g('s_nop 1')
        g(f's_lshl_b32 {s(T3)}, {s(sJ)}, 7')
        g(f's_add_u32 {s(T3)}, {s(T3)}, {L.FWO}')
        g.drain(force=True)
        g.barrier()
        g(f's_cmp_lg_u32 {s(sW)}, 0')
        with g.skip_if('s_cbranch_scc1'):
            g.flag_store(T3)
        g.stamp(6)
        g.make_tag = mt

    def ln_coef(self, vS, vQ, vRS, vB):
        g = self
        inv = '0x3ae38e39'
        g(f'v_mul_f32 {v(vS)}, {inv}, {v(vS)}')
        g(f'v_mul_f32 {v(vQ)}, {inv}, {v(vQ)}')
        g(f'v_fma_f32 {v(vQ)}, -{v(vS)}, {v(vS)}, {v(vQ)}')
        g(f'v_max_f32 {v(vQ)}, 0, {v(vQ)}')
        g(f'v_add_f32 {v(vQ)}, 0x3727c5ac, {v(vQ)}')
        g(f'v_rsq_f32 {v(vRS)}, {v(vQ)}')
        if vB is not None:
            g(f'v_mul_f32 {v(vB)}, {v(vS)}, {v(vRS)}')
            g(f'v_sub_f32 {v(vB)}, 0, {v(vB)}')

    def role_w(self):
        g = self
        sU, sPp, sPart = T7, T6, T5
        vO, vT = 6, 8
        RA = 16
        BV, BF = 96, 108
        ACC = 132
        g.srd(rA, pWQ, 576 * 3456)
        g.srd(rB, pPH, 32 * 648)
        g(f's_sub_u32 {s(sU)}, {s(sWG)}, 208')
        g(f's_lshl_b32 {s(T0)}, {s(sU)}, 7')
        g(f's_add_u32 {s(T0)}, {s(T0)}, {L.FW}')
        g(f's_cmp_lg_u32 {s(sW)}, 0')
        with g.skip_if('s_cbranch_scc1'):
            g.clear_line(T0, 252)
        if 'w' in g.opt.dwho:
            g.delay_start()
        g(f's_and_b32 {s(sPp)}, {s(sU)}, 15')
        g(f's_lshr_b32 {s(sPart)}, {s(sU)}, 4')
        g(f's_add_u32 {s(T0)}, {s(sPart)}, 1')
        g(f's_cmp_eq_u32 {s(sPart)}, 2')
        g(f's_cselect_b32 {s(T0)}, 0, {s(T0)}')
        g(f's_mul_i32 {s(T0)}, {s(T0)}, 1152')
        g(f's_mul_i32 {s(T1)}, {s(sPp)}, 72')
        g(f's_add_u32 {s(T0)}, {s(T0)}, {s(T1)}')
        LW = 4096
        g(f's_mul_i32 {s(T1)}, {s(sW)}, 896')
        for i in range(14):
            g(f'v_add_u32 {v(vT)}, {s(T1)}, {v(vLANE)}')
            g(f'v_mul_u32_u24 {v(vT + 1)}, 43691, {v(vT)}')
            g(f'v_lshrrev_b32 {v(vT + 2)}, 17, {v(vT + 1)}')
            g(f'v_lshrrev_b32 {v(vT + 1)}, 18, {v(vT + 1)}')
            g(f'v_mul_u32_u24 {v(vT + 1)}, {3456 - 72}, {v(vT + 1)}')
            g(f'v_lshl_add_u32 {v(vT)}, {v(vT)}, 4, {v(vT + 1)}')
            g(f'v_mul_u32_u24 {v(vT + 2)}, 12, {v(vT + 2)}')
            g(f'v_sub_u32 {v(vT)}, {v(vT)}, {v(vT + 2)}')
            g(f's_lshl_b32 {s(T2)}, {s(T1)}, 4')
            g(f's_add_u32 {s(T2)}, {s(T2)}, {LW}')
            g(f's_mov_b32 m0, {s(T2)}')
            g(f's_add_u32 {s(T1)}, {s(T1)}, 64')
            g(f'buffer_load_dwordx4 {v(vT)}, {s(rA, 4)}, {s(T0)} offen lds')
        g(f's_mul_i32 {s(T1)}, {s(sW)}, {32 * 96}')
        g(f's_add_u32 {s(T1)}, {s(T1)}, {LW}')
        g(f'v_min_u32 {v(vT)}, 2, {v(vG)}')
        g(f'v_mul_u32_u24 {v(vO)}, 96, {v(vI)}')
        g(f'v_lshl_add_u32 {v(vO)}, {v(vT)}, 4, {v(vO)}')
        g(f'v_add_u32 {v(vO)}, {s(T1)}, {v(vO)}')
        g(f's_lshl_b32 {s(T1)}, 1, {s(sPart)}')
        g(f's_sub_u32 {s(T1)}, {s(T1)}, 1')
        vF9, vHF, vHD, vFF = 9, 10, 11, 12
        g(f'v_and_b32 {v(vF9)}, 3, {v(vI)}')
        g(f'v_subrev_u32 {v(vF9)}, {s(T1)}, {v(vF9)}')
        g(f'v_bfe_u32 {v(vHF)}, {v(vI)}, 2, 1')
        g(f'v_mul_u32_u24 {v(vHF)}, 9, {v(vHF)}')
        g(f'v_lshrrev_b32 {v(vHD)}, 3, {v(vI)}')
        g(f's_mul_i32 {s(T2)}, {s(sPp)}, 1296')
        g(f'v_mul_u32_u24 {v(13)}, 648, {v(vHD)}')
        g(f'v_mul_u32_u24 {v(14)}, 288, {v(vG)}')
        g(f'v_add3_u32 {v(13)}, {v(13)}, {v(14)}, {s(T2)}')
        masks = [sM0, sM1, sM2]
        for Tp in range(3):
            g(f'v_add_u32 {v(vT)}, {4 * Tp}, {v(vF9)}')
            g(f'v_cmp_gt_u32 {s(masks[Tp], 2)}, 9, {v(vT)}')
            g(f'v_add_u32 {v(vFF)}, {v(vT)}, {v(vHF)}')
            g(f'v_mov_b64 {v(BV + 4 * Tp, 2)}, 0')
            g(f'v_mov_b64 {v(BV + 4 * Tp + 2, 2)}, 0')
            for d in range(4):
                g(f'v_mov_b64 {v(ACC + 8 * Tp + 2 * d, 2)}, 0')
            g(f's_cmp_eq_u32 {s(sPart)}, 1')
            lab_v, lab_d = g.newlabel('wv'), g.newlabel('wd')
            st0 = g.state()
            g.branch('s_cbranch_scc1', lab_v)
            g.cond_depth += 1
            g(f'v_lshl_add_u32 {v(14)}, {v(vFF)}, 1, {v(13)}')
            for jj in range(8):
                if jj in (0, 2):
                    m = 0xffffffffffff if jj < 2 else 0xffffffff
                    g(f's_mov_b32 {s(sMA)}, {hex(m & 0xffffffff)}')
                    g(f's_mov_b32 {s(sMA + 1)}, {hex(m >> 32)}')
                    g(f's_and_b64 exec, {s(sMA, 2)}, {s(masks[Tp], 2)}')
                g(f'buffer_load_ushort {v(ACC + 8 * Tp + jj)}, {v(14)}, {s(rB, 4)}, 0 offen offset:{36 * jj}')
            g.setexec(-1)
            g.cond_depth -= 1
            st1 = g.state()
            g.branch('s_branch', lab_d)
            g.label(lab_v)
            g(f'v_lshlrev_b32 {v(14)}, 3, {v(vG)}')
            g(f'v_sub_u32 {v(14)}, {v(vFF)}, {v(14)}')
            g(f'v_mov_b32 {v(15)}, 0x3f80')
            g(f'v_mov_b32 {v(vT)}, 0x3f800000')
            g(f's_mov_b64 exec, {s(masks[Tp], 2)}')
            vm_keep = g.vm
            g.vm = st0[0]
            for d in range(4):
                g(f'v_cmp_eq_u32 vcc, {2 * d}, {v(14)}')
                g(f'v_cndmask_b32 {v(BV + 4 * Tp + d)}, 0, {v(15)}, vcc')
                g(f'v_cmp_eq_u32 vcc, {2 * d + 1}, {v(14)}')
                g(f'v_cndmask_b32 {v(BV + 4 * Tp + d)}, {v(BV + 4 * Tp + d)}, {v(vT)}, vcc')
            g.setexec(-1)
            g.vm = st1[0]
            g.label(lab_d)
        g.vtmp_stamp = 255
        g.stamp(1)
        g.make_tag()
        for Tp in range(3):
            for d in range(4):
                g(f'v_lshl_or_b32 {v(14)}, {v(ACC + 8 * Tp + 2 * d + 1)}, 16, {v(ACC + 8 * Tp + 2 * d)}')
                g(f'v_or_b32 {v(BV + 4 * Tp + d)}, {v(14)}, {v(BV + 4 * Tp + d)}')
        g(f'v_cmp_eq_u32 vcc, 0, {v(vHD)}')
        for Tp in range(3):
            for d in range(4):
                g(f'v_cndmask_b32 {v(BF + 8 * Tp + d)}, 0, {v(BV + 4 * Tp + d)}, vcc')
                g(f'v_cndmask_b32 {v(BF + 8 * Tp + 4 + d)}, {v(BV + 4 * Tp + d)}, 0, vcc' if False else
                  f'v_sub_u32 {v(BF + 8 * Tp + 4 + d)}, {v(BV + 4 * Tp + d)}, {v(BF + 8 * Tp + d)}')
        g.drain(force=True)
        g.barrier()
        g.stamp(2)
        for kk in range(5):
            for half in range(2):
                for hh in range(2):
                    i = (2 * kk + half) * 2 + hh
                    g(f'ds_read_b128 {v(RA + 4 * i, 4)}, {v(vO)} offset:{(128 * kk + 16 * half) * 96 + 48 * hh}')
        g(f's_cmp_lt_u32 {s(sW)}, 2')
        g(f's_cselect_b32 {s(T1)}, -1, 0')
        for mt in range(10):
            if mt == 8:
                for d in range(16):
                    g(f'v_and_b32 {v(RA + 64 + d)}, {s(T1)}, {v(RA + 64 + d)}')
            for Tp in range(3):
                d = v(ACC + 12 * mt + 4 * Tp, 4)
                g.mfma(d, v(RA + 8 * mt, 4), v(BF + 8 * Tp, 4), '0')
            for Tp in range(3):
                d = v(ACC + 12 * mt + 4 * Tp, 4)
                g.mfma(d, v(RA + 8 * mt + 4, 4), v(BF + 8 * Tp + 4, 4), d)
        g.stamp(3)
        SM = 16
        for Tp in range(3):
            g(f'v_pk_add_f32 {v(SM + 2 * Tp, 2)}, {v(ACC + 4 * Tp, 2)}, {v(ACC + 4 * Tp + 2, 2)}')
        for mt in range(1, 10):
            for hf in range(2):
                for Tp in range(3):
                    g(f'v_pk_add_f32 {v(SM + 2 * Tp, 2)}, {v(SM + 2 * Tp, 2)}, {v(ACC + 12 * mt + 4 * Tp + 2 * hf, 2)}')
        CS = 24
        for Tp in range(3):
            g(f'v_add_f32 {v(CS + Tp)}, {v(SM + 2 * Tp)}, {v(SM + 2 * Tp + 1)}')
        g(f'v_mov_b32 {v(CS + 3)}, 0')
        g.xg_sum2(CS, CS + 1, vT)
        g.xg_sum2(CS + 2, CS + 3, vT)
        g(f's_lshl_b32 {s(T2)}, {s(sW)}, 8')
        g(f'v_lshl_add_u32 {v(vT)}, {v(vI)}, 4, {s(T2)}')
        g(f'ds_write_b128 {v(vT)}, {v(CS, 4)}')
        g.barrier()
        g(f'v_lshlrev_b32 {v(vT)}, 4, {v(vI)}')
        P_ = 28
        for w in range(4):
            g(f'ds_read_b128 {v(P_ + 4 * w, 4)}, {v(vT)} offset:{256 * w}')
        for h2 in range(2):
            g(f'v_pk_add_f32 {v(P_ + 2 * h2, 2)}, {v(P_ + 2 * h2, 2)}, {v(P_ + 4 + 2 * h2, 2)}')
            g(f'v_pk_add_f32 {v(P_ + 8 + 2 * h2, 2)}, {v(P_ + 8 + 2 * h2, 2)}, {v(P_ + 12 + 2 * h2, 2)}')
            g(f'v_pk_add_f32 {v(P_ + 2 * h2, 2)}, {v(P_ + 2 * h2, 2)}, {v(P_ + 8 + 2 * h2, 2)}')
        MN = 44
        for Tp in range(3):
            g(f'v_mul_f32 {v(MN + 2 * Tp)}, 0xbae38e39, {v(P_ + Tp)}')
        g(f's_cmp_eq_u32 {s(sPart)}, 1')
        g(f's_cselect_b32 {s(sM3)}, 0x44444444, 0')
        g(f's_mov_b32 {s(sM3 + 1)}, {s(sM3)}')
        g(f's_or_b64 {s(sM2, 2)}, {s(sM2, 2)}, {s(sM3, 2)}')
        g(f'v_mov_b32 {v(50)}, 0x3f803f80')
        g(f's_mul_i32 {s(T0)}, {s(sPp)}, {L.WPSZ}')
        g(f's_add_u32 {s(T0)}, {s(T0)}, {L.WP}')
        bases, steps = [T1, T2, T3], [T4, 13, 14]
        for Tp in range(3):
            g(f's_lshl_b32 {s(15)}, {s(sPart)}, 1')
            g(f's_add_u32 {s(15)}, {s(15)}, {Tp}')
            g(f's_lshl_b32 {s(bases[Tp])}, {s(15)}, 10')
            g(f's_cmp_lt_u32 {s(15)}, 5')
            g(f's_cselect_b32 {s(steps[Tp])}, 3072, 0')
            g(f's_cselect_b32 {s(15)}, 0, {L.L_P2 - 5120}')
            g(f's_add_u32 {s(steps[Tp])}, {s(steps[Tp])}, 2048')
            g(f's_add_u32 {s(bases[Tp])}, {s(bases[Tp])}, {s(15)}')
            g(f's_add_u32 {s(bases[Tp])}, {s(bases[Tp])}, {s(T0)}')
            g(f's_mul_i32 {s(15)}, {s(steps[Tp])}, {s(sW)}')
            g(f's_add_u32 {s(bases[Tp])}, {s(bases[Tp])}, {s(15)}')
            g(f's_lshl_b32 {s(steps[Tp])}, {s(steps[Tp])}, 2')
        O_ = 52
        g.wperm(51, 14)

        def emit_k(kk):
            for Tp in range(3):
                o = O_ + 4 * ((3 * kk + Tp) % 4)
                for half in range(2):
                    b = ACC + 12 * (2 * kk + half) + 4 * Tp
                    for hf in range(2):
                        g(f'v_pk_add_f32 {v(b + 2 * hf, 2)}, {v(b + 2 * hf, 2)}, {v(MN + 2 * Tp, 2)} op_sel_hi:[1,0]')
                    for hf in range(2):
                        g(f'v_cvt_pk_bf16_f32 {v(o + 2 * half + hf)}, {v(b + 2 * hf)}, {v(b + 2 * hf + 1)}')
                if Tp == 2:
                    for d in range(4):
                        g(f'v_cndmask_b32 {v(o + d)}, {v(o + d)}, {v(50)}, {s(sM3, 2)}')
                g(f's_mov_b64 exec, {s(masks[Tp], 2)}')
                g(f'buffer_store_dwordx4 {v(o, 4)}, {v(51)}, {s(rWS, 4)}, {s(bases[Tp])} offen sc1')
                g.setexec(-1)
                g(f's_add_u32 {s(bases[Tp])}, {s(bases[Tp])}, {s(steps[Tp])}')
        g.stamp(4)
        for kk in range(4):
            emit_k(kk)
        g(f's_cmp_ge_u32 {s(sW)}, 2')
        with g.skip_if('s_cbranch_scc1'):
            emit_k(4)
        g(f's_lshl_b32 {s(T3)}, {s(sU)}, 7')
        g(f's_add_u32 {s(T3)}, {s(T3)}, {L.FW}')
        g.stamp(5)
        g.drain(force=True)
        g.barrier()
        g(f's_cmp_lg_u32 {s(sW)}, 0')
        with g.skip_if('s_cbranch_scc1'):
            g.flag_store(T3)
        g.stamp(6)

    def softmax2(self, X, single_first, C, TMP, outs):
        g = self
        R = range(2)
        sg = [x if single_first else x + 8 for x in X]
        pb = [x + 1 if single_first else x for x in X]
        val = lambda t, f: X[t] + f
        EN = [TMP[t] for t in R]
        SG = [TMP[t] + 8 for t in R]
        MX = [TMP[t] + 10 for t in R]
        SM = [TMP[t] + 12 for t in R]
        for t in R:
            g(f'v_max3_f32 {v(MX[t])}, {v(val(t, 0))}, {v(val(t, 1))}, {v(val(t, 2))}')
            g(f'v_max3_f32 {v(MX[t] + 1)}, -{v(val(t, 0))}, -{v(val(t, 1))}, -{v(val(t, 2))}')
        for k in range(3):
            for t in R:
                g(f'v_max3_f32 {v(MX[t])}, {v(MX[t])}, {v(val(t, 3 + 2 * k))}, {v(val(t, 4 + 2 * k))}')
                g(f'v_max3_f32 {v(MX[t] + 1)}, {v(MX[t] + 1)}, -{v(val(t, 3 + 2 * k))}, -{v(val(t, 4 + 2 * k))}')
        for t in R:
            g(f'v_permlane16_swap_b32 {v(MX[t])}, {v(MX[t] + 1)}')
        for t in R:
            g(f'v_max_f32 {v(MX[t])}, {v(MX[t])}, {v(MX[t] + 1)}')
        for t in R:
            g(f'v_mul_f32 {v(MX[t])}, {v(C[t])}, {v(MX[t])}')
        for t in R:
            g(f'v_mov_b32 {v(MX[t] + 1)}, {v(MX[t])}')
        for t in R:
            g(f'v_permlane16_swap_b32 {v(MX[t])}, {v(MX[t] + 1)}')
        for k in range(4):
            for t in R:
                g(f'v_pk_fma_f32 {v(EN[t] + 2 * k, 2)}, {v(pb[t] + 2 * k, 2)}, {v(C[t], 2)}, {v(MX[t], 2)} op_sel:[0,0,1] op_sel_hi:[1,0,1] neg_lo:[1,0,1] neg_hi:[1,0,1]')
                g(f'v_pk_fma_f32 {v(pb[t] + 2 * k, 2)}, {v(pb[t] + 2 * k, 2)}, {v(C[t], 2)}, {v(MX[t], 2)} op_sel_hi:[1,0,0] neg_lo:[0,0,1] neg_hi:[0,0,1]')
        for t in R:
            g(f'v_fma_f32 {v(SG[t])}, {v(sg[t])}, {v(C[t])}, -{v(MX[t])}')
            g(f'v_fma_f32 {v(SG[t] + 1)}, -{v(sg[t])}, {v(C[t])}, -{v(MX[t] + 1)}')
        for t in R:
            for k in range(8):
                g(f'v_exp_f32 {v(pb[t] + k)}, {v(pb[t] + k)}')
                g(f'v_exp_f32 {v(EN[t] + k)}, {v(EN[t] + k)}')
            g(f'v_exp_f32 {v(SG[t])}, {v(SG[t])}')
            g(f'v_exp_f32 {v(SG[t] + 1)}, {v(SG[t] + 1)}')
        for t in R:
            g(f'v_pk_add_f32 {v(SM[t], 2)}, {v(pb[t], 2)}, {v(pb[t] + 2, 2)}')
            g(f'v_pk_add_f32 {v(SM[t] + 2, 2)}, {v(EN[t], 2)}, {v(EN[t] + 2, 2)}')
        for k in (2, 3):
            for t in R:
                g(f'v_pk_add_f32 {v(SM[t], 2)}, {v(SM[t], 2)}, {v(pb[t] + 2 * k, 2)}')
                g(f'v_pk_add_f32 {v(SM[t] + 2, 2)}, {v(SM[t] + 2, 2)}, {v(EN[t] + 2 * k, 2)}')
        for t in R:
            g(f'v_add_f32 {v(MX[t])}, {v(SM[t])}, {v(SM[t] + 1)}')
            g(f'v_add_f32 {v(MX[t] + 1)}, {v(SM[t] + 2)}, {v(SM[t] + 3)}')
        for t in R:
            g(f'v_pk_add_f32 {v(MX[t], 2)}, {v(MX[t], 2)}, {v(SG[t], 2)}')
        for t in R:
            g(f'v_permlane16_swap_b32 {v(MX[t])}, {v(MX[t] + 1)}')
        for t in R:
            g(f'v_add_f32 {v(MX[t])}, {v(MX[t])}, {v(MX[t] + 1)}')
        for t in R:
            g(f'v_rcp_f32 {v(MX[t])}, {v(MX[t])}')
        for t in R:
            g(f'v_mov_b32 {v(MX[t] + 1)}, {v(MX[t])}')
        for t in R:
            g(f'v_permlane16_swap_b32 {v(MX[t])}, {v(MX[t] + 1)}')
        for k in range(4):
            for t in R:
                g(f'v_pk_mul_f32 {v(pb[t] + 2 * k, 2)}, {v(pb[t] + 2 * k, 2)}, {v(MX[t], 2)} op_sel_hi:[1,0]')
                g(f'v_pk_mul_f32 {v(EN[t] + 2 * k, 2)}, {v(EN[t] + 2 * k, 2)}, {v(MX[t], 2)} op_sel:[0,1] op_sel_hi:[1,1]')
        for t in R:
            g(f'v_pk_mul_f32 {v(SG[t], 2)}, {v(SG[t], 2)}, {v(MX[t], 2)}')
        for t in R:
            if single_first:
                pos = [SG[t]] + [pb[t] + k for k in range(8)]
                neg = [SG[t] + 1] + [EN[t] + k for k in range(8)]
            else:
                pos = [pb[t] + k for k in range(8)] + [SG[t]]
                neg = [EN[t] + k for k in range(8)] + [SG[t] + 1]
            seq = pos + neg
            for d in range(9):
                g(f'v_cvt_pk_bf16_f32 {v(outs[t][d])}, {v(seq[2 * d])}, {v(seq[2 * d + 1])}')

    def main(self):
        g = self
        vT = 6
        aSCW, aPA0, aPB, aKVS, aH1, aH2, aKT, aOA0, aOS, aOE = 200, 201, 204, 205, 206, 207, 208, 209, 212, 213
        aX1, aSTP, aSTG, aX3, aOUT, aW4 = 214, 215, 216, 217, 218, 219
        aKVS2, aH3, aWP, aOX = 220, 221, 222, 223
        aKEEP = 240

        def keep(ar, vr):
            g(f'v_accvgpr_write_b32 {a(ar)}, {v(vr)}')

        def get(vr, ar):
            g(f'v_accvgpr_read_b32 {v(vr)}, {a(ar)}')

        g.stamp(7)
        g.bg_start(g.dma_items(16, stride=16384), 9)
        c3, r3 = 8, 9
        g(f's_movk_i32 {s(T7)}, 240')
        g(f'v_and_b32 {v(c3)}, 3, {v(vLANE)}')
        g(f'v_bfe_u32 {v(r3)}, {v(vLANE)}, 2, 2')
        g(f's_mul_i32 {s(T0)}, {s(sW)}, {32 * 264}')
        g(f's_add_u32 {s(T0)}, {s(T0)}, {L.L_SCR}')
        g(f'v_mul_u32_u24 {v(vT)}, 264, {v(vI)}')
        g(f'v_mad_u32_u24 {v(vT)}, {v(vG)}, 40, {v(vT)}')
        g(f'v_add_u32 {v(vT)}, {s(T0)}, {v(vT)}')
        keep(aSCW, vT)
        g(f'v_and_b32 {v(vT)}, 1, {v(vG)}')
        g(f'v_lshlrev_b32 {v(vT)}, 4, {v(vT)}')
        g(f'v_lshl_add_u32 {v(vT)}, {v(r3)}, 2, {v(vT)}')
        g(f'v_and_b32 {v(vT + 1)}, 2, {v(vG)}')
        g(f'v_add_u32 {v(vT)}, {v(vT)}, {v(vT + 1)}')
        g(f'v_mul_u32_u24 {v(10)}, 264, {v(vT)}')
        g(f'v_add_u32 {v(10)}, {L.L_SCR}, {v(10)}')
        g(f's_lshr_b32 {s(T2)}, {s(sW)}, 1')
        g(f's_mul_i32 {s(T0)}, {s(T2)}, 80')
        g(f'v_lshrrev_b32 {v(vT)}, 1, {v(c3)}')
        g(f'v_mad_u32_u24 {v(11)}, {v(vT)}, 40, {v(10)}')
        g(f'v_add_u32 {v(11)}, {s(T0)}, {v(11)}')
        g(f'v_and_b32 {v(vT)}, 1, {v(c3)}')
        for Tm in range(3):
            g(f'v_mad_u32_u24 {v(vT + 1)}, {v(vT)}, {8 * (min(3 + Tm, 4) - Tm)}, {v(11)}')
            g(f'v_add_u32 {v(vT + 1)}, {8 * Tm}, {v(vT + 1)}')
            keep(aPA0 + Tm, vT + 1)
        g(f's_mul_i32 {s(T0)}, {s(sW)}, 24')
        g(f's_add_u32 {s(T0)}, {s(T0)}, 160')
        g(f'v_min_u32 {v(vT)}, 2, {v(c3)}')
        g(f'v_lshl_add_u32 {v(vT)}, {v(vT)}, 3, {v(10)}')
        g(f'v_add_u32 {v(vT)}, {s(T0)}, {v(vT)}')
        keep(aPB, vT)
        g(f's_mul_i32 {s(T0)}, {s(sW)}, 960')
        g(f'v_lshlrev_b32 {v(vT)}, 6, {v(vI)}')
        g(f'v_lshl_add_u32 {v(vT)}, {v(vG)}, 4, {v(vT)}')
        g(f'v_add_u32 {v(vT)}, {s(T0)}, {v(vT)}')
        keep(aKVS, vT)
        g(f'v_lshrrev_b32 {v(vT)}, 1, {v(vG)}')
        g(f'v_lshl_add_u32 {v(vT)}, {v(vI)}, 1, {v(vT)}')
        g(f'v_lshlrev_b32 {v(vT)}, 4, {v(vT)}')
        g(f's_add_u32 {s(T0)}, {s(T0)}, 640')
        g(f'v_add_u32 {v(vT)}, {s(T0)}, {v(vT)}')
        keep(aKVS2, vT)
        g(f's_mul_i32 {s(T0)}, {s(sR128)}, 15')
        g(f'v_lshrrev_b32 {v(vT)}, 4, {v(vTID)}')
        g(f'v_min_u32 {v(vT + 1)}, 14, {v(vT)}')
        g(f'v_add_u32 {v(vT + 1)}, {s(T0)}, {v(vT + 1)}')
        g(f'v_lshlrev_b32 {v(vT + 1)}, 4, {v(vT + 1)}')
        g(f'v_lshl_add_u32 {v(vT + 1)}, {v(vI)}, 12, {v(vT + 1)}')
        keep(aH1, vT + 1)
        g(f's_lshl_b32 {s(T0)}, {s(sR128)}, 8')
        g(f'v_lshl_add_u32 {v(vT)}, {v(vT)}, 4, {s(T0)}')
        keep(aH2, vT)
        g(f'v_mul_u32_u24 {v(vT)}, 4370, {v(vTID)}')
        g(f'v_lshrrev_b32 {v(vT)}, 16, {v(vT)}')
        g(f'v_add_lshl_u32 {v(vT)}, {v(vT)}, {v(vTID)}, 4')
        keep(aH3, vT)
        g(f'v_cmp_gt_u32 {s(sM1, 2)}, {s(T7)}, {v(vTID)}')
        g(f'v_mul_u32_u24 {v(12)}, 1093, {v(vTID)}')
        g(f'v_lshrrev_b32 {v(12)}, 16, {v(12)}')
        g(f'v_mul_u32_u24 {v(13)}, 60, {v(12)}')
        g(f'v_sub_u32 {v(13)}, {v(vTID)}, {v(13)}')
        g(f'v_cmp_le_u32 vcc, 40, {v(13)}')
        g(f'v_lshrrev_b32 {v(14)}, 2, {v(13)}')
        g(f'v_subrev_u32 {v(15)}, 40, {v(13)}')
        g(f'v_lshrrev_b32 {v(15)}, 1, {v(15)}')
        g(f'v_cndmask_b32 {v(14)}, {v(14)}, {v(15)}, vcc')
        g(f'v_and_b32 {v(15)}, 3, {v(13)}')
        g(f'v_mul_u32_u24 {v(15)}, 24, {v(15)}')
        g(f'v_and_b32 {v(16)}, 1, {v(13)}')
        g(f'v_mad_u32_u24 {v(16)}, {v(16)}, 48, 12')
        g(f'v_cndmask_b32 {v(15)}, {v(15)}, {v(16)}, vcc')
        g(f'v_and_b32 {v(16)}, 1, {v(12)}')
        g(f'v_mad_u32_u24 {v(16)}, {v(16)}, 9, {v(14)}')
        g(f'v_cmp_ne_u32 vcc, 18, {v(16)}')
        g(f's_and_b64 {s(sM2, 2)}, {s(sM1, 2)}, vcc')
        g(f'v_cmp_eq_u32 vcc, 9, {v(14)}')
        g(f'v_mov_b32 {v(17)}, 18')
        g(f'v_cndmask_b32 {v(16)}, {v(16)}, {v(17)}, vcc')
        g(f'v_lshrrev_b32 {v(12)}, 1, {v(12)}')
        g(f'v_mad_u32_u24 {v(16)}, {v(12)}, 19, {v(16)}')
        g(f'v_mul_u32_u24 {v(16)}, 96, {v(16)}')
        g(f'v_add_u32 {v(16)}, {v(16)}, {v(15)}')
        g(f'v_add_u32 {v(16)}, {L.L_KVT}, {v(16)}')
        keep(aKT, 16)
        g(f'v_lshrrev_b32 {v(12)}, 3, {v(vI)}')
        g(f'v_lshrrev_b32 {v(13)}, 1, {v(vG)}')
        g(f'v_cmp_eq_u32 vcc, {v(12)}, {v(13)}')
        g(f'v_mul_u32_u24 {v(12)}, {19 * 96}, {v(12)}')
        g(f'v_and_b32 {v(13)}, 1, {v(vG)}')
        g(f'v_mad_u32_u24 {v(12)}, {v(13)}, 48, {v(12)}')
        g(f'v_add_u32 {v(12)}, {L.L_KVT}, {v(12)}')
        g(f'v_bfe_u32 {v(13)}, {v(vI)}, 2, 1')
        g(f'v_and_b32 {v(14)}, 3, {v(vI)}')
        g(f'v_lshl_add_u32 {v(13)}, {v(13)}, 3, {v(14)}')
        g(f'v_mov_b32 {v(17)}, {L.L_ZERO}')
        g(f's_movk_i32 {s(T0)}, 96')
        for T in range(3):
            if T < 2:
                g(f'v_add_u32 {v(15)}, {4 * T}, {v(13)}')
            else:
                g(f'v_lshlrev_b32 {v(15)}, 3, {v(14)}')
                g(f'v_lshrrev_b32 {v(15)}, {v(15)}, {v(18)}' if False else f'v_mov_b32 {v(18)}, 0x12111012')
                g(f'v_lshrrev_b32 {v(15)}, {v(15)}, {v(18)}')
                g(f'v_and_b32 {v(15)}, 0xff, {v(15)}')
            g(f'v_mad_u32_u24 {v(15)}, {v(15)}, {s(T0)}, {v(12)}')
            g(f'v_cndmask_b32 {v(15)}, {v(17)}, {v(15)}, vcc')
            keep(aOA0 + T, 15)
        g(f's_mul_i32 {s(T0)}, {s(sRB)}, 36864')
        g(f'v_lshrrev_b32 {v(12)}, 3, {v(vI)}')
        g(f'v_mul_u32_u24 {v(12)}, 18432, {v(12)}')
        g(f'v_and_b32 {v(13)}, 7, {v(vI)}')
        g(f'v_lshl_add_u32 {v(12)}, {v(13)}, 4, {v(12)}')
        g(f'v_add_u32 {v(12)}, {s(T0)}, {v(12)}')
        g(f's_lshl_b32 {s(T0)}, {s(sP)}, 10')
        g(f'v_lshl_add_u32 {v(14)}, {v(vG)}, 8, {v(12)}')
        g(f'v_add_u32 {v(14)}, {s(T0)}, {v(14)}')
        keep(aOS, 14)
        g(f's_lshl_b32 {s(T0)}, {s(sP)}, 7')
        g(f's_add_u32 {s(T0)}, {s(T0)}, {64 * 256}')
        g(f'v_lshlrev_b32 {v(14)}, 3, {v(13)}')
        g(f'v_sub_u32 {v(14)}, {v(12)}, {v(14)}')
        g(f'v_lshrrev_b32 {v(15)}, 1, {v(vG)}')
        g(f'v_lshl_add_u32 {v(14)}, {v(15)}, 6, {v(14)}')
        g(f'v_add_u32 {v(14)}, {s(T0)}, {v(14)}')
        keep(aOE, 14)
        g(f's_and_b32 {s(T3)}, {s(sW)}, 1')
        g(f's_mul_i32 {s(T0)}, {s(sRB2)}, 36864')
        g(f's_mul_i32 {s(T1)}, {s(sCG)}, 4608')
        g(f's_add_u32 {s(T0)}, {s(T0)}, {s(T1)}')
        g(f's_lshl_b32 {s(T1)}, {s(T3)}, 7')
        g(f's_add_u32 {s(T0)}, {s(T0)}, {s(T1)}')
        g(f'v_lshlrev_b32 {v(12)}, 8, {v(vG)}')
        g(f'v_lshl_add_u32 {v(12)}, {v(13)}, 4, {v(12)}')
        g(f'v_add_u32 {v(12)}, {s(T0)}, {v(12)}')
        g(f'v_lshrrev_b32 {v(14)}, 3, {v(vI)}')
        g(f'v_lshl_add_u32 {v(15)}, {v(14)}, 3, {v(12)}')
        keep(aX1, 15)
        g(f'v_lshl_add_u32 {v(15)}, {v(14)}, 10, {v(12)}')
        keep(aX3, 15)
        g(f's_lshl_b32 {s(T0)}, {s(sR64)}, 13')
        g(f's_lshl_b32 {s(T1)}, {s(sW)}, 8')
        g(f's_add_u32 {s(T0)}, {s(T0)}, {s(T1)}')
        g(f's_add_u32 {s(T0)}, {s(T0)}, {L.ST}')
        g(f'v_lshl_add_u32 {v(15)}, {v(vI)}, 4, {s(T0)}')
        g(f'v_lshl_add_u32 {v(16)}, {v(vG)}, 10, {v(15)}')
        keep(aSTG, 16)
        g(f's_lshl_b32 {s(T1)}, {s(sCG)}, 10')
        g(f'v_add_u32 {v(15)}, {s(T1)}, {v(15)}')
        keep(aSTP, 15)
        g(f's_lshl_b32 {s(T0)}, {s(sRB2)}, 5')
        g(f's_lshl_b32 {s(T1)}, {s(T3)}, 3')
        g(f's_add_u32 {s(T0)}, {s(T0)}, {s(T1)}')
        g(f's_mul_i32 {s(T0)}, {s(T0)}, 1152')
        g(f's_mul_i32 {s(T1)}, {s(sCG)}, 144')
        g(f's_add_u32 {s(T0)}, {s(T0)}, {s(T1)}')
        g(f'v_lshl_add_u32 {v(15)}, {v(14)}, 4, {v(13)}')
        g(f'v_mul_u32_u24 {v(15)}, 1152, {v(15)}')
        g(f'v_and_b32 {v(16)}, 1, {v(vG)}')
        g(f'v_lshl_add_u32 {v(15)}, {v(16)}, 5, {v(15)}')
        g(f'v_lshrrev_b32 {v(16)}, 1, {v(vG)}')
        g(f'v_lshl_add_u32 {v(15)}, {v(16)}, 4, {v(15)}')
        g(f'v_add_u32 {v(15)}, {s(T0)}, {v(15)}')
        keep(aOUT, 15)
        g(f'v_lshlrev_b32 {v(15)}, 7, {v(vG)}')
        g(f'v_lshl_add_u32 {v(15)}, {v(13)}, 4, {v(15)}')
        g(f'v_add_u32 {v(15)}, 4096, {v(15)}')
        keep(aW4, 15)
        g.wperm(15, 16)
        keep(aWP, 15)
        g.bg_flush()
        g(f's_mov_b32 {s(sLAY)}, 0')
        g(f's_mul_i32 {s(sXP)}, {s(sRB)}, 36864')
        g(f's_add_u32 {s(sXP)}, {s(sXP)}, {L.X1P}')
        g(f's_mov_b32 {s(sOFB)}, {L.OF}')
        g(f's_lshl_b32 {s(sKV1)}, {s(sP)}, 16')
        g(f's_add_u32 {s(sKV1)}, {s(sKV1)}, {L.KV1}')
        g(f's_lshl_b32 {s(sKV2)}, {s(sP)}, 12')
        g(f's_add_u32 {s(sKV2)}, {s(sKV2)}, {L.KV2}')
        g(f's_mov_b32 {s(sFO)}, {L.FO}')
        if g.opt.clear:
            Z = 20
            g(f'v_mov_b64 {v(Z, 2)}, 0')
            g(f'v_mov_b64 {v(Z + 2, 2)}, 0')
            g(f's_lshl_b32 {s(T0)}, {s(sRB)}, 4')
            g(f's_add_u32 {s(T0)}, {s(T0)}, {s(sP)}')
            g(f's_lshl_b32 {s(T0)}, {s(T0)}, 7')
            g(f's_add_u32 {s(T0)}, {s(T0)}, {L.FO}')
            g(f's_add_u32 {s(T1)}, {s(T0)}, {1024 * 128}')
            g.fx_off(T2, T3)
            g.setexec(0xff)
            for r in (T0, T1, T2):
                g(f'buffer_store_dwordx4 {v(Z, 4)}, {v(vL16)}, {s(rWS, 4)}, {s(r)} offen sc1')
            g.setexec(-1)
            get(24, aSTP)
            get(25, aH2)
            g(f's_lshl_b32 {s(T0)}, {s(sR128)}, 12')
            g(f's_mul_i32 {s(T1)}, {s(sW)}, 960')
            g(f's_add_u32 {s(T0)}, {s(T0)}, {s(T1)}')
            g(f's_add_u32 {s(T0)}, {s(T0)}, {s(sKV1)}')
            g(f's_add_u32 {s(T1)}, {s(T0)}, {256 * 4096}')
            g(f's_add_u32 {s(T2)}, {s(sKV2)}, {16 * 4096}')
            g.setexec((1 << 60) - 1)
            for r in (T0, T1):
                g(f'buffer_store_dwordx4 {v(Z, 4)}, {v(vL16)}, {s(rWS, 4)}, {s(r)} offen sc1')
            g.setexec(0x0001000100010001)
            for r in (sKV2, T2):
                g(f'buffer_store_dwordx4 {v(Z, 4)}, {v(25)}, {s(rWS, 4)}, {s(r)} offen sc1')
            g.setexec(0xffff)
            g(f'buffer_store_dwordx4 {v(Z, 4)}, {v(24)}, {s(rWS, 4)}, 0 offen sc1')
            g.setexec(-1)
        g(f'v_lshlrev_b32 {v(vT)}, 7, {v(vLANE)}')
        g(f's_lshr_b32 {s(T0)}, {s(sCG)}, 1')
        g(f's_lshl_b32 {s(T0)}, {s(T0)}, 11')
        g(f's_add_u32 {s(T0)}, {s(T0)}, {L.FWO}')
        g.poll([(vT + 1, 1, vT, s(T0), 0)], 0xffff, 3)
        g(f's_lshr_b32 {s(T0)}, {s(sR128)}, 2')
        g(f's_mul_i32 {s(T0)}, {s(T0)}, 144')
        g(f's_mul_i32 {s(T1)}, {s(sW)}, 36')
        g(f's_add_u32 {s(T0)}, {s(T0)}, {s(T1)}')
        g(f's_lshl_b32 {s(T0)}, {s(T0)}, 7')
        g(f's_add_u32 {s(T0)}, {s(T0)}, {L.FC}')
        g.poll([(vT + 1, 1, vT, s(T0), 0)], (1 << 36) - 1, 4)
        g.barrier()
        if g.opt.stop == 'conv':
            g.branch('s_branch', 'L_fin')

        g.label('L_layer')
        g.stamp(8)
        XA = 112
        AC = [48, 76]
        GR = [104, 108]
        def ldX(j):
            if j >= 36 or 'noload1' in g.opt.exp:
                return
            if j and j % 4 == 0:
                g(f's_add_u32 {s(sXP)}, {s(sXP)}, 4096')
            off = f' offset:{(j % 4) * 1024}' if j % 4 else ''
            g(f'buffer_load_dwordx4 {v(XA + 4 * j, 4)}, {v(vL16)}, {s(rWS, 4)}, {s(sXP)} offen{off} sc1')
        NPRE = g.opt.npre
        for j in range(NPRE):
            ldX(j)
        g(f's_cmp_eq_u32 {s(sLAY)}, 0')
        with g.skip_if('s_cbranch_scc1'):
            g('s_barrier')
        vW1, vW2, vW0 = 6, 7, 8
        get(vW0, aWP)
        g(f'v_add_u32 {v(vW1)}, {9 * 5120}, {v(vW0)}')
        g(f'v_add_u32 {v(vW2)}, {L.L_P2}, {v(vW0)}')

        def rdW(k, T):
            if T < 5:
                base, off = (vW0, k * 5120) if k < 9 else (vW1, (k - 9) * 5120)
                g(f'ds_read_b128 {a(20 * (k & 1) + 4 * T, 4)}, {v(base)} offset:{off + 1024 * T}')
            else:
                g(f'ds_read_b128 {a(40 + 8 * (k & 3) + 4 * (T - 5), 4)}, {v(vW2)} offset:{k * 2048 + 1024 * (T - 5)}')
        for T in range(5):
            rdW(0, T)
        g(f'v_swap_b32 {v(XA + 2)}, {v(XA + 4)}')
        g(f'v_swap_b32 {v(XA + 3)}, {v(XA + 5)}')
        for k in range(18):
            x = XA + 8 * k
            for t in range(2):
                g.mfma(v(GR[t], 4), v(x + 4 * t, 4), v(x + 4 * t, 4), v(GR[t], 4) if k else '0')
                ldX(NPRE + 2 * k + t)
            for T in range(5):
                for t in range(2):
                    d = v(AC[t] + 4 * T, 4)
                    if 'nomfma1' not in g.opt.exp or k == 0:
                        g.mfma(d, a(20 * (k & 1) + 4 * T, 4), v(x + 4 * t, 4), d if k else '0')
                    if t == 0 and k < 17:
                        rdW(k + 1, T)
                    if t == 1 and T in (2, 3) and k < 17:
                        g(f'v_swap_b32 {v(x + 8 + T)}, {v(x + 10 + T)}')
        g.stamp(9)
        g.barrier()
        g(f'v_mov_b64 {v(8, 2)}, 0')
        g(f'v_mov_b64 {v(10, 2)}, 0')
        g(f'v_lshlrev_b32 {v(12)}, 4, {v(vTID)}')
        g(f'v_add_u32 {v(12)}, {L.L_KVT}, {v(12)}')
        g(f'ds_write_b128 {v(12)}, {v(8, 4)}')
        C = [8, 10]
        RSV = [12, 14]
        g(f'v_and_b32 {v(16)}, 3, {v(vI)}')
        for jj in range(1, 4):
            g(f'v_cmp_eq_u32 vcc, {jj}, {v(16)}')
            for t in range(2):
                g(f'v_cndmask_b32 {v(GR[t])}, {v(GR[t])}, {v(GR[t] + jj)}, vcc')
        g(f'v_lshrrev_b32 {v(16)}, 2, {v(vI)}')
        g(f'v_cmp_eq_u32 vcc, {v(16)}, {v(vG)}')
        for t in range(2):
            g(f'v_cndmask_b32 {v(GR[t])}, 0, {v(GR[t])}, vcc')
        g.xg_sum2(GR[0], GR[1], 16)
        for t in range(2):
            g.ln_coef(AC[t] + 18, GR[t], RSV[t], None)
        for t in range(2):
            g(f'v_mul_f32 {v(C[t])}, 0x3fb8aa3b, {v(RSV[t])}')
        TM = [16, 32]
        VP = [104, 108]
        vSC = 6
        get(vSC, aSCW)
        g(f'v_lshlrev_b32 {v(16)}, 4, {v(vG)}')
        g(f'v_sub_u32 {v(17)}, {v(vSC)}, {v(16)}')
        for t in range(2):
            b = AC[t]
            g(f'v_mul_f32 {v(b + 9)}, {v(RSV[t])}, {v(b + 9)}')
            for k in range(4):
                g(f'v_pk_mul_f32 {v(b + 10 + 2 * k, 2)}, {v(b + 10 + 2 * k, 2)}, {v(RSV[t], 2)} op_sel_hi:[1,0]')
            for d in range(4):
                g(f'v_cvt_pk_bf16_f32 {v(VP[t] + d)}, {v(b + 9 + 2 * d)}, {v(b + 10 + 2 * d)}')
            g(f'v_cvt_pk_bf16_f32 {v(b + 18)}, {v(b + 17)}, 1.0')
            o = 160 + 16 * 264 * t
            g(f'ds_write_b64 {v(17)}, {v(VP[t], 2)} offset:{o}')
            g(f'ds_write_b64 {v(17)}, {v(VP[t] + 2, 2)} offset:{o + 8}')
            g(f'ds_write_b32 {v(17)}, {v(b + 18)} offset:{o + 16}')
        PK = [[AC[t] + 10 + d for d in range(9)] for t in range(2)]
        g.softmax2([AC[0], AC[1]], False, C, TM, PK)
        for t in range(2):
            o = 16 * 264 * t
            for d in range(4):
                g(f'ds_write_b64 {v(vSC)}, {v(PK[t][2 * d], 2)} offset:{o + 8 * d}')
            g(f'ds_write_b32 {v(vSC)}, {v(PK[t][8])} offset:{o + 32}')
        vPA, vPB = 16, 19
        for Tm in range(3):
            get(vPA + Tm, aPA0 + Tm)
        get(vPB, aPB)
        g.barrier()
        g.stamp(10)
        KD = 20
        for ks in range(4):
            for rho in range(2):
                g(f'ds_read_b64_tr_b16 {a(72 + 16 * ks + 2 * rho, 2)}, {v(vPB)} offset:{(32 * ks + rho) * 264}')
            for Tm in range(3):
                for rho in range(2):
                    g(f'ds_read_b64_tr_b16 {a(72 + 16 * ks + 4 + 4 * Tm + 2 * rho, 2)}, {v(vPA + Tm)} offset:{(32 * ks + rho) * 264}')
            if ks == 1 or ks == 3:
                for k2 in (ks - 1, ks):
                    for Tm in range(3):
                        d = v(KD + 4 * Tm, 4)
                        g.mfma(d, a(72 + 16 * k2 + 4 + 4 * Tm, 4), a(72 + 16 * k2, 4), d if k2 else '0')
        for k in range(3):
            rdW(k, 5)
            rdW(k, 6)
        G1_, G2_ = 32, 36
        get(40, aKVS)
        get(41, aKVS2)
        g(f'v_mov_b32 {v(G1_ + 3)}, {v(vTAG)}')
        g(f'v_mov_b32 {v(G2_ + 3)}, {v(vTAG)}')
        g(f's_lshl_b32 {s(T0)}, {s(sR128)}, 12')
        g(f's_add_u32 {s(T0)}, {s(T0)}, {s(sKV1)}')
        for d in range(3):
            g(f'v_cvt_pk_bf16_f32 {v(G1_ + d)}, {v(KD + 2 * d)}, {v(KD + 2 * d + 1)}')
        for d in range(3):
            g(f'v_cvt_pk_bf16_f32 {v(G2_ + d)}, {v(KD + 6 + 2 * d)}, {v(KD + 7 + 2 * d)}')
        g.setexec(0x03ff03ff03ff03ff)
        g(f'buffer_store_dwordx4 {v(G1_, 4)}, {v(40)}, {s(rWS, 4)}, {s(T0)} offen sc1')
        g.setexec(0x000003ff000003ff)
        g.last_flag = g(f'buffer_store_dwordx4 {v(G2_, 4)}, {v(41)}, {s(rWS, 4)}, {s(T0)} offen sc1')
        g.setexec(-1)
        g.stamp(11)
        g(f's_mul_i32 {s(sBG)}, {s(sCG)}, {L.WOSZ}')
        g(f's_mul_i32 {s(sBL)}, {s(sW)}, {21 * 1024}')
        g(f's_add_u32 {s(sBG)}, {s(sBG)}, {s(sBL)}')
        g(f's_add_u32 {s(sBG)}, {s(sBG)}, {L.WOF}')
        woit = g.dma_items(21)
        NW0 = g.opt.nw0
        g.bg_start(woit[:NW0], 6, 3)
        H1 = 32
        get(41, aH1)
        for k in range(18):
            if k == g.opt.h1at:
                g.bg_flush()
                g(f'buffer_load_dwordx4 {v(H1, 4)}, {v(41)}, {s(rWS, 4)}, {s(sKV1)} offen sc1')
            x = XA + 8 * k
            if k + 3 < 18:
                rdW(k + 3, 5)
            for T in (5, 6):
                for t in range(2):
                    d = v(AC[t] + 4 * T, 4)
                    g.mfma(d, a(40 + 8 * (k & 3) + 4 * (T - 5), 4), v(x + 4 * t, 4), d if k else '0')
                    if T == 5 and t == 1 and k + 3 < 18:
                        rdW(k + 3, 6)
        g.stamp(12)
        g.poll_finish(H1, 41, s(sKV1), -1, 5, n=4)
        U = 116
        for d in range(3):
            g.unpack(U + 2 * d, U + 2 * d + 1, H1 + d)
        for sh in (8, 4, 2, 1):
            for d in range(6):
                g(f'v_add_f32_dpp {v(U + d)}, {v(U + d)}, {v(U + d)} row_ror:{sh} row_mask:0xf bank_mask:0xf')
        get(41, aH2)
        for d in range(3):
            g(f'v_cvt_pk_bf16_f32 {v(H1 + d)}, {v(U + 2 * d)}, {v(U + 2 * d + 1)}')
        g.setexec(0x0001000100010001)
        g.last_flag = g(f'buffer_store_dwordx4 {v(H1, 4)}, {v(41)}, {s(rWS, 4)}, {s(sKV2)} offen sc1')
        g.setexec(-1)
        g.stamp(13)
        PQ = [128, 140]
        for t in range(2):
            g(f'v_mov_b32 {v(PQ[t] + 9)}, 0')
            g(f'v_mov_b64 {v(PQ[t] + 10, 2)}, 0')
        g.softmax2([AC[0] + 19, AC[1] + 19], True, C, TM, [[PQ[t] + d for d in range(9)] for t in range(2)])
        g.stamp(14)
        get(41, aH3)
        get(42, aKT)
        g.poll([(H1, 4, 41, s(sKV2), 0)], s(sM1, 2), 6)
        g.setexec(s(sM2, 2))
        g(f'ds_write2_b32 {v(42)}, {v(H1)}, {v(H1 + 1)} offset0:0 offset1:1')
        g(f'ds_write_b32 {v(42)}, {v(H1 + 2)} offset:8')
        g.setexec(-1)
        for T in range(3):
            get(16 + T, aOA0 + T)
        g.barrier()
        g.stamp(15)
        for T in range(3):
            for kk in range(3):
                g(f'ds_read_b128 {a(72 + 12 * T + 4 * kk, 4)}, {v(16 + T)} offset:{16 * kk}')
        OD = [48, 60]
        for T in (2, 0, 1):
            for kk in range(3):
                for t in range(2):
                    d = v(OD[t] + 4 * T, 4)
                    g.mfma(d, a(72 + 12 * T + 4 * kk, 4), v(PQ[t] + 4 * kk, 4), d if kk else '0')
        get(20, aOS)
        get(21, aOE)
        RC = [22, 24]
        OP = [28, 32]
        OX = 36
        for t in range(2):
            g(f'v_add_f32 {v(RC[t])}, 0x358637bd, {v(OD[t] + 8)}')
        for t in range(2):
            g(f'v_rcp_f32 {v(RC[t])}, {v(RC[t])}')
        for t in range(2):
            g(f'v_mul_f32 {v(OD[t] + 9)}, {v(RC[t])}, {v(OD[t] + 9)}')
            g(f'v_mul_f32 {v(OD[t] + 10)}, {v(RC[t])}, {v(OD[t] + 10)}')
            g(f'v_cvt_pk_bf16_f32 {v(OX + t)}, {v(OD[t] + 9)}, {v(OD[t] + 10)}')
        for t in range(2):
            for k in range(4):
                g(f'v_pk_mul_f32 {v(OD[t] + 2 * k, 2)}, {v(OD[t] + 2 * k, 2)}, {v(RC[t], 2)} op_sel_hi:[1,0]')
            for k in range(4):
                g(f'v_cvt_pk_bf16_f32 {v(OP[t] + k)}, {v(OD[t] + 2 * k)}, {v(OD[t] + 2 * k + 1)}')
            g(f'buffer_store_dwordx4 {v(OP[t], 4)}, {v(20)}, {s(rWS, 4)}, {s(sOFB)} offen offset:{128 * t} sc1')
        g(f'v_permlane32_swap_b32 {v(OX)}, {v(OX + 1)}')
        g.setexec(0x0000ffff0000ffff)
        ho = g(f'buffer_store_dwordx2 {v(OX, 2)}, {v(21)}, {s(rWS, 4)}, {s(sOFB)} offen sc1')
        g.setexec(-1)
        g.stamp(23)
        NW1 = NW0 + g.opt.nw1
        for it in woit[NW0:NW1]:
            it()
        g(f's_lshl_b32 {s(T0)}, {s(sRB)}, 4')
        g(f's_add_u32 {s(T0)}, {s(T0)}, {s(sP)}')
        g(f's_lshl_b32 {s(T0)}, {s(T0)}, 7')
        g(f's_add_u32 {s(T0)}, {s(T0)}, {s(sFO)}')
        g.stamp(24)
        g.wait_vm(ho)
        g.flag_store(T0)
        g.stamp(16)
        for it in woit[NW1:]:
            it()
        if g.opt.stop == 'o1':
            g.branch('s_branch', 'L_fin')
        X1, YY = 68, 78
        g(f's_cmp_lg_u32 {s(sLAY)}, 0')
        with g.skip_if('s_cbranch_scc1'):
            get(16, aX1)
            g(f's_mov_b32 {s(T1)}, {L.X1P}')
            for T in range(5):
                if T == 4:
                    g(f's_add_u32 {s(T1)}, {s(T1)}, 4096')
                o = 1024 * (T & 3)
                g(f'buffer_load_dwordx2 {v(X1 + 2 * T, 2)}, {v(16)}, {s(rWS, 4)}, {s(T1)} offen offset:{o} sc1')
        vWo1, vWo4, vWo5 = 6, 7, 8
        g(f'v_add_u32 {v(vWo1)}, {9 * 4608}, {v(vL16)}')
        get(vWo4, aW4)
        g(f'v_add_u32 {v(vWo5)}, {9 * 4608}, {v(vWo4)}')
        g(f'v_lshlrev_b32 {v(9)}, 8, {v(vG)}')
        g(f'v_lshl_add_u32 {v(9)}, {v(vI)}, 3, {v(9)}')

        def rdO(k, T):
            hi = k >= 9
            base = ((vL16, vWo1) if T < 4 else (vWo4, vWo5))[hi]
            off = (k - 9 * hi) * 4608 + (1024 * T if T < 4 else 0)
            g(f'ds_read_b128 {a(20 * (k % 3) + 4 * T, 4)}, {v(base)} offset:{off}')
        g(f'v_lshlrev_b32 {v(17)}, 7, {v(vI)}')
        g(f's_lshl_b32 {s(T0)}, {s(sRB2)}, 11')
        g(f's_add_u32 {s(T0)}, {s(T0)}, {s(sFO)}')
        g.poll([(18, 1, 17, s(T0), 0)], 0xffff, 7)
        g.stamp(17)
        OA = 112
        g(f's_lshl_b32 {s(T0)}, {s(sR64)}, 2')
        g(f's_add_u32 {s(T0)}, {s(T0)}, {s(sW)}')
        g(f's_mul_i32 {s(T0)}, {s(T0)}, 18432')
        g(f's_add_u32 {s(T0)}, {s(T0)}, {s(sOFB)}')
        def ldO(k):
            if k >= 18 or 'noload2' in g.opt.exp:
                return
            if k and k % 4 == 0:
                g(f's_add_u32 {s(T0)}, {s(T0)}, 4096')
            off = f' offset:{(k % 4) * 1024}' if k % 4 else ''
            if k < 16:
                g(f'buffer_load_dwordx4 {v(OA + 4 * k, 4)}, {v(vL16)}, {s(rWS, 4)}, {s(T0)} offen{off} sc1')
            else:
                for hf in range(2):
                    g(f'buffer_load_dwordx2 {v(OA + 4 * k + 2 * hf, 2)}, {v(9)}, {s(rWS, 4)}, {s(T0)} offen offset:{(k % 4) * 1024 + 128 * hf} sc1')
        NP2 = g.opt.np2
        for k in range(NP2):
            ldO(k)
        g.barrier()
        for k in range(2):
            for T in range(5):
                rdO(k, T)
        A2 = 48
        for k in range(18):
            for T in range(5):
                d = v(A2 + 4 * T, 4)
                g.mfma(d, a(20 * (k % 3) + 4 * T, 4), v(OA + 4 * k, 4), d if k else '0')
                if k + 2 < 18:
                    rdO(k + 2, T)
                if T == 0:
                    ldO(NP2 + k)
        g.stamp(18)
        g(f's_cmp_lg_u32 {s(sLAY)}, 0')
        g.branch('s_cbranch_scc1', 'L_last')
        g(f's_mov_b32 {s(T2)}, {L.YP}')
        for T in range(5):
            if T == 4:
                g(f's_add_u32 {s(T2)}, {s(T2)}, 4096')
            g(f'buffer_load_dwordx2 {v(YY + 2 * T, 2)}, {v(16)}, {s(rWS, 4)}, {s(T2)} offen offset:{1024 * (T & 3)} sc1')
        g.barrier()
        sDL, sDG = T4, T5
        g(f's_mul_i32 {s(sDL)}, {s(sW)}, {23 * 1024}')
        g(f's_mul_i32 {s(sDG)}, {s(sP)}, {L.WPSZ}')
        g(f's_add_u32 {s(sDG)}, {s(sDG)}, {s(sDL)}')
        g(f's_add_u32 {s(sDG)}, {s(sDG)}, {L.WP}')
        UX = 112
        for T in range(5):
            for d in range(2):
                g.unpack(UX + 4 * T + 2 * d, UX + 4 * T + 2 * d + 1, X1 + 2 * T + d)
        for k in range(10):
            g(f'v_pk_add_f32 {v(A2 + 2 * k, 2)}, {v(A2 + 2 * k, 2)}, {v(UX + 2 * k, 2)}')
        g.setexec(0xffffffff00000000)
        g(f'v_mov_b64 {v(A2 + 16, 2)}, 0')
        g(f'v_mov_b64 {v(A2 + 18, 2)}, 0')
        g.setexec(-1)
        SS, SQ = 8, 10
        g(f'v_pk_add_f32 {v(SS, 2)}, {v(A2, 2)}, {v(A2 + 2, 2)}')
        g(f'v_pk_mul_f32 {v(SQ, 2)}, {v(A2, 2)}, {v(A2, 2)}')
        g(f'v_pk_fma_f32 {v(SQ, 2)}, {v(A2 + 2, 2)}, {v(A2 + 2, 2)}, {v(SQ, 2)}')
        for k in range(2, 10):
            g(f'v_pk_add_f32 {v(SS, 2)}, {v(SS, 2)}, {v(A2 + 2 * k, 2)}')
            g(f'v_pk_fma_f32 {v(SQ, 2)}, {v(A2 + 2 * k, 2)}, {v(A2 + 2 * k, 2)}, {v(SQ, 2)}')
        SP = 12
        g(f'v_add_f32 {v(SP)}, {v(SS)}, {v(SS + 1)}')
        g(f'v_add_f32 {v(SP + 1)}, {v(SQ)}, {v(SQ + 1)}')
        get(16, aSTP)
        g(f'v_mov_b32 {v(SP + 3)}, {v(vTAG)}')
        g(f'v_mov_b32 {v(SP + 2)}, 0')
        g.xg_sum2(SP, SP + 1, 17)
        g.setexec(0xffff)
        hs = g(f'buffer_store_dwordx4 {v(SP, 4)}, {v(16)}, {s(rWS, 4)}, 0 offen sc1')
        g.setexec(-1)
        g.dma(sDL, sDG, 8)
        UY = 132
        for T in range(5):
            for d in range(2):
                g.unpack(UY + 4 * T + 2 * d, UY + 4 * T + 2 * d + 1, YY + 2 * T + d)
        get(16, aSTG)
        g(f's_movk_i32 {s(T0)}, 4096')
        g.wait_vm(hs)
        g.stamp(19)
        SA, SB = 20, 24
        g.poll([(SA, 4, 16, '0', 0), (SB, 4, 16, s(T0), 0)], -1, 8)
        g.stamp(20)
        g(f'v_pk_add_f32 {v(SA, 2)}, {v(SA, 2)}, {v(SB, 2)}')
        g.xg_sum2(SA, SA + 1, 17)
        g.ln_coef(SA, SA + 1, 8, 10)
        for k in range(10):
            g(f'v_pk_fma_f32 {v(UX + 2 * k, 2)}, {v(A2 + 2 * k, 2)}, {v(8, 2)}, {v(10, 2)} op_sel_hi:[1,0,0]')
        X3 = 28
        for k in range(10):
            g(f'v_pk_fma_f32 {v(UX + 2 * k, 2)}, {v(UX + 2 * k, 2)}, {v(UY + 2 * k, 2)}, {v(A2 + 2 * k, 2)}')
        for k in range(10):
            g(f'v_cvt_pk_bf16_f32 {v(X3 + k)}, {v(UX + 2 * k)}, {v(UX + 2 * k + 1)}')
        for k in range(10):
            keep(aKEEP + k, X3 + k)
        get(16, aX3)
        g(f's_mov_b32 {s(T0)}, {L.X3P}')
        g(f's_mov_b32 {s(T1)}, {L.X3P + 4096}')
        for pr in range(3):
            b = X3 + 4 * pr
            if pr < 2:
                g(f'v_mov_b64 {v(18, 2)}, {v(b, 2)}')
                for d in range(2):
                    g(f'v_mov_b32_dpp {v(b + d)}, {v(b + 2 + d)} row_ror:8 row_mask:0xf bank_mask:0xc')
                for d in range(2):
                    g(f'v_mov_b32_dpp {v(b + 2 + d)}, {v(18 + d)} row_ror:8 row_mask:0xf bank_mask:0x3')
                hx = g(f'buffer_store_dwordx4 {v(b, 4)}, {v(16)}, {s(rWS, 4)}, {s(T0)} offen offset:{2048 * pr} sc1')
            else:
                g(f'v_mov_b64 {v(b + 2, 2)}, 0')
                for d in range(2):
                    g(f'v_mov_b32_dpp {v(b + 2 + d)}, {v(b + d)} row_ror:8 row_mask:0xf bank_mask:0x3')
                g.setexec(0x00ff00ff)
                hx = g(f'buffer_store_dwordx4 {v(b, 4)}, {v(16)}, {s(rWS, 4)}, {s(T1)} offen sc1')
                g.setexec(-1)
        g(f's_add_u32 {s(sDL)}, {s(sDL)}, 4096')
        g(f's_add_u32 {s(sDG)}, {s(sDG)}, 4096')
        g.dma(sDL, sDG, 8)
        g.fx_off(T0, T1)
        g.wait_vm(hx)
        g.flag_store(T0)
        g.stamp(21)
        g(f's_add_u32 {s(sDL)}, {s(sDL)}, 4096')
        g(f's_add_u32 {s(sDG)}, {s(sDG)}, 4096')
        g.dma(sDL, sDG, 7)
        if g.opt.stop == 'x3':
            g.branch('s_branch', 'L_fin')
        g(f's_mov_b32 {s(sLAY)}, 1')
        g(f's_mul_i32 {s(sXP)}, {s(sRB)}, 36864')
        g(f's_add_u32 {s(sXP)}, {s(sXP)}, {L.X3P}')
        g(f's_add_u32 {s(sOFB)}, {s(sOFB)}, {L.ARR}')
        g(f's_add_u32 {s(sKV1)}, {s(sKV1)}, {256 * 4096}')
        g(f's_add_u32 {s(sKV2)}, {s(sKV2)}, {16 * 4096}')
        g(f's_add_u32 {s(sFO)}, {s(sFO)}, {1024 * 128}')
        g(f'v_lshlrev_b32 {v(17)}, 7, {v(vI)}')
        g(f's_lshl_b32 {s(T0)}, {s(sRB)}, 11')
        g(f's_add_u32 {s(T0)}, {s(T0)}, {L.FX}')
        g.poll([(18, 1, 17, s(T0), 0)], 0xffff, 9)
        if g.opt.stamps:
            g(f'v_accvgpr_read_b32 v47, a255')
            g(f'v_accvgpr_write_b32 a254, v47')
        assert not g.vm and not g.lg
        g.branch('s_branch', 'L_layer')
        g.label('L_last')
        g.vm, g.lg = [], []
        for k in range(10):
            get(X1 + k, aKEEP + k)
        get(16, aOUT)
        for k in range(10):
            g.unpack(UX + 2 * k, UX + 2 * k + 1, X1 + k)
        for k in range(10):
            g(f'v_pk_add_f32 {v(A2 + 2 * k, 2)}, {v(A2 + 2 * k, 2)}, {v(UX + 2 * k, 2)}')
        for k in range(10):
            g(f'v_cvt_pk_bf16_f32 {v(X3 + k)}, {v(A2 + 2 * k)}, {v(A2 + 2 * k + 1)}')
        g(f'v_mov_b64 {v(X3 + 10, 2)}, 0')
        for pr in range(3):
            b = X3 + 4 * pr
            g(f'v_permlane16_swap_b32 {v(b)}, {v(b + 2)}')
            g(f'v_permlane16_swap_b32 {v(b + 1)}, {v(b + 3)}')
            if pr == 2:
                g.setexec(0xffff)
            g(f'buffer_store_dwordx4 {v(b, 4)}, {v(16)}, {s(rOUT, 4)}, 0 offen offset:{64 * pr}{" sc1" if g.opt.outsc1 else ""}')
        g.setexec(-1)
        g.stamp(22)
        g.stamp(31, True)

    def finish(self):
        g = self
        g.label('L_fin')
        g.vm, g.lg = [], []
        if g.opt.stamps:
            g(f's_lshl_b32 {s(T0)}, {s(sWG)}, 2')
            g(f's_add_u32 {s(T0)}, {s(T0)}, {s(sW)}')
            g(f's_lshl_b32 {s(T0)}, {s(T0)}, 8')
            g(f's_add_u32 {s(T0)}, {s(T0)}, {L.STAMP}')
            g('v_accvgpr_read_b32 v6, a255')
            g('v_accvgpr_read_b32 v7, a254')
            g(f'v_lshlrev_b32 v8, 2, {v(vLANE)}')
            g.setexec(0xffffffff)
            g(f'buffer_store_dword v6, v8, {s(rWS, 4)}, {s(T0)} offen offset:128')
            g(f'buffer_store_dword v7, v8, {s(rWS, 4)}, {s(T0)} offen')
            g.setexec(-1)
        g(f's_or_b32 {s(T0)}, {s(sWG)}, {s(sW)}')
        g(f's_cmp_lg_u32 {s(T0)}, 0')
        with g.skip_if('s_cbranch_scc1'):
            g(f's_mov_b32 {s(T0)}, {L.E}')
            g.flag_store(T0)
        g.label('L_end')
        g('s_endpgm')

    def build(self):
        g = self
        g.prologue()
        st = g.state()
        g(f's_cmp_ge_u32 {s(sWG)}, 208')
        g.branch('s_cbranch_scc1', 'L_role_w')
        g(f's_cmp_ge_u32 {s(sWG)}, 144')
        g.branch('s_cbranch_scc1', 'L_role_q')
        g.vtmp_stamp = 250
        g.role_conv()
        g.vtmp_stamp = 47
        stc, lf = g.state(), g.last_flag
        g.branch('s_cbranch_scc1', 'L_main_nc')
        g.branch('s_branch', 'L_main')
        g.label('L_role_q')
        g.set_state(st)
        g.role_q()
        g.branch('s_branch', 'L_main_nc')
        g.label('L_role_w')
        g.set_state(st)
        g.role_w()
        g.vtmp_stamp = 47
        g.label('L_main_nc')
        g.vm, g.lg = [], []
        g.w_first_half()
        g.label('L_main')
        g.set_state(stc)
        g.last_flag = lf
        g.main()
        g.finish()


HEADER = '''; Persistent single-launch kernel: H3 long-conv (MFMA Hankel form) + two Hedgehog linear-attention layers.
; @launch grid=(256,1,1) block=(256,1,1) lds={lds}
.amdgcn_target "amdgcn-amd-amdhsa--gfx950"
.text
.globl {name}_kernel
.p2align 8
.type {name}_kernel,@function
{name}_kernel:
'''
FOOTER = '''.section .rodata,"a"
.p2align 6
.amdhsa_kernel {name}_kernel
  .amdhsa_next_free_vgpr 512
  .amdhsa_next_free_sgpr 102
  .amdhsa_accum_offset 256
  .amdhsa_group_segment_fixed_size 0
  .amdhsa_kernarg_size 104
  .amdhsa_user_sgpr_count 2
  .amdhsa_user_sgpr_kernarg_segment_ptr 1
  .amdhsa_system_sgpr_workgroup_id_x 1
  .amdhsa_float_denorm_mode_32 3
.end_amdhsa_kernel
'''


def generate(opt):
    k = K(opt)
    k.build()
    sys.stderr.write(f'instructions {k.stats["n"]} nop-states {k.stats["nop"]} maxv {k.maxv} maxa {k.maxa} maxs {k.maxs}\n')
    return HEADER.format(name=NAME, lds=L.LDS_SIZE) + k.text() + FOOTER.format(name=NAME)


if __name__ == '__main__':
    ap = argparse.ArgumentParser()
    ap.add_argument('-o', default=f'cdna_kernels/{NAME}.s')
    ap.add_argument('--stamps', action='store_true')
    ap.add_argument('--dbg', action='store_true')
    ap.add_argument('--stop', default='')
    ap.add_argument('--prewait', type=int, default=1)
    ap.add_argument('--sleep', type=int, default=0)
    ap.add_argument('--exp', default='')
    ap.add_argument('--outsc1', type=int, default=1)
    ap.add_argument('--h1at', type=int, default=11)
    ap.add_argument('--nw0', type=int, default=5)
    ap.add_argument('--nw1', type=int, default=8)
    ap.add_argument('--clear', type=int, default=1)
    ap.add_argument('--dmask', type=int, default=1)
    ap.add_argument('--dwho', default='qw')
    ap.add_argument('--npre', type=int, default=8)
    ap.add_argument('--np2', type=int, default=8)
    ap.add_argument('--wo_every', type=int, default=13)
    opt = ap.parse_args()
    open(opt.o, 'w').write(generate(opt))
```

```python
import sys
import argparse
from asmgen import Gen, v, a, s
import layout as L

NAME = 'interleave_layers__ssm_conv_h3__linear_kernel_hedgehog__prompt'

sWG, sW, sTAG = 2, 3, 4
T0, T1, T2, T3, T4, T5, T6, T7 = 5, 6, 7, 8, 9, 10, 11, 12
pQ, pK, pV, pSH, pSK, pSD, pBX, pWQ = 16, 18, 20, 22, 24, 26, 28, 30
pPH, pWO, pOUT, pDBG, pWS = 32, 34, 36, 38, 40
sCNT, sLAY = 42, 43
rWS, rA, rB, rC, rD, rOUT = 44, 48, 52, 56, 60, 64
sR128, sP, sR64, sCG, sRB, sRB2 = 68, 69, 70, 71, 72, 73
sM0, sM1, sM2, sM3 = 74, 76, 78, 80
sMA, sMB = 82, 84
sXP, sOFB, sKV1, sKV2, sFO = 86, 87, 88, 89, 90
sBL, sBG = 91, 92
sSTP = 98
vTID, vLANE, vI, vG, vL16, vTAG = 0, 1, 2, 3, 4, 5
aSCW, aPA0, aPB, aKVS, aH1, aH2, aKT, aOA0, aOS, aOE = 200, 201, 204, 205, 206, 207, 208, 209, 212, 213
aX1, aSTP, aSTG, aX3, aOUT, aW4 = 214, 215, 216, 217, 218, 219
aKVS2, aH3, aWP, aKZ, aFC = 220, 221, 222, 223, 224
aKEEP = 240
POLL_LIMIT = 40000
MASKHI = '0xffff0000'


class K(Gen):
    def __init__(self, opt):
        super().__init__()
        self.opt = opt
        self.nstamp = 0
        self.last_flag = None

    def srd(self, r, ptr, size):
        self(f's_mov_b64 {s(r, 2)}, {s(ptr, 2)}')
        self(f's_mov_b32 {s(r + 2)}, {size}')
        self(f's_mov_b32 {s(r + 3)}, 0x20000')

    def stamp(self, k, cyc=False):
        if not self.opt.stamps:
            return
        self(f's_memtime {s(sSTP, 2)}' if cyc else f's_memrealtime {s(sSTP, 2)}')
        self.drain(vm=False)
        self(f'v_accvgpr_read_b32 v{self.vtmp_stamp}, a255')
        self(f'v_writelane_b32 v{self.vtmp_stamp}, {s(sSTP)}, {k}')
        self(f'v_accvgpr_write_b32 a255, v{self.vtmp_stamp}')

    vtmp_stamp = 47

    def unpack(self, dlo, dhi, src):
        self(f'v_lshlrev_b32 {v(dlo)}, 16, {v(src)}')
        self(f'v_and_b32 {v(dhi)}, {MASKHI}, {v(src)}')

    def make_tag(self):
        self(f'v_readfirstlane_b32 {s(sTAG)}, {v(vTAG)}')
        self(f's_mul_i32 {s(sTAG)}, {s(sTAG)}, {hex(L.TAGA)}')
        self(f's_add_u32 {s(sTAG)}, {s(sTAG)}, {hex(L.TAGC)}')
        self(f's_or_b32 {s(sTAG)}, {s(sTAG)}, 1')
        self(f'v_mov_b32 {v(vTAG)}, {s(sTAG)}')

    def setexec(self, m):
        if isinstance(m, int):
            m &= (1 << 64) - 1
            lo, hi = m & 0xffffffff, m >> 32
            if m == (1 << 64) - 1:
                self('s_mov_b64 exec, -1')
            elif hi == 0 and lo <= 64:
                self(f's_mov_b64 exec, {lo}')
            else:
                self(f's_mov_b32 exec_lo, {hex(lo)}')
                self(f's_mov_b32 exec_hi, {hex(hi)}')
        else:
            self(f's_mov_b64 exec, {m}')

    def flag_store(self, soff):
        self.setexec(0xff)
        h = self(f'buffer_store_dwordx4 {v(vTAG - 3, 4)}, {v(vL16)}, {s(rWS, 4)}, {s(soff)} offen sc1')
        self.setexec(-1)
        self.last_flag = h
        return h

    def poll(self, loads, mask, code):
        lp, done = self.newlabel('poll'), self.newlabel('polld')
        if self.opt.prewait:
            self.wait_vm(self.last_flag)
        self.setexec(mask)
        self(f's_mov_b32 {s(sCNT)}, {POLL_LIMIT}')
        self.label(lp)
        for dst, n, voff, soff, imm in loads:
            op = {1: 'buffer_load_dword', 4: 'buffer_load_dwordx4'}[n]
            imm += 12 if n == 1 else 0
            off = f' offset:{imm}' if imm else ''
            self(f'{op} {v(dst, n)}, {v(voff)}, {s(rWS, 4)}, {soff} offen{off} sc1')
        self.drain(lg=False)
        dst, n = loads[0][:2]
        self(f'v_cmp_ne_u32 vcc, {s(sTAG)}, {v(dst + n - 1)}')
        for dst, n, *_ in loads[1:]:
            self(f'v_cmp_ne_u32 {s(sMA, 2)}, {s(sTAG)}, {v(dst + n - 1)}')
            self(f's_or_b64 vcc, vcc, {s(sMA, 2)}')
        self.branch('s_cbranch_vccz', done)
        self('s_mov_b64 exec, vcc')
        if self.opt.sleep:
            self(f's_sleep {self.opt.sleep}')
        self(f's_sub_u32 {s(sCNT)}, {s(sCNT)}, 1')
        self.branch('s_cbranch_scc0', lp)
        if self.opt.dbg:
            self.srd(rD, pDBG, 256)
            self(f'v_mov_b32 v{self.vtmp_stamp}, {code + 1}')
            self(f'buffer_store_dword v{self.vtmp_stamp}, off, {s(rD, 4)}, 0 offset:{4 * code}')
            self.drain(lg=False)
        self.label(done)
        self.setexec(-1)

    def dma(self, lds_base_s, soff_s, n, voff=vL16, srd=rWS, sc1=True):
        h = None
        for i in range(n):
            if i % 4 == 0:
                if i:
                    self(f's_add_u32 {s(lds_base_s)}, {s(lds_base_s)}, 4096')
                    self(f's_add_u32 {s(soff_s)}, {s(soff_s)}, 4096')
                self(f's_mov_b32 m0, {s(lds_base_s)}')
            off = f' offset:{(i % 4) * 1024}' if i % 4 else ''
            h = self(f'buffer_load_dwordx4 {v(voff)}, {s(srd, 4)}, {s(soff_s)} offen{off}{" sc1" if sc1 else ""} lds')
        return h

    def dma_items(self, n, voff=vL16, srd=rWS, sc1=True, stride=4096, gate=None):
        def item(i):
            def f():
                if i % 4 == 0:
                    self(f's_mov_b32 m0, {s(sBL)}')
                off = f' offset:{(i % 4) * 1024}' if i % 4 else ''
                if gate is not None:
                    self.setexec(s(gate, 2))
                    self.cond_depth += 1
                self.last_dma = self(f'buffer_load_dwordx4 {v(voff)}, {s(srd, 4)}, {s(sBG)} offen{off}{" sc1" if sc1 else ""} lds')
                if gate is not None:
                    self.cond_depth -= 1
                    self.setexec(-1)
                if i % 4 == 3:
                    self(f's_add_u32 {s(sBL)}, {s(sBL)}, {stride}')
                    self(f's_add_u32 {s(sBG)}, {s(sBG)}, {stride}')
            return f
        return [item(i) for i in range(n)]

    def poll_issue(self, dst, voff, soff, mask):
        self.setexec(mask)
        self(f'buffer_load_dword {v(dst)}, {v(voff)}, {s(rWS, 4)}, {soff} offen offset:12 sc1')
        self.setexec(-1)

    def poll_finish(self, dst, voff, soff, mask, code, n=1):
        if mask != -1:
            self.setexec(mask)
        self(f'v_cmp_ne_u32 vcc, {s(sTAG)}, {v(dst + n - 1)}')
        if mask != -1:
            self.setexec(-1)
        with self.skip_if('s_cbranch_vccz'):
            self.poll([(dst, n, voff, soff, 0)], 'vcc', code)

    def xg_sum2(self, x, y, t):
        self(f'v_permlane16_swap_b32 {v(x)}, {v(y)}')
        self(f'v_add_f32 {v(x)}, {v(x)}, {v(y)}')
        self(f'v_mov_b32 {v(y)}, {v(x)}')
        self(f'v_permlane32_swap_b32 {v(x)}, {v(y)}')
        self(f'v_add_f32 {v(x)}, {v(x)}, {v(y)}')
        self(f'v_mov_b32 {v(y)}, {v(x)}')
        self(f'v_permlane16_swap_b32 {v(x)}, {v(y)}')

    def mfma(self, d, A, B, c):
        self(f'v_mfma_f32_16x16x32_bf16 {d}, {A}, {B}, {c}')

    def prologue(self):
        g = self
        g(f's_cmp_ge_u32 {s(sWG)}, 256')
        g.branch('s_cbranch_scc1', 'L_end')
        g(f's_load_dwordx16 {s(16, 16)}, s[0:1], 0')
        g(f's_load_dwordx8 {s(32, 8)}, s[0:1], 64')
        g(f's_load_dwordx2 {s(40, 2)}, s[0:1], 96')
        g(f'v_lshrrev_b32 v6, 6, {v(vTID)}')
        g(f'v_and_b32 {v(vLANE)}, 63, {v(vTID)}')
        g(f'v_readfirstlane_b32 {s(sW)}, v6')
        g(f'v_and_b32 {v(vI)}, 15, {v(vTID)}')
        g(f'v_lshrrev_b32 {v(vG)}, 4, {v(vLANE)}')
        g(f'v_lshlrev_b32 {v(vL16)}, 4, {v(vLANE)}')
        if g.opt.stamps:
            g('v_accvgpr_write_b32 a255, 0')
        g.srd(rWS, pWS, L.WSSZ)
        g(f'buffer_load_dword {v(vTAG)}, off, {s(rWS, 4)}, 0 offset:12 sc1')
        g.stamp(0)
        g.stamp(30, True)
        g(f's_and_b32 {s(T0)}, {s(sWG)}, 7')
        g(f's_lshr_b32 {s(T1)}, {s(sWG)}, 7')
        g(f's_lshl_b32 {s(T0)}, {s(T0)}, 1')
        g(f's_add_u32 {s(sR128)}, {s(T0)}, {s(T1)}')
        g(f's_bfe_u32 {s(sP)}, {s(sWG)}, 0x40003')
        g(f's_lshr_b32 {s(T0)}, {s(sP)}, 3')
        g(f's_lshl_b32 {s(sR64)}, {s(sR128)}, 1')
        g(f's_add_u32 {s(sR64)}, {s(sR64)}, {s(T0)}')
        g(f's_and_b32 {s(sCG)}, {s(sP)}, 7')
        g(f's_lshl_b32 {s(sRB)}, {s(sR128)}, 2')
        g(f's_add_u32 {s(sRB)}, {s(sRB)}, {s(sW)}')
        g(f's_lshr_b32 {s(T0)}, {s(sW)}, 1')
        g(f's_lshl_b32 {s(sRB2)}, {s(sR64)}, 1')
        g(f's_add_u32 {s(sRB2)}, {s(sRB2)}, {s(T0)}')
        g.srd(rOUT, pOUT, L.ARR)

    def role_conv(self):
        g = self
        vOK, vOA, vO2 = 6, 7, 48
        RK, RV, RW = 8, 30, 50
        UK, UW, UV, KS, OUT = 58, 102, 118, 150, 156
        sGam, sMu, sCh, sLB = T4, T5, T6, T7
        g.srd(rA, pK, L.ARR)
        g.srd(rB, pV, L.ARR)
        g.srd(rD, pSH, 576 * 8)
        g(f's_lshr_b32 {s(sGam)}, {s(sWG)}, 4')
        g(f's_and_b32 {s(sMu)}, {s(sWG)}, 15')
        g(f's_lshl_b32 {s(T0)}, {s(sMu)}, 7')
        g(f's_lshl_b32 {s(T1)}, {s(sW)}, 5')
        g(f's_add_u32 {s(T0)}, {s(T0)}, {s(T1)}')
        g(f's_mul_i32 {s(T1)}, {s(T0)}, 1152')
        g(f's_lshl_b32 {s(T2)}, {s(sGam)}, 7')
        g(f's_add_u32 {s(T1)}, {s(T1)}, {s(T2)}')
        g(f'v_mul_u32_u24 {v(vOK)}, 9216, {v(vG)}')
        g(f'v_lshl_add_u32 {v(vOK)}, {v(vI)}, 3, {v(vOK)}')
        g(f'v_add_u32 {v(vOK)}, {s(T1)}, {v(vOK)}')
        g(f'v_subrev_u32 {v(vOA)}, 3456, {v(vOK)}')
        g(f's_lshl_b32 {s(T2)}, {s(sGam)}, 9')
        g(f'v_lshlrev_b32 {v(vO2)}, 5, {v(vI)}')
        g(f's_movk_i32 {s(T3)}, 4608')
        g(f'buffer_load_dwordx4 {v(RW, 4)}, {v(vO2)}, {s(rD, 4)}, {s(T2)} offen')
        g(f'buffer_load_dwordx4 {v(RW + 4, 4)}, {v(vO2)}, {s(rD, 4)}, {s(T2)} offen offset:16')
        for j in range(11):
            if j < 3:
                g(f'buffer_load_dwordx2 {v(RK + 2 * j, 2)}, {v(vOA)}, {s(rA, 4)}, 0 offen offset:{1152 * j}')
            else:
                jj = j - 3
                so = '0' if jj < 4 else s(T3)
                g(f'buffer_load_dwordx2 {v(RK + 2 * j, 2)}, {v(vOK)}, {s(rA, 4)}, {so} offen offset:{1152 * (jj % 4)}')
        for j in range(8):
            so = '0' if j < 4 else s(T3)
            g(f'buffer_load_dwordx2 {v(RV + 2 * j, 2)}, {v(vOK)}, {s(rB, 4)}, {so} offen offset:{1152 * (j % 4)}')
        vK0, vDv, vS2 = 46, 172, 49
        g.srd(rC, pSK, L.ARR)
        g(f's_lshl_b32 {s(sCh)}, {s(sWG)}, 2')
        g(f's_add_u32 {s(sCh)}, {s(sCh)}, {s(sW)}')
        g(f's_mul_i32 {s(sLB)}, {s(sW)}, {L.CONVW}')
        g(f's_add_u32 {s(sLB)}, {s(sLB)}, {L.L_CONV}')
        g(f's_lshl_b32 {s(T2)}, {s(sCh)}, 12')
        g(f'v_lshlrev_b32 {v(vS2)}, 6, {v(vLANE)}')
        g(f'buffer_load_ushort {v(vK0)}, {v(vS2)}, {s(rC, 4)}, {s(T2)} offen')
        g.srd(rD, pSD, 1152)
        g(f's_lshl_b32 {s(T2)}, {s(sCh)}, 1')
        g(f'buffer_load_ushort {v(vDv)}, off, {s(rD, 4)}, {s(T2)}')
        g(f's_lshl_b32 {s(T2)}, {s(sCh)}, 7')
        g(f's_add_u32 {s(T2)}, {s(T2)}, {L.FT}')
        g.clear_line(T2)
        vOU = vOA
        g(f's_lshl_b32 {s(T2)}, {s(sGam)}, 18')
        g(f's_lshl_b32 {s(T0)}, {s(T0)}, 1')
        g(f's_sub_u32 {s(T2)}, {s(T2)}, {s(T0)}')
        g(f's_add_u32 {s(T2)}, {s(T2)}, {L.UR + 4080}')
        g(f'v_lshlrev_b32 {v(vOU)}, 14, {v(vI)}')
        g(f'v_lshlrev_b32 {v(vO2)}, 4, {v(vG)}')
        g(f'v_sub_u32 {v(vOU)}, {v(vOU)}, {v(vO2)}')
        g(f'v_add_u32 {v(vOU)}, {s(T2)}, {v(vOU)}')
        g.consts(180)
        for cc in range(4):
            for dd in range(2):
                b = UW + 8 * (cc >> 1) + (cc & 1)
                g.unpack(b + 4 * dd, b + 4 * dd + 2, RW + 2 * cc + dd)
        g.stamp(1)
        for j in range(11):
            for P in range(2):
                g.unpack(UK + 4 * j + 2 * P, UK + 4 * j + 2 * P + 1, RK + 2 * j + P)
        for j in range(8):
            for P in range(2):
                g.unpack(UV + 4 * j + 2 * P, UV + 4 * j + 2 * P + 1, RV + 2 * j + P)
            for P in range(2):
                g(f'v_pk_mul_f32 {v(KS + 2 * P, 2)}, {v(UK + 4 * (j + 3) + 2 * P, 2)}, {v(UW + 8 * P, 2)}')
            for aa in range(1, 4):
                for P in range(2):
                    g(f'v_pk_fma_f32 {v(KS + 2 * P, 2)}, {v(UK + 4 * (j + 3 - aa) + 2 * P, 2)}, {v(UW + 8 * P + 2 * aa, 2)}, {v(KS + 2 * P, 2)}')
            for P in range(2):
                g(f'v_pk_mul_f32 {v(UV + 4 * j + 2 * P, 2)}, {v(UV + 4 * j + 2 * P, 2)}, {v(KS + 2 * P, 2)}')
        for cc in range(4):
            for d in range(4):
                g(f'v_cvt_pk_bf16_f32 {v(OUT + 4 * cc + d)}, {v(UV + 4 * (7 - 2 * d) + cc)}, {v(UV + 4 * (6 - 2 * d) + cc)}')
            g(f's_movk_i32 {s(T2)}, {4096 * cc}')
            g(f'buffer_store_dwordx4 {v(OUT + 4 * cc, 4)}, {v(vOU)}, {s(rWS, 4)}, {s(T2)} offen sc1')
        g.make_tag()
        g(f's_lshl_b32 {s(T3)}, {s(sCh)}, 7')
        g(f's_add_u32 {s(T3)}, {s(T3)}, {L.FT}')
        g(f'v_add_u32 {v(vS2)}, 2, {v(vL16)}')
        g(f'v_readfirstlane_b32 {s(T1)}, {v(vK0)}')
        g.drain(lg=False)
        g.flag_store(T3)
        g.stamp(2)
        g(f's_lshl_b32 {s(T2)}, {s(sCh)}, 12')
        g(f's_add_u32 {s(T3)}, {s(sLB)}, {4608 + 32}')
        g.dma(T3, T2, 4, srd=rC, sc1=False)
        g(f's_add_u32 {s(T3)}, {s(sLB)}, {4608 + 4160 + 32}')
        hK = g.dma(T3, T2, 4, voff=vS2, srd=rC, sc1=False)
        g(f'v_mov_b32 {v(vK0)}, {s(T1)}')
        if g.opt.clear:
            g(f'v_mov_b64 {v(176, 2)}, 0')
            g(f'v_mov_b64 {v(178, 2)}, 0')
            g(f's_mul_i32 {s(T3)}, {s(sW)}, 144')
            g(f's_add_u32 {s(T3)}, {s(T3)}, {s(sWG)}')
            g(f's_lshl_b32 {s(T3)}, {s(T3)}, 7')
            g(f's_add_u32 {s(T3)}, {s(T3)}, {L.FC}')
            g.setexec(0xff)
            g(f'buffer_store_dwordx4 {v(176, 4)}, {v(vL16)}, {s(rWS, 4)}, {s(T3)} offen sc1')
            g.setexec(-1)
        g.clears()
        vT, vZ, vUB, vKA = 6, 8, 10, 12
        g(f'v_mov_b64 {v(vZ, 2)}, 0')
        g(f'v_lshl_add_u32 {v(vT)}, {v(vLANE)}, 3, {s(sLB)}')
        g(f'ds_write_b64 {v(vT)}, {v(vZ, 2)} offset:4096')
        g(f'v_and_b32 {v(vT)}, 7, {v(vLANE)}')
        g(f'v_lshrrev_b32 {v(vT + 1)}, 3, {v(vLANE)}')
        g(f'v_mul_u32_u24 {v(vT + 1)}, 4160, {v(vT + 1)}')
        g(f'v_lshl_add_u32 {v(vT)}, {v(vT)}, 2, {v(vT + 1)}')
        g(f'v_add_u32 {v(vT)}, {s(sLB)}, {v(vT)}')
        g(f'v_lshlrev_b32 {v(vK0)}, 16, {v(vK0)}')
        g(f'v_cmp_eq_u32 vcc, 15, {v(vLANE)}')
        g(f'v_cndmask_b32 {v(vK0)}, 0, {v(vK0)}, vcc')
        g.setexec(0xffff)
        g(f'ds_write_b32 {v(vT)}, {v(vK0)} offset:4608')
        g.setexec(-1)
        g(f'v_lshlrev_b32 {v(vT)}, 5, {v(vI)}')
        g(f'v_lshlrev_b32 {v(vT + 1)}, 4, {v(vG)}')
        g(f'v_sub_u32 {v(vUB)}, {v(vT + 1)}, {v(vT)}')
        g(f's_add_u32 {s(T2)}, {s(sLB)}, 480')
        g(f'v_add_u32 {v(vUB)}, {s(T2)}, {v(vUB)}')
        g(f'v_and_b32 {v(vT)}, 1, {v(vI)}')
        g(f'v_cmp_eq_u32 vcc, 1, {v(vT)}')
        g(f'v_mov_b32 {v(vKA + 1)}, 4160')
        g(f'v_cndmask_b32 {v(vKA)}, {v(vKA + 1)}, 2, vcc' if False else f'v_mov_b32 {v(vKA + 2)}, 2')
        g(f'v_cndmask_b32 {v(vKA)}, {v(vKA + 1)}, {v(vKA + 2)}, vcc')
        g(f'v_lshl_add_u32 {v(vKA)}, {v(vI)}, 1, {v(vKA)}')
        g(f'v_add_u32 {v(vKA)}, {v(vT + 1)}, {v(vKA)}')
        g(f's_add_u32 {s(T2)}, {s(sLB)}, 4608')
        g(f'v_add_u32 {v(vKA)}, {s(T2)}, {v(vKA)}')
        for b in range(1, 4):
            g(f'v_add_u32 {v(vKA + b)}, {1024 * b}, {v(vKA)}')

        def rdA(e, dst):
            b, ee = e >> 4, e & 15
            g(f'ds_read2_b32 {a(dst, 2)}, {v(vKA + b)} offset0:{16 * ee} offset1:{16 * ee + 1}')
            g(f'ds_read2_b32 {a(dst + 2, 2)}, {v(vKA + b)} offset0:{16 * ee + 2} offset1:{16 * ee + 3}')

        def rdB(m, rho, dst):
            g(f'ds_read_b128 {a(dst, 4)}, {v(vUB)} offset:{3584 - 512 * m + 64 * rho}')

        AS = lambda rho, aa: 64 * (rho & 1) + 4 * aa
        BS = lambda rho, m: 64 * (rho & 1) + 32 + 4 * m
        vAD = 16
        g(f'v_lshlrev_b32 {v(vT)}, 3, {v(vG)}')
        g(f'v_add_u32 {v(vT)}, {v(vT)}, {v(vI)}')
        g(f'v_sub_u32 {v(vT)}, 15, {v(vT)}')
        g(f'v_lshlrev_b32 {v(vT + 1)}, 16, {v(vDv)}')
        for d in range(4):
            g(f'v_cmp_eq_u32 vcc, {2 * d}, {v(vT)}')
            g(f'v_cndmask_b32 {v(vAD + d)}, 0, {v(vDv)}, vcc')
            g(f'v_cmp_eq_u32 vcc, {2 * d + 1}, {v(vT)}')
            g(f'v_cndmask_b32 {v(vAD + d)}, {v(vAD + d)}, {v(vT + 1)}, vcc')
        vF, vFO = 20, 21
        g(f'v_lshlrev_b32 {v(vFO)}, 7, {v(vLANE)}')
        g(f's_lshl_b32 {s(T2)}, {s(sGam)}, 13')
        g(f's_add_u32 {s(T2)}, {s(T2)}, {L.FT}')
        g.poll([(vF, 1, vFO, s(T2), 0)], -1, 0)
        g.stamp(3)
        g(f's_lshl_b32 {s(T2)}, {s(sCh)}, 12')
        g(f's_add_u32 {s(T2)}, {s(T2)}, {L.UR}')
        g(f's_mov_b32 {s(T3)}, {s(sLB)}')
        g.dma(T3, T2, 4)
        for aa in range(8):
            rdA(8 * aa, AS(0, aa))
        vPO, vYW, vYR = 22, 23, 24
        g(f's_mul_i32 {s(T2)}, {s(sW)}, {16 * 36864}')
        g(f's_lshl_b32 {s(T3)}, {s(sWG)}, 8')
        g(f's_add_u32 {s(T2)}, {s(T2)}, {s(T3)}')
        g(f'v_mul_u32_u24 {v(vPO)}, {2 * 36864}, {v(vG)}')
        g(f'v_lshl_add_u32 {v(vPO)}, {v(vI)}, 4, {v(vPO)}')
        g(f'v_add_u32 {v(vPO)}, {s(T2)}, {v(vPO)}')
        g(f'v_lshlrev_b32 {v(vYW)}, 5, {v(vI)}')
        g(f'v_lshl_add_u32 {v(vYW)}, {v(vG)}, 3, {v(vYW)}')
        g(f'v_add_u32 {v(vYW)}, {s(sLB)}, {v(vYW)}')
        g(f'v_bfe_u32 {v(vT)}, {v(vLANE)}, 2, 2')
        g(f'v_mul_u32_u24 {v(vYR)}, {L.CONVW}, {v(vT)}')
        g(f'v_and_b32 {v(vT)}, 3, {v(vLANE)}')
        g(f'v_lshl_add_u32 {v(vYR)}, {v(vT)}, 3, {v(vYR)}')
        g(f'v_lshl_add_u32 {v(vYR)}, {v(vG)}, 7, {v(vYR)}')
        g(f's_lshl_b32 {s(T2)}, {s(sW)}, 10')
        g(f's_add_u32 {s(T2)}, {s(T2)}, {L.L_CONV}')
        g(f'v_add_u32 {v(vYR)}, {s(T2)}, {v(vYR)}')
        g(f'v_lshlrev_b32 {v(vFO)}, 7, {v(vI)}')
        g(f's_lshl_b32 {s(T0)}, {s(sW)}, 11')
        g(f's_add_u32 {s(T0)}, {s(T0)}, {L.FQ}')
        vFW, vSO, vF2 = 25, 26, 27
        g(f's_lshl_b32 {s(T2)}, {s(sW)}, 12')
        g(f'v_lshlrev_b32 {v(vSO)}, 9, {v(vG)}')
        g(f'v_lshl_add_u32 {v(vSO)}, {v(vI)}, 4, {v(vSO)}')
        g(f'v_add_u32 {v(vSO)}, {s(T2)}, {v(vSO)}')
        g(f'v_lshlrev_b32 {v(vFW)}, 11, {v(vLANE)}')
        g(f's_lshl_b32 {s(T1)}, {s(sP)}, 7')
        g(f's_add_u32 {s(T1)}, {s(T1)}, {L.FW}')
        g.w_dma_setup()
        g.drain(lg=False)
        g.stamp(4)
        ACC = 32
        X0, N0 = 64, 80
        for m in range(8):
            rdB(m, 0, BS(0, m))
        for q in range(8):
            g.mfma(v(ACC + 4 * q, 4), v(vAD, 4), a(BS(0, q), 4), '0')
        for rho in range(8):
            nxt = []
            if rho < 7:
                for i in range(8):
                    nxt.append(lambda i=i: rdB(i, rho + 1, BS(rho + 1, i)))
                    nxt.append(lambda i=i: rdA(rho + 1 + 8 * i, AS(rho + 1, i)))
            if rho == 3:
                g.poll_issue(vF, vFO, s(T0), 0xffff)
            if rho == g.opt.wat - 1:
                g.poll_issue(vF2, vFW, s(T1), 7)
            if rho == g.opt.wat:
                g.setexec(7)
                g(f'v_cmp_ne_u32 vcc, {s(sTAG)}, {v(vF2)}')
                g.setexec(-1)
                g('s_cmp_eq_u64 vcc, 0')
                g(f's_cselect_b64 {s(sM3, 2)}, -1, 0')
                g.bg_start(g.dma_items(24, stride=16384, gate=sM3), (36 * (8 - rho)) // 24)
            if rho == 5:
                g.poll_finish(vF, vFO, s(T0), 0xffff, 1)
                for j in range(4):
                    o = (8 * (j >> 1) + (j & 1)) * 36864
                    g(f's_mov_b32 {s(T2)}, {L.X0P + o}')
                    g(f'buffer_load_dwordx4 {v(X0 + 4 * j, 4)}, {v(vPO)}, {s(rWS, 4)}, {s(T2)} offen sc1')
                    g(f's_mov_b32 {s(T2)}, {L.N0P + o // 144}')
                    g(f'buffer_load_dwordx4 {v(N0 + 4 * j, 4)}, {v(vSO)}, {s(rWS, 4)}, {s(T2)} offen sc1')
            n = 0
            for aa in range(8):
                for q in range(aa, 8):
                    g.mfma(v(ACC + 4 * q, 4), a(AS(rho, aa), 4), a(BS(rho, q - aa), 4), v(ACC + 4 * q, 4))
                    if n % 2 == 0 and nxt:
                        nxt.pop(0)()
                    n += 1
            assert not nxt
        g.stamp(5)
        g.bg_flush()
        YP_, YG, TMP, XO = 96, 112, 128, 152
        for q in range(8):
            g(f'v_cvt_pk_bf16_f32 {v(YP_ + 2 * q)}, {v(ACC + 4 * q)}, {v(ACC + 4 * q + 1)}')
            g(f'v_cvt_pk_bf16_f32 {v(YP_ + 2 * q + 1)}, {v(ACC + 4 * q + 2)}, {v(ACC + 4 * q + 3)}')
            g(f'ds_write_b64 {v(vYW)}, {v(YP_ + 2 * q, 2)} offset:{512 * q}')
        U2 = 176

        def prep(j):
            for d in range(4):
                t = U2 + 16 * j + 4 * d
                g.unpack(t + 2, t + 3, X0 + 4 * j + d)
            for d in range(4):
                t = U2 + 16 * j + 4 * d
                c = N0 + 4 * j + 2 * (d >> 1)
                g(f'v_pk_fma_f32 {v(t, 2)}, {v(t + 2, 2)}, {v(c, 2)}, {v(c, 2)} op_sel:[0,0,1] op_sel_hi:[1,0,1]')
        prep(0)
        prep(1)
        g.barrier()
        for j in range(4):
            o = (8 * (j >> 1) + (j & 1)) * 64
            g(f'ds_read_b64_tr_b16 {v(YG + 4 * j, 2)}, {v(vYR)} offset:{o}')
            g(f'ds_read_b64_tr_b16 {v(YG + 4 * j + 2, 2)}, {v(vYR)} offset:{o + 32}')
        prep(2)
        prep(3)
        for j in range(4):
            o = (8 * (j >> 1) + (j & 1)) * 36864
            for d in range(4):
                g.unpack(TMP + 2 * d, TMP + 2 * d + 1, YG + 4 * j + d)
            for d in range(4):
                t = U2 + 16 * j + 4 * d
                g(f'v_pk_fma_f32 {v(t, 2)}, {v(TMP + 2 * d, 2)}, {v(t, 2)}, {v(t + 2, 2)}')
            for d in range(4):
                t = U2 + 16 * j + 4 * d
                g(f'v_cvt_pk_bf16_f32 {v(XO + 4 * j + d)}, {v(t)}, {v(t + 1)}')
            g(f's_mov_b32 {s(T2)}, {L.X1P + o}')
            hx = g(f'buffer_store_dwordx4 {v(XO + 4 * j, 4)}, {v(vPO)}, {s(rWS, 4)}, {s(T2)} offen sc1')
        g(f's_mul_i32 {s(T3)}, {s(sW)}, 144')
        g(f's_add_u32 {s(T3)}, {s(T3)}, {s(sWG)}')
        g(f's_lshl_b32 {s(T3)}, {s(T3)}, 7')
        g(f's_add_u32 {s(T3)}, {s(T3)}, {L.FC}')
        g.wait_vm(hx)
        g.flag_store(T3)
        g.stamp(6)
        lf = g.last_flag
        if g.opt.sentinel:
            g(f's_lshl_b32 {s(T3)}, {s(sWG)}, 2')
            g(f's_add_u32 {s(T3)}, {s(T3)}, {s(sW)}')
            g(f's_and_b32 {s(T2)}, {s(T3)}, 0xffffffe3')
            g(f's_cmp_lg_u32 {s(T2)}, 0')
            with g.skip_if('s_cbranch_scc1'):
                g(f's_lshl_b32 {s(T3)}, {s(sWG)}, 7')
                g(f's_add_u32 {s(T3)}, {s(T3)}, {L.FS_}')
                g.flag_store(T3)
        g.last_flag = lf
        for j in range(4):
            o = (8 * (j >> 1) + (j & 1)) * 36864
            g(f's_mov_b32 {s(T2)}, {L.YP + o}')
            g(f'buffer_store_dwordx4 {v(YG + 4 * j, 4)}, {v(vPO)}, {s(rWS, 4)}, {s(T2)} offen sc1')
        g.barrier()
        g(f's_cmp_eq_u64 {s(sM3, 2)}, 0')

    def wperm(self, d, t):
        g = self
        g(f'v_and_b32 {v(t)}, 3, {v(vI)}')
        g(f'v_lshlrev_b32 {v(d)}, 8, {v(vG)}')
        g(f'v_lshl_add_u32 {v(d)}, {v(t)}, 6, {v(d)}')
        g(f'v_lshrrev_b32 {v(t)}, 2, {v(vI)}')
        g(f'v_lshl_add_u32 {v(d)}, {v(t)}, 4, {v(d)}')

    def fx_off(self, d, t):
        g = self
        g(f's_lshl_b32 {s(d)}, {s(sRB2)}, 4')
        g(f's_lshl_b32 {s(t)}, {s(sCG)}, 1')
        g(f's_add_u32 {s(d)}, {s(d)}, {s(t)}')
        g(f's_and_b32 {s(t)}, {s(sW)}, 1')
        g(f's_add_u32 {s(d)}, {s(d)}, {s(t)}')
        g(f's_lshl_b32 {s(d)}, {s(d)}, 7')
        g(f's_add_u32 {s(d)}, {s(d)}, {L.FX}')

    def clear_line(self, soff, z=None):
        g = self
        if not g.opt.clear:
            return
        z = 248 if z is None else z
        g(f'v_mov_b64 {v(z, 2)}, 0')
        g(f'v_mov_b64 {v(z + 2, 2)}, 0')
        g.setexec(0xff)
        g(f'buffer_store_dwordx4 {v(z, 4)}, {v(vL16)}, {s(rWS, 4)}, {s(soff)} offen sc1')
        g.setexec(-1)

    def delay_start(self):
        g = self
        if 'delay' in g.opt.exp:
            g.make_tag()
            g(f'v_lshlrev_b32 {v(6)}, 7, {v(vLANE)}')
            g(f's_and_b32 {s(T0)}, {s(sWG)}, 7')
            g(f's_lshl_b32 {s(T0)}, {s(T0)}, 13')
            g(f's_add_u32 {s(T0)}, {s(T0)}, {L.FT}')
            g.poll([(7, 1, 6, s(T0), 0)], g.opt.dmask, 10)
            g.make_tag = lambda: None

    def w_dma_setup(self):
        g = self
        g(f's_lshl_b32 {s(sBL)}, {s(sW)}, 12')
        g(f's_mul_i32 {s(sBG)}, {s(sP)}, {L.WPSZ}')
        g(f's_add_u32 {s(sBG)}, {s(sBG)}, {s(sBL)}')
        g(f's_add_u32 {s(sBG)}, {s(sBG)}, {L.WP}')

    def w_first_half(self):
        g = self
        vT = 6
        g(f'v_lshlrev_b32 {v(vT)}, 11, {v(vLANE)}')
        g(f's_lshl_b32 {s(T0)}, {s(sP)}, 7')
        g(f's_add_u32 {s(T0)}, {s(T0)}, {L.FW}')
        g.w_dma_setup()
        g.poll([(vT + 1, 1, vT, s(T0), 0)], 7, 2)
        for it in g.dma_items(24, stride=16384):
            it()

    def sentinel_wait(self):
        g = self
        if g.opt.sentinel:
            g(f's_and_b32 {s(T0)}, {s(sWG)}, 7')
            g(f's_lshl_b32 {s(T0)}, {s(T0)}, 7')
            g(f's_add_u32 {s(T0)}, {s(T0)}, {L.FS_}')
            g(f'v_mov_b32 {v(6)}, 0')
            g.poll([(7, 1, 6, s(T0), 0)], 1, 11)

    def role_q(self):
        g = self
        sJ = T7
        vO, vT = 6, 8
        R = 16
        g.srd(rA, pQ, L.ARR)
        g.srd(rB, pWO, 576 * 1152)
        g(f's_sub_u32 {s(sJ)}, {s(sWG)}, 144')
        g(f's_lshl_b32 {s(T0)}, {s(sJ)}, 7')
        g(f's_add_u32 {s(T1)}, {s(T0)}, {L.FWO}')
        g(f's_add_u32 {s(T0)}, {s(T0)}, {L.FQ}')
        g(f's_cmp_eq_u32 {s(sW)}, 0')
        g(f's_cselect_b32 {s(T0)}, {s(T0)}, {s(T1)}')
        g(f's_cmp_ge_u32 {s(sW)}, 2')
        with g.skip_if('s_cbranch_scc1'):
            g.clear_line(T0)
        mt = g.make_tag
        g.delay_start()
        LQ = 16384
        g(f's_mul_i32 {s(T0)}, {s(sJ)}, {32 * 1152}')
        g(f's_mul_i32 {s(T1)}, {s(sW)}, 640')
        for i in range(10):
            g(f'v_add_u32 {v(vT)}, {s(T1)}, {v(vLANE)}')
            g(f'v_mul_u32_u24 {v(vT + 1)}, 3592, {v(vT)}')
            g(f'v_lshrrev_b32 {v(vT + 1)}, 18, {v(vT + 1)}')
            g(f'v_sub_u32 {v(vT)}, {v(vT)}, {v(vT + 1)}')
            g(f'v_lshlrev_b32 {v(vT)}, 4, {v(vT)}')
            g(f's_lshl_b32 {s(T2)}, {s(T1)}, 4')
            g(f's_add_u32 {s(T2)}, {s(T2)}, {LQ}')
            g(f's_mov_b32 m0, {s(T2)}')
            g(f's_add_u32 {s(T1)}, {s(T1)}, 64')
            hq = g(f'buffer_load_dwordx4 {v(vT)}, {s(rA, 4)}, {s(T0)} offen lds')
        sPp, sCq = T5, T6
        g(f's_and_b32 {s(sPp)}, {s(sJ)}, 15')
        g(f's_lshr_b32 {s(sCq)}, {s(sJ)}, 4')
        g(f's_mul_i32 {s(T0)}, {s(sPp)}, {36 * 1152}')
        g(f's_mul_i32 {s(T1)}, {s(sCq)}, 288')
        g(f's_add_u32 {s(T0)}, {s(T0)}, {s(T1)}')
        g(f's_mul_i32 {s(T1)}, {s(sW)}, 192')
        for i in range(3):
            g(f'v_add_u32 {v(vT)}, {s(T1)}, {v(vLANE)}')
            if i:
                g(f'v_add_u32 {v(vT)}, {64 * i}, {v(vT)}')
            g(f'v_mul_u32_u24 {v(vT + 1)}, 3641, {v(vT)}')
            g(f'v_lshrrev_b32 {v(vT + 1)}, 16, {v(vT + 1)}')
            g(f'v_mul_u32_u24 {v(vT + 1)}, {1152 - 288}, {v(vT + 1)}')
            g(f'v_lshl_add_u32 {v(vT)}, {v(vT)}, 4, {v(vT + 1)}')
            g(f's_lshl_b32 {s(T2)}, {s(T1)}, 4')
            g(f's_add_u32 {s(T2)}, {s(T2)}, {1024 * i}')
            g(f's_mov_b32 m0, {s(T2)}')
            g(f'buffer_load_dwordx4 {v(vT)}, {s(rB, 4)}, {s(T0)} offen lds')
        g(f's_mul_i32 {s(T0)}, {s(sJ)}, 36864')
        g(f's_lshl_b32 {s(T1)}, {s(sW)}, 11')
        g(f's_add_u32 {s(T0)}, {s(T0)}, {s(T1)}')
        g(f'v_lshlrev_b32 {v(vO)}, 9, {v(vG)}')
        g(f'v_lshl_add_u32 {v(vO)}, {v(vI)}, 4, {v(vO)}')
        g(f'v_add_u32 {v(vO)}, {s(T0)}, {v(vO)}')
        g(f's_cmp_lt_u32 {s(sW)}, 2')
        g(f's_cselect_b32 {s(T2)}, 0, 0x40000000')
        g(f's_cselect_b32 {s(T4)}, -1, 0')
        g(f'v_add_u32 {v(vO + 1)}, {s(T2)}, {v(vO)}')
        g(f's_lshl_b32 {s(T1)}, {s(sW)}, 6')
        g(f's_add_u32 {s(T1)}, {s(T1)}, {LQ}')
        g(f'v_mul_u32_u24 {v(vT)}, 1168, {v(vI)}')
        g(f'v_lshl_add_u32 {v(vT)}, {v(vG)}, 4, {v(vT)}')
        g(f'v_add_u32 {v(vT)}, {s(T1)}, {v(vT)}')
        S_ = 56
        g(f'v_mov_b64 {v(S_, 2)}, 0')
        g(f'v_mov_b64 {v(S_ + 2, 2)}, 0')
        g.make_tag()
        g.wait_vm(hq)
        g.barrier()
        for aa in range(5):
            for hh in range(2):
                g(f'ds_read_b128 {v(R + 8 * aa + 4 * hh, 4)}, {v(vT)} offset:{256 * aa + 16 * 1168 * hh}')
        g(f's_mov_b32 {s(T2)}, 0x3f803f80')
        for aa in range(5):
            r = R + 8 * aa
            if aa == 4:
                for d in range(8):
                    g(f'v_and_b32 {v(r + d)}, {s(T4)}, {v(r + d)}')
            g(f'v_swap_b32 {v(r + 2)}, {v(r + 4)}')
            g(f'v_swap_b32 {v(r + 3)}, {v(r + 5)}')
            g(f's_mov_b32 {s(T3)}, {L.X0P + 8192 * aa}')
            for qq in range(2):
                g(f'buffer_store_dwordx4 {v(r + 4 * qq, 4)}, {v(vO + (aa == 4))}, {s(rWS, 4)}, {s(T3)} offen offset:{256 * qq} sc1')
            for d in range(8):
                hh = (d >> 1) & 1
                g(f'v_dot2c_f32_bf16 {v(S_ + 2 * hh)}, {s(T2)}, {v(r + d)}')
                g(f'v_dot2c_f32_bf16 {v(S_ + 2 * hh + 1)}, {v(r + d)}, {v(r + d)}')
        g('s_nop 2')
        g.xg_sum2(S_, S_ + 1, vT)
        g.xg_sum2(S_ + 2, S_ + 3, vT)
        LS = 13312
        g(f's_lshl_b32 {s(T2)}, {s(sW)}, 8')
        g(f'v_lshl_add_u32 {v(vT)}, {v(vI)}, 4, {s(T2)}')
        g(f'ds_write_b128 {v(vT)}, {v(S_, 4)} offset:{LS}')
        g.barrier()
        g(f's_cmp_lg_u32 {s(sW)}, 0')
        with g.skip_if('s_cbranch_scc1'):
            g(f'v_lshlrev_b32 {v(vT)}, 4, {v(vI)}')
            P_ = 60
            for w in range(4):
                g(f'ds_read_b128 {v(P_ + 4 * w, 4)}, {v(vT)} offset:{LS + 256 * w}')
            for h2 in range(2):
                g(f'v_pk_add_f32 {v(P_ + 2 * h2, 2)}, {v(P_ + 2 * h2, 2)}, {v(P_ + 4 + 2 * h2, 2)}')
                g(f'v_pk_add_f32 {v(P_ + 8 + 2 * h2, 2)}, {v(P_ + 8 + 2 * h2, 2)}, {v(P_ + 12 + 2 * h2, 2)}')
                g(f'v_pk_add_f32 {v(P_ + 2 * h2, 2)}, {v(P_ + 2 * h2, 2)}, {v(P_ + 8 + 2 * h2, 2)}')
            RS = 76
            for hh in range(2):
                self.ln_coef(P_ + 2 * hh, P_ + 2 * hh + 1, RS + 2 * hh, RS + 2 * hh + 1)
            g(f's_lshl_b32 {s(T2)}, {s(sJ)}, 8')
            g(f's_add_u32 {s(T2)}, {s(T2)}, {L.N0P}')
            g.setexec(0xffff)
            g(f'buffer_store_dwordx4 {v(RS, 4)}, {v(vL16)}, {s(rWS, 4)}, {s(T2)} offen sc1')
            g.setexec(-1)
        g(f's_lshl_b32 {s(T3)}, {s(sJ)}, 7')
        g(f's_add_u32 {s(T3)}, {s(T3)}, {L.FQ}')
        g.drain(force=True)
        g.barrier()
        g(f's_cmp_lg_u32 {s(sW)}, 0')
        with g.skip_if('s_cbranch_scc1'):
            g.flag_store(T3)
        g.stamp(2)
        vA, vA2, vD_ = 8, 9, 10
        g(f'v_lshrrev_b32 {v(vT + 4)}, 1, {v(vG)}')
        g(f'v_mul_u32_u24 {v(vT + 4)}, 2, {v(vT + 4)}')
        g(f'v_lshl_add_u32 {v(vT + 4)}, {v(vG)}, 3, {v(vT + 4)}')
        g(f'v_bfe_u32 {v(vT + 5)}, {v(vLANE)}, 2, 2')
        g(f'v_add_u32 {v(vT + 4)}, {v(vT + 4)}, {v(vT + 5)}')
        g(f'v_mul_u32_u24 {v(vT + 4)}, 288, {v(vT + 4)}')
        g(f'v_and_b32 {v(vT + 6)}, 3, {v(vLANE)}')
        g(f'v_lshl_add_u32 {v(vT + 4)}, {v(vT + 6)}, 3, {v(vT + 4)}')
        g(f'v_lshrrev_b32 {v(vT + 7)}, 1, {v(vT + 5)}')
        g(f'v_mul_u32_u24 {v(vT + 7)}, 16, {v(vT + 7)}')
        g(f'v_add_u32 {v(vT + 7)}, {v(vT + 7)}, {v(vT + 5)}')
        g(f'v_add_u32 {v(vT + 7)}, 16, {v(vT + 7)}')
        g(f'v_mul_u32_u24 {v(vT + 7)}, 288, {v(vT + 7)}')
        g(f'v_lshl_add_u32 {v(vT + 7)}, {v(vT + 6)}, 3, {v(vT + 7)}')
        vM, vE = vT + 4, vT + 7
        vD4 = 17
        g(f'v_and_b32 {v(16)}, 7, {v(vI)}')
        g(f'v_lshlrev_b32 {v(16)}, 4, {v(16)}')
        g(f'v_lshl_add_u32 {v(vD4)}, {v(vG)}, 7, {v(16)}')
        g(f's_mul_i32 {s(T0)}, {s(sCq)}, {2 * L.WOSZ}')
        g(f's_add_u32 {s(T0)}, {s(T0)}, {L.WOF}')
        g(f's_mul_i32 {s(T1)}, {s(sPp)}, 4608')
        g(f's_add_u32 {s(T1)}, {s(T1)}, {s(T0)}')
        g(f's_lshr_b32 {s(T2)}, {s(sPp)}, 3')
        g(f's_add_u32 {s(T2)}, {s(T2)}, 16')
        g(f's_mul_i32 {s(T2)}, {s(T2)}, 4608')
        g(f's_add_u32 {s(T0)}, {s(T0)}, {s(T2)}')
        g(f's_and_b32 {s(T2)}, {s(sPp)}, 1')
        g(f's_lshl_b32 {s(T2)}, {s(T2)}, 3')
        g(f's_add_u32 {s(T0)}, {s(T0)}, {s(T2)}')
        g(f's_bfe_u32 {s(T4)}, {s(sPp)}, 0x20001')
        for w in range(4):
            lab = g.newlabel('wo')
            g(f's_cmp_lg_u32 {s(sW)}, {w}')
            with g.skip_if('s_cbranch_scc1'):
                for idx in range(w, 10, 4):
                    cgl, T = divmod(idx, 5)
                    co = cgl * 144 + T * 32
                    g(f'ds_read_b64_tr_b16 {v(20, 2)}, {v(vM)} offset:{co}')
                    g(f'ds_read_b64_tr_b16 {v(22, 2)}, {v(vM)} offset:{co + 4 * 288}')
                    g(f'ds_read_b64_tr_b16 {v(24, 2)}, {v(vE)} offset:{co}')
                    g(f's_add_u32 {s(T2)}, {s(T1)}, {cgl * L.WOSZ + T * 1024}')
                    g(f's_lshl_b32 {s(T3)}, {s(T4)}, {8 if T < 4 else 7}')
                    g(f's_add_u32 {s(T3)}, {s(T3)}, {s(T0)}')
                    g(f's_add_u32 {s(T3)}, {s(T3)}, {cgl * L.WOSZ + T * 1024}')
                    g(f'v_lshlrev_b32 {v(18)}, 4, {v(vI)}')
                    g.drain(vm=False)
                    if T == 4:
                        g.setexec(0x00ff00ff00ff00ff)
                    g(f'buffer_store_dwordx4 {v(20, 4)}, {v(vL16 if T < 4 else vD4)}, {s(rWS, 4)}, {s(T2)} offen sc1')
                    g.setexec(0xffff if T < 4 else 0xff)
                    g(f'buffer_store_dwordx2 {v(24, 2)}, {v(18)}, {s(rWS, 4)}, {s(T3)} offen sc1')
                    g.setexec(-1)
                    g('s_nop 1')
        g(f's_lshl_b32 {s(T3)}, {s(sJ)}, 7')
        g(f's_add_u32 {s(T3)}, {s(T3)}, {L.FWO}')
        g.drain(force=True)
        g.barrier()
        g(f's_cmp_lg_u32 {s(sW)}, 0')
        with g.skip_if('s_cbranch_scc1'):
            g.flag_store(T3)
        g.stamp(6)
        g.make_tag = mt

    def ln_coef(self, vS, vQ, vRS, vB):
        g = self
        inv = '0x3ae38e39'
        g(f'v_mul_f32 {v(vS)}, {inv}, {v(vS)}')
        g(f'v_mul_f32 {v(vQ)}, {inv}, {v(vQ)}')
        g(f'v_fma_f32 {v(vQ)}, -{v(vS)}, {v(vS)}, {v(vQ)}')
        g(f'v_max_f32 {v(vQ)}, 0, {v(vQ)}')
        g(f'v_add_f32 {v(vQ)}, 0x3727c5ac, {v(vQ)}')
        g(f'v_rsq_f32 {v(vRS)}, {v(vQ)}')
        if vB is not None:
            g(f'v_mul_f32 {v(vB)}, {v(vS)}, {v(vRS)}')
            g(f'v_sub_f32 {v(vB)}, 0, {v(vB)}')

    def role_w(self):
        g = self
        sU, sPp, sPart = T7, T6, T5
        vO, vT = 6, 8
        RA = 16
        BV, BF = 96, 108
        ACC = 132
        g.srd(rA, pWQ, 576 * 3456)
        g.srd(rB, pPH, 32 * 648)
        g(f's_sub_u32 {s(sU)}, {s(sWG)}, 208')
        g(f's_lshl_b32 {s(T0)}, {s(sU)}, 7')
        g(f's_add_u32 {s(T0)}, {s(T0)}, {L.FW}')
        g(f's_cmp_lg_u32 {s(sW)}, 0')
        with g.skip_if('s_cbranch_scc1'):
            g.clear_line(T0, 252)
        if 'w' in g.opt.dwho:
            g.delay_start()
        g(f's_and_b32 {s(sPp)}, {s(sU)}, 15')
        g(f's_lshr_b32 {s(sPart)}, {s(sU)}, 4')
        g(f's_add_u32 {s(T0)}, {s(sPart)}, 1')
        g(f's_cmp_eq_u32 {s(sPart)}, 2')
        g(f's_cselect_b32 {s(T0)}, 0, {s(T0)}')
        g(f's_mul_i32 {s(T0)}, {s(T0)}, 1152')
        g(f's_mul_i32 {s(T1)}, {s(sPp)}, 72')
        g(f's_add_u32 {s(T0)}, {s(T0)}, {s(T1)}')
        g.vtmp_stamp = 255
        sLP, sLW = 93, 94
        g(f's_lshl_b32 {s(sLP)}, {s(sW)}, 11')
        g(f's_add_u32 {s(sLP)}, {s(sLP)}, 2048')
        g(f's_mul_i32 {s(sLW)}, {s(sW)}, {5 * 3072}')
        g(f's_add_u32 {s(sLW)}, {s(sLW)}, 12288')
        g(f's_cmp_eq_u32 {s(sPart)}, 1')
        hphi = None
        with g.skip_if('s_cbranch_scc1'):
            g(f's_mul_i32 {s(T2)}, {s(sPp)}, 1296')
            g(f's_mov_b32 m0, {s(sLP)}')
            g(f'buffer_load_dwordx4 {v(vL16)}, {s(rB, 4)}, {s(T2)} offen lds')
            hphi = g(f'buffer_load_dwordx4 {v(vL16)}, {s(rB, 4)}, {s(T2)} offen offset:1024 lds')
        vS = 13
        for i in range(3):
            g(f'v_add_u32 {v(vT)}, {64 * i}, {v(vLANE)}')
            g(f'v_mul_u32_u24 {v(vT + 1)}, 43691, {v(vT)}')
            g(f'v_lshrrev_b32 {v(vT + 2)}, 17, {v(vT + 1)}')
            g(f'v_lshrrev_b32 {v(vT + 1)}, 18, {v(vT + 1)}')
            g(f'v_mul_u32_u24 {v(vT + 1)}, {3456 - 72}, {v(vT + 1)}')
            g(f'v_lshl_add_u32 {v(vT)}, {v(vT)}, 4, {v(vT + 1)}')
            g(f'v_mul_u32_u24 {v(vT + 2)}, 12, {v(vT + 2)}')
            g(f'v_sub_u32 {v(vS + i)}, {v(vT)}, {v(vT + 2)}')
        g(f's_mul_i32 {s(T1)}, {s(sW)}, {32 * 3456}')
        g(f's_add_u32 {s(T0)}, {s(T0)}, {s(T1)}')
        g(f's_mov_b32 {s(T2)}, {s(sLW)}')
        hs = []
        for kk in range(5):
            for i in range(3):
                g(f's_mov_b32 m0, {s(T2)}')
                g(f's_add_u32 {s(T2)}, {s(T2)}, 1024')
                h = g(f'buffer_load_dwordx4 {v(vS + i)}, {s(rA, 4)}, {s(T0)} offen lds')
            hs.append(h)
            g(f's_add_u32 {s(T0)}, {s(T0)}, {128 * 3456}')
        g.stamp(1)
        g(f's_cmp_lg_u32 {s(sPart)}, 1')
        with g.skip_if('s_cbranch_scc1'):
            g(f'v_mov_b64 {v(16, 2)}, 0')
            g(f'v_mov_b64 {v(18, 2)}, 0')
            g(f'v_add_u32 {v(vT)}, {s(sLP)}, {v(vL16)}')
            g(f'ds_write_b128 {v(vT)}, {v(16, 4)}')
            g(f'ds_write_b128 {v(vT)}, {v(16, 4)} offset:1024')
            g(f'v_mul_u32_u24 {v(vT)}, 38, {v(vLANE)}')
            g(f'v_add_u32 {v(vT)}, {s(sLP)}, {v(vT)}')
            g(f'v_mov_b32 {v(16)}, 0x3f80')
            g.setexec((1 << 18) - 1)
            g(f'ds_write_b16 {v(vT)}, {v(16)}')
            g(f'ds_write_b16 {v(vT)}, {v(16)} offset:648')
            g.setexec(-1)
        g(f'v_min_u32 {v(vT)}, 2, {v(vG)}')
        g(f'v_mul_u32_u24 {v(vO)}, 96, {v(vI)}')
        g(f'v_lshl_add_u32 {v(vO)}, {v(vT)}, 4, {v(vO)}')
        g(f'v_add_u32 {v(vO)}, {s(sLW)}, {v(vO)}')
        g(f's_lshl_b32 {s(T1)}, 1, {s(sPart)}')
        g(f's_sub_u32 {s(T1)}, {s(T1)}, 1')
        vF9, vHF, vHD, vPB = 9, 10, 11, 12
        g(f'v_and_b32 {v(vF9)}, 3, {v(vI)}')
        g(f'v_subrev_u32 {v(vF9)}, {s(T1)}, {v(vF9)}')
        g(f'v_bfe_u32 {v(vHF)}, {v(vI)}, 2, 1')
        g(f'v_lshrrev_b32 {v(vHD)}, 3, {v(vI)}')
        g(f'v_mul_u32_u24 {v(vPB)}, 648, {v(vHD)}')
        g(f'v_mul_u32_u24 {v(vT)}, 288, {v(vG)}')
        g(f'v_add3_u32 {v(vPB)}, {v(vPB)}, {v(vT)}, {s(sLP)}')
        g(f'v_mad_u32_u24 {v(vPB)}, {v(vHF)}, 18, {v(vPB)}')
        g(f'v_lshl_add_u32 {v(vPB)}, {v(vF9)}, 1, {v(vPB)}')
        masks = [sM0, sM1, sM2]
        for Tp in range(3):
            g(f'v_add_u32 {v(vT)}, {4 * Tp}, {v(vF9)}')
            g(f'v_cmp_gt_u32 {s(masks[Tp], 2)}, 9, {v(vT)}')
        for d in range(12):
            g(f'v_mov_b64 {v(ACC + 2 * d, 2)}, 0')
        g(f's_mul_i32 {s(T0)}, {s(sPp)}, {L.WPSZ}')
        g(f's_add_u32 {s(T0)}, {s(T0)}, {L.WP}')
        bases, steps = [T1, T2, T3], [T4, 13, 14]
        for Tp in range(3):
            g(f's_lshl_b32 {s(15)}, {s(sPart)}, 1')
            g(f's_add_u32 {s(15)}, {s(15)}, {Tp}')
            g(f's_lshl_b32 {s(bases[Tp])}, {s(15)}, 10')
            g(f's_cmp_lt_u32 {s(15)}, 5')
            g(f's_cselect_b32 {s(steps[Tp])}, 3072, 0')
            g(f's_cselect_b32 {s(15)}, 0, {L.L_P2 - 5120}')
            g(f's_add_u32 {s(steps[Tp])}, {s(steps[Tp])}, 2048')
            g(f's_add_u32 {s(bases[Tp])}, {s(bases[Tp])}, {s(15)}')
            g(f's_add_u32 {s(bases[Tp])}, {s(bases[Tp])}, {s(T0)}')
            g(f's_mul_i32 {s(15)}, {s(steps[Tp])}, {s(sW)}')
            g(f's_add_u32 {s(bases[Tp])}, {s(bases[Tp])}, {s(15)}')
            g(f's_lshl_b32 {s(steps[Tp])}, {s(steps[Tp])}, 2')
        g.wperm(7, vT)
        g.make_tag()
        g.wait_vm(hphi)
        for Tp in range(3):
            for jj in range(8):
                if jj in (0, 2):
                    m = 0xffffffffffff if jj < 2 else 0xffffffff
                    g(f's_mov_b32 {s(sMA)}, {hex(m & 0xffffffff)}')
                    g(f's_mov_b32 {s(sMA + 1)}, {hex(m >> 32)}')
                    g(f's_and_b64 exec, {s(sMA, 2)}, {s(masks[Tp], 2)}')
                g(f'ds_read_u16 {v(ACC + 8 * Tp + jj)}, {v(vPB)} offset:{36 * jj + 8 * Tp}')
        g.setexec(-1)
        g(f'v_cmp_eq_u32 vcc, 0, {v(vHD)}')
        for Tp in range(3):
            for d in range(4):
                g(f'v_lshl_or_b32 {v(BV + d)}, {v(ACC + 8 * Tp + 2 * d + 1)}, 16, {v(ACC + 8 * Tp + 2 * d)}')
            for d in range(4):
                g(f'v_cndmask_b32 {v(BF + 8 * Tp + d)}, 0, {v(BV + d)}, vcc')
            for d in range(4):
                g(f'v_sub_u32 {v(BF + 8 * Tp + 4 + d)}, {v(BV + d)}, {v(BF + 8 * Tp + d)}')
        g.stamp(2)
        SM = 96
        pend = []

        def sums(mt):
            out = []
            for hf in range(2):
                for Tp in range(3):
                    x = v(ACC + 12 * mt + 4 * Tp + 2 * hf, 2)
                    if mt == 0 and hf == 0:
                        out.append(f'v_mov_b64 {v(SM + 2 * Tp, 2)}, {x}')
                    else:
                        out.append(f'v_pk_add_f32 {v(SM + 2 * Tp, 2)}, {v(SM + 2 * Tp, 2)}, {x}')
            return out
        for kk in range(5):
            g.wait_vm(hs[kk])
            for half in range(2):
                for hh in range(2):
                    i = (2 * kk + half) * 2 + hh
                    g(f'ds_read_b128 {v(RA + 4 * i, 4)}, {v(vO)} offset:{kk * 3072 + 16 * 96 * half + 48 * hh}')
            for mt in (2 * kk, 2 * kk + 1):
                for hh in range(2):
                    for Tp in range(3):
                        d = v(ACC + 12 * mt + 4 * Tp, 4)
                        g.mfma(d, v(RA + 8 * mt + 4 * hh, 4), v(BF + 8 * Tp + 4 * hh, 4), d if hh else '0')
                        if pend:
                            g(pend.pop(0))
                if mt >= 1:
                    pend += sums(mt - 1)
        for x in pend + sums(9):
            g(x)
        g.stamp(3)
        CS = 24
        for Tp in range(3):
            g(f'v_add_f32 {v(CS + Tp)}, {v(SM + 2 * Tp)}, {v(SM + 2 * Tp + 1)}')
        g(f'v_mov_b32 {v(CS + 3)}, 0')
        g.xg_sum2(CS, CS + 1, vT)
        g.xg_sum2(CS + 2, CS + 3, vT)
        g(f's_lshl_b32 {s(15)}, {s(sW)}, 8')
        g(f'v_lshl_add_u32 {v(vT)}, {v(vI)}, 4, {s(15)}')
        g(f'ds_write_b128 {v(vT)}, {v(CS, 4)}')
        g(f's_cmp_eq_u32 {s(sPart)}, 1')
        g(f's_cselect_b32 {s(sM3)}, 0x44444444, 0')
        g(f's_mov_b32 {s(sM3 + 1)}, {s(sM3)}')
        g(f's_or_b64 {s(sM2, 2)}, {s(sM2, 2)}, {s(sM3, 2)}')
        g(f'v_lshlrev_b32 {v(vT)}, 4, {v(vI)}')
        g.barrier()
        P_ = 28
        for w in range(4):
            g(f'ds_read_b128 {v(P_ + 4 * w, 4)}, {v(vT)} offset:{256 * w}')
        for h2 in range(2):
            g(f'v_pk_add_f32 {v(P_ + 2 * h2, 2)}, {v(P_ + 2 * h2, 2)}, {v(P_ + 4 + 2 * h2, 2)}')
            g(f'v_pk_add_f32 {v(P_ + 8 + 2 * h2, 2)}, {v(P_ + 8 + 2 * h2, 2)}, {v(P_ + 12 + 2 * h2, 2)}')
            g(f'v_pk_add_f32 {v(P_ + 2 * h2, 2)}, {v(P_ + 2 * h2, 2)}, {v(P_ + 8 + 2 * h2, 2)}')
        MN = 44
        for Tp in range(3):
            g(f'v_mul_f32 {v(MN + 2 * Tp)}, 0xbae38e39, {v(P_ + Tp)}')
        g(f'v_cndmask_b32 {v(MN + 4)}, {v(MN + 4)}, 1.0, {s(sM3, 2)}')
        O_ = 52

        def emit_k(kk):
            for Tp in range(3):
                o = O_ + 4 * ((3 * kk + Tp) % 4)
                for half in range(2):
                    b = ACC + 12 * (2 * kk + half) + 4 * Tp
                    for hf in range(2):
                        g(f'v_pk_add_f32 {v(b + 2 * hf, 2)}, {v(b + 2 * hf, 2)}, {v(MN + 2 * Tp, 2)} op_sel_hi:[1,0]')
                    for hf in range(2):
                        g(f'v_cvt_pk_bf16_f32 {v(o + 2 * half + hf)}, {v(b + 2 * hf)}, {v(b + 2 * hf + 1)}')
                g(f's_mov_b64 exec, {s(masks[Tp], 2)}')
                g(f'buffer_store_dwordx4 {v(o, 4)}, {v(7)}, {s(rWS, 4)}, {s(bases[Tp])} offen sc1')
                g.setexec(-1)
                g(f's_add_u32 {s(bases[Tp])}, {s(bases[Tp])}, {s(steps[Tp])}')
        g.stamp(4)
        for kk in range(4):
            emit_k(kk)
        g(f's_cmp_ge_u32 {s(sW)}, 2')
        with g.skip_if('s_cbranch_scc1'):
            emit_k(4)
        g(f's_lshl_b32 {s(T3)}, {s(sU)}, 7')
        g(f's_add_u32 {s(T3)}, {s(T3)}, {L.FW}')
        g.stamp(5)
        g.drain(force=True)
        g.barrier()
        g(f's_cmp_lg_u32 {s(sW)}, 0')
        with g.skip_if('s_cbranch_scc1'):
            g.flag_store(T3)
        g.stamp(6)

    def softmax2(self, X, single_first, C, TMP, outs):
        g = self
        R = range(2)
        sg = [x if single_first else x + 8 for x in X]
        pb = [x + 1 if single_first else x for x in X]
        val = lambda t, f: X[t] + f
        EN = [TMP[t] for t in R]
        SG = [TMP[t] + 8 for t in R]
        MX = [TMP[t] + 10 for t in R]
        SM = [TMP[t] + 12 for t in R]
        for t in R:
            g(f'v_max3_f32 {v(MX[t])}, {v(val(t, 0))}, {v(val(t, 1))}, {v(val(t, 2))}')
            g(f'v_max3_f32 {v(MX[t] + 1)}, -{v(val(t, 0))}, -{v(val(t, 1))}, -{v(val(t, 2))}')
        for k in range(3):
            for t in R:
                g(f'v_max3_f32 {v(MX[t])}, {v(MX[t])}, {v(val(t, 3 + 2 * k))}, {v(val(t, 4 + 2 * k))}')
                g(f'v_max3_f32 {v(MX[t] + 1)}, {v(MX[t] + 1)}, -{v(val(t, 3 + 2 * k))}, -{v(val(t, 4 + 2 * k))}')
        for t in R:
            g(f'v_permlane16_swap_b32 {v(MX[t])}, {v(MX[t] + 1)}')
        for t in R:
            g(f'v_max_f32 {v(MX[t])}, {v(MX[t])}, {v(MX[t] + 1)}')
        for t in R:
            g(f'v_mul_f32 {v(MX[t])}, {v(C[t])}, {v(MX[t])}')
        for t in R:
            g(f'v_mov_b32 {v(MX[t] + 1)}, {v(MX[t])}')
        for t in R:
            g(f'v_permlane16_swap_b32 {v(MX[t])}, {v(MX[t] + 1)}')
        for k in range(4):
            for t in R:
                g(f'v_pk_fma_f32 {v(EN[t] + 2 * k, 2)}, {v(pb[t] + 2 * k, 2)}, {v(C[t], 2)}, {v(MX[t], 2)} op_sel:[0,0,1] op_sel_hi:[1,0,1] neg_lo:[1,0,1] neg_hi:[1,0,1]')
                g(f'v_pk_fma_f32 {v(pb[t] + 2 * k, 2)}, {v(pb[t] + 2 * k, 2)}, {v(C[t], 2)}, {v(MX[t], 2)} op_sel_hi:[1,0,0] neg_lo:[0,0,1] neg_hi:[0,0,1]')
        for t in R:
            g(f'v_fma_f32 {v(SG[t])}, {v(sg[t])}, {v(C[t])}, -{v(MX[t])}')
            g(f'v_fma_f32 {v(SG[t] + 1)}, -{v(sg[t])}, {v(C[t])}, -{v(MX[t] + 1)}')
        for t in R:
            for k in range(8):
                g(f'v_exp_f32 {v(pb[t] + k)}, {v(pb[t] + k)}')
                g(f'v_exp_f32 {v(EN[t] + k)}, {v(EN[t] + k)}')
            g(f'v_exp_f32 {v(SG[t])}, {v(SG[t])}')
            g(f'v_exp_f32 {v(SG[t] + 1)}, {v(SG[t] + 1)}')
        for t in R:
            g(f'v_pk_add_f32 {v(SM[t], 2)}, {v(pb[t], 2)}, {v(pb[t] + 2, 2)}')
            g(f'v_pk_add_f32 {v(SM[t] + 2, 2)}, {v(EN[t], 2)}, {v(EN[t] + 2, 2)}')
        for k in (2, 3):
            for t in R:
                g(f'v_pk_add_f32 {v(SM[t], 2)}, {v(SM[t], 2)}, {v(pb[t] + 2 * k, 2)}')
                g(f'v_pk_add_f32 {v(SM[t] + 2, 2)}, {v(SM[t] + 2, 2)}, {v(EN[t] + 2 * k, 2)}')
        for t in R:
            g(f'v_add_f32 {v(MX[t])}, {v(SM[t])}, {v(SM[t] + 1)}')
            g(f'v_add_f32 {v(MX[t] + 1)}, {v(SM[t] + 2)}, {v(SM[t] + 3)}')
        for t in R:
            g(f'v_pk_add_f32 {v(MX[t], 2)}, {v(MX[t], 2)}, {v(SG[t], 2)}')
        for t in R:
            g(f'v_permlane16_swap_b32 {v(MX[t])}, {v(MX[t] + 1)}')
        for t in R:
            g(f'v_add_f32 {v(MX[t])}, {v(MX[t])}, {v(MX[t] + 1)}')
        for t in R:
            g(f'v_rcp_f32 {v(MX[t])}, {v(MX[t])}')
        for t in R:
            g(f'v_mov_b32 {v(MX[t] + 1)}, {v(MX[t])}')
        for t in R:
            g(f'v_permlane16_swap_b32 {v(MX[t])}, {v(MX[t] + 1)}')
        for k in range(4):
            for t in R:
                g(f'v_pk_mul_f32 {v(pb[t] + 2 * k, 2)}, {v(pb[t] + 2 * k, 2)}, {v(MX[t], 2)} op_sel_hi:[1,0]')
                g(f'v_pk_mul_f32 {v(EN[t] + 2 * k, 2)}, {v(EN[t] + 2 * k, 2)}, {v(MX[t], 2)} op_sel:[0,1] op_sel_hi:[1,1]')
        for t in R:
            g(f'v_pk_mul_f32 {v(SG[t], 2)}, {v(SG[t], 2)}, {v(MX[t], 2)}')
        for t in R:
            if single_first:
                pos = [SG[t]] + [pb[t] + k for k in range(8)]
                neg = [SG[t] + 1] + [EN[t] + k for k in range(8)]
            else:
                pos = [pb[t] + k for k in range(8)] + [SG[t]]
                neg = [EN[t] + k for k in range(8)] + [SG[t] + 1]
            seq = pos + neg
            for d in range(9):
                g(f'v_cvt_pk_bf16_f32 {v(outs[t][d])}, {v(seq[2 * d])}, {v(seq[2 * d + 1])}')

    def consts(self, off):
        g = self
        v0_ = globals()['v']
        v = lambda i, n=1: v0_(i + off if i >= 6 else i, n)
        vT = 6

        def keep(ar, vr):
            g(f'v_accvgpr_write_b32 {a(ar)}, {v(vr)}')

        c3, r3 = 8, 9
        g(f'v_and_b32 {v(c3)}, 3, {v(vLANE)}')
        g(f'v_bfe_u32 {v(r3)}, {v(vLANE)}, 2, 2')
        g(f's_mul_i32 {s(T0)}, {s(sW)}, {32 * 264}')
        g(f's_add_u32 {s(T0)}, {s(T0)}, {L.L_SCR}')
        g(f'v_mul_u32_u24 {v(vT)}, 264, {v(vI)}')
        g(f'v_mad_u32_u24 {v(vT)}, {v(vG)}, 40, {v(vT)}')
        g(f'v_add_u32 {v(vT)}, {s(T0)}, {v(vT)}')
        keep(aSCW, vT)
        g(f'v_and_b32 {v(vT)}, 1, {v(vG)}')
        g(f'v_lshlrev_b32 {v(vT)}, 4, {v(vT)}')
        g(f'v_lshl_add_u32 {v(vT)}, {v(r3)}, 2, {v(vT)}')
        g(f'v_and_b32 {v(vT + 1)}, 2, {v(vG)}')
        g(f'v_add_u32 {v(vT)}, {v(vT)}, {v(vT + 1)}')
        g(f'v_mul_u32_u24 {v(10)}, 264, {v(vT)}')
        g(f'v_add_u32 {v(10)}, {L.L_SCR}, {v(10)}')
        g(f's_lshr_b32 {s(T2)}, {s(sW)}, 1')
        g(f's_mul_i32 {s(T0)}, {s(T2)}, 80')
        g(f'v_lshrrev_b32 {v(vT)}, 1, {v(c3)}')
        g(f'v_mad_u32_u24 {v(11)}, {v(vT)}, 40, {v(10)}')
        g(f'v_add_u32 {v(11)}, {s(T0)}, {v(11)}')
        g(f'v_and_b32 {v(vT)}, 1, {v(c3)}')
        for Tm in range(3):
            g(f'v_mad_u32_u24 {v(vT + 1)}, {v(vT)}, {8 * (min(3 + Tm, 4) - Tm)}, {v(11)}')
            g(f'v_add_u32 {v(vT + 1)}, {8 * Tm}, {v(vT + 1)}')
            keep(aPA0 + Tm, vT + 1)
        g(f's_mul_i32 {s(T0)}, {s(sW)}, 24')
        g(f's_add_u32 {s(T0)}, {s(T0)}, 160')
        g(f'v_min_u32 {v(vT)}, 2, {v(c3)}')
        g(f'v_lshl_add_u32 {v(vT)}, {v(vT)}, 3, {v(10)}')
        g(f'v_add_u32 {v(vT)}, {s(T0)}, {v(vT)}')
        keep(aPB, vT)
        g(f's_mul_i32 {s(T0)}, {s(sW)}, 960')
        g(f'v_lshlrev_b32 {v(vT)}, 6, {v(vI)}')
        g(f'v_lshl_add_u32 {v(vT)}, {v(vG)}, 4, {v(vT)}')
        g(f'v_add_u32 {v(vT)}, {s(T0)}, {v(vT)}')
        keep(aKVS, vT)
        g(f'v_lshrrev_b32 {v(vT)}, 1, {v(vG)}')
        g(f'v_lshl_add_u32 {v(vT)}, {v(vI)}, 1, {v(vT)}')
        g(f'v_lshlrev_b32 {v(vT)}, 4, {v(vT)}')
        g(f's_add_u32 {s(T0)}, {s(T0)}, 640')
        g(f'v_add_u32 {v(vT)}, {s(T0)}, {v(vT)}')
        keep(aKVS2, vT)
        g(f's_mul_i32 {s(T0)}, {s(sR128)}, 15')
        g(f'v_lshrrev_b32 {v(vT)}, 4, {v(vTID)}')
        g(f'v_min_u32 {v(vT + 1)}, 14, {v(vT)}')
        g(f'v_add_u32 {v(vT + 1)}, {s(T0)}, {v(vT + 1)}')
        g(f'v_lshlrev_b32 {v(vT + 1)}, 4, {v(vT + 1)}')
        g(f'v_lshl_add_u32 {v(vT + 1)}, {v(vI)}, 12, {v(vT + 1)}')
        keep(aH1, vT + 1)
        g(f's_lshl_b32 {s(T0)}, {s(sR128)}, 8')
        g(f'v_lshl_add_u32 {v(vT)}, {v(vT)}, 4, {s(T0)}')
        keep(aH2, vT)
        g(f'v_mul_u32_u24 {v(vT)}, 4370, {v(vTID)}')
        g(f'v_lshrrev_b32 {v(vT)}, 16, {v(vT)}')
        g(f'v_add_lshl_u32 {v(vT)}, {v(vT)}, {v(vTID)}, 4')
        keep(aH3, vT)
        g(f's_movk_i32 {s(T2)}, 240')
        g(f'v_cmp_gt_u32 {s(sM1, 2)}, {s(T2)}, {v(vTID)}')
        g(f'v_mul_u32_u24 {v(12)}, 1093, {v(vTID)}')
        g(f'v_lshrrev_b32 {v(12)}, 16, {v(12)}')
        g(f'v_mul_u32_u24 {v(13)}, 60, {v(12)}')
        g(f'v_sub_u32 {v(13)}, {v(vTID)}, {v(13)}')
        g(f'v_cmp_le_u32 vcc, 40, {v(13)}')
        g(f'v_lshrrev_b32 {v(14)}, 2, {v(13)}')
        g(f'v_subrev_u32 {v(15)}, 40, {v(13)}')
        g(f'v_lshrrev_b32 {v(15)}, 1, {v(15)}')
        g(f'v_cndmask_b32 {v(14)}, {v(14)}, {v(15)}, vcc')
        g(f'v_and_b32 {v(15)}, 3, {v(13)}')
        g(f'v_mul_u32_u24 {v(15)}, 24, {v(15)}')
        g(f'v_and_b32 {v(16)}, 1, {v(13)}')
        g(f'v_mad_u32_u24 {v(16)}, {v(16)}, 48, 12')
        g(f'v_cndmask_b32 {v(15)}, {v(15)}, {v(16)}, vcc')
        g(f'v_and_b32 {v(16)}, 1, {v(12)}')
        g(f'v_mad_u32_u24 {v(16)}, {v(16)}, 9, {v(14)}')
        g(f'v_cmp_ne_u32 vcc, 18, {v(16)}')
        g(f's_and_b64 {s(sM2, 2)}, {s(sM1, 2)}, vcc')
        g(f'v_cmp_eq_u32 vcc, 9, {v(14)}')
        g(f'v_mov_b32 {v(17)}, 18')
        g(f'v_cndmask_b32 {v(16)}, {v(16)}, {v(17)}, vcc')
        g(f'v_lshrrev_b32 {v(12)}, 1, {v(12)}')
        g(f'v_mad_u32_u24 {v(16)}, {v(12)}, 19, {v(16)}')
        g(f'v_mul_u32_u24 {v(16)}, 96, {v(16)}')
        g(f'v_add_u32 {v(16)}, {v(16)}, {v(15)}')
        g(f'v_add_u32 {v(16)}, {L.L_KVT}, {v(16)}')
        keep(aKT, 16)
        g(f'v_add_u32 {v(16)}, 12, {v(16)}')
        g(f'v_mul_u32_u24 {v(17)}, 12, {v(vTID)}')
        g(f'v_add_u32 {v(17)}, {L.L_ZERO - 240 * 12}, {v(17)}')
        g(f'v_cndmask_b32 {v(16)}, {v(17)}, {v(16)}, {s(sM1, 2)}')
        keep(aKZ, 16)
        g(f'v_cmp_gt_u32 vcc, 40, {v(13)}')
        g(f's_and_b64 {s(sM0, 2)}, {s(sM2, 2)}, vcc')
        g(f's_mov_b32 vcc_lo, 0xaaaaaaaa')
        g(f's_mov_b32 vcc_hi, 0xaaaaaaaa')
        g(f's_and_b64 {s(sM0, 2)}, {s(sM0, 2)}, vcc')
        g(f's_orn2_b64 {s(sM0, 2)}, {s(sM0, 2)}, {s(sM1, 2)}')
        g(f's_lshr_b32 {s(T0)}, {s(sR128)}, 2')
        g(f's_mul_i32 {s(T0)}, {s(T0)}, 144')
        g(f's_mul_i32 {s(T1)}, {s(sW)}, 36')
        g(f's_add_u32 {s(T0)}, {s(T0)}, {s(T1)}')
        g(f's_lshl_b32 {s(T0)}, {s(T0)}, 7')
        g(f's_add_u32 {s(T0)}, {s(T0)}, {L.FC}')
        g(f's_lshr_b32 {s(T1)}, {s(sCG)}, 1')
        g(f's_lshl_b32 {s(T1)}, {s(T1)}, 11')
        g(f's_lshl_b32 {s(T2)}, {s(sW)}, 9')
        g(f's_add_u32 {s(T1)}, {s(T1)}, {s(T2)}')
        g(f's_add_u32 {s(T1)}, {s(T1)}, {L.FWO - 36 * 128}')
        g(f'v_mov_b32 {v(16)}, {s(T0)}')
        g(f'v_mov_b32 {v(17)}, {s(T1)}')
        g(f'v_cmp_gt_u32 vcc, 36, {v(vLANE)}')
        g(f'v_cndmask_b32 {v(16)}, {v(17)}, {v(16)}, vcc')
        g(f'v_lshl_add_u32 {v(16)}, {v(vLANE)}, 7, {v(16)}')
        keep(aFC, 16)
        g(f'v_lshrrev_b32 {v(12)}, 3, {v(vI)}')
        g(f'v_lshrrev_b32 {v(13)}, 1, {v(vG)}')
        g(f'v_cmp_eq_u32 vcc, {v(12)}, {v(13)}')
        g(f'v_mul_u32_u24 {v(12)}, {19 * 96}, {v(12)}')
        g(f'v_and_b32 {v(13)}, 1, {v(vG)}')
        g(f'v_mad_u32_u24 {v(12)}, {v(13)}, 48, {v(12)}')
        g(f'v_add_u32 {v(12)}, {L.L_KVT}, {v(12)}')
        g(f'v_bfe_u32 {v(13)}, {v(vI)}, 2, 1')
        g(f'v_and_b32 {v(14)}, 3, {v(vI)}')
        g(f'v_lshl_add_u32 {v(13)}, {v(13)}, 3, {v(14)}')
        g(f'v_mov_b32 {v(17)}, {L.L_ZERO}')
        g(f's_movk_i32 {s(T0)}, 96')
        for T in range(3):
            if T < 2:
                g(f'v_add_u32 {v(15)}, {4 * T}, {v(13)}')
            else:
                g(f'v_lshlrev_b32 {v(15)}, 3, {v(14)}')
                g(f'v_lshrrev_b32 {v(15)}, {v(15)}, {v(18)}' if False else f'v_mov_b32 {v(18)}, 0x12111012')
                g(f'v_lshrrev_b32 {v(15)}, {v(15)}, {v(18)}')
                g(f'v_and_b32 {v(15)}, 0xff, {v(15)}')
            g(f'v_mad_u32_u24 {v(15)}, {v(15)}, {s(T0)}, {v(12)}')
            g(f'v_cndmask_b32 {v(15)}, {v(17)}, {v(15)}, vcc')
            keep(aOA0 + T, 15)
        g(f's_mul_i32 {s(T0)}, {s(sRB)}, 36864')
        g(f'v_lshrrev_b32 {v(12)}, 3, {v(vI)}')
        g(f'v_mul_u32_u24 {v(12)}, 18432, {v(12)}')
        g(f'v_and_b32 {v(13)}, 7, {v(vI)}')
        g(f'v_lshl_add_u32 {v(12)}, {v(13)}, 4, {v(12)}')
        g(f'v_add_u32 {v(12)}, {s(T0)}, {v(12)}')
        g(f's_lshl_b32 {s(T0)}, {s(sP)}, 10')
        g(f'v_lshl_add_u32 {v(14)}, {v(vG)}, 8, {v(12)}')
        g(f'v_add_u32 {v(14)}, {s(T0)}, {v(14)}')
        keep(aOS, 14)
        g(f's_lshl_b32 {s(T0)}, {s(sP)}, 7')
        g(f's_add_u32 {s(T0)}, {s(T0)}, {64 * 256}')
        g(f'v_lshlrev_b32 {v(14)}, 3, {v(13)}')
        g(f'v_sub_u32 {v(14)}, {v(12)}, {v(14)}')
        g(f'v_lshrrev_b32 {v(15)}, 1, {v(vG)}')
        g(f'v_lshl_add_u32 {v(14)}, {v(15)}, 6, {v(14)}')
        g(f'v_add_u32 {v(14)}, {s(T0)}, {v(14)}')
        keep(aOE, 14)
        g(f's_and_b32 {s(T3)}, {s(sW)}, 1')
        g(f's_mul_i32 {s(T0)}, {s(sRB2)}, 36864')
        g(f's_mul_i32 {s(T1)}, {s(sCG)}, 4608')
        g(f's_add_u32 {s(T0)}, {s(T0)}, {s(T1)}')
        g(f's_lshl_b32 {s(T1)}, {s(T3)}, 7')
        g(f's_add_u32 {s(T0)}, {s(T0)}, {s(T1)}')
        g(f'v_lshlrev_b32 {v(12)}, 8, {v(vG)}')
        g(f'v_lshl_add_u32 {v(12)}, {v(13)}, 4, {v(12)}')
        g(f'v_add_u32 {v(12)}, {s(T0)}, {v(12)}')
        g(f'v_lshrrev_b32 {v(14)}, 3, {v(vI)}')
        g(f'v_lshl_add_u32 {v(15)}, {v(14)}, 3, {v(12)}')
        keep(aX1, 15)
        g(f'v_lshl_add_u32 {v(15)}, {v(14)}, 10, {v(12)}')
        keep(aX3, 15)
        g(f's_lshl_b32 {s(T0)}, {s(sR64)}, 13')
        g(f's_lshl_b32 {s(T1)}, {s(sW)}, 8')
        g(f's_add_u32 {s(T0)}, {s(T0)}, {s(T1)}')
        g(f's_add_u32 {s(T0)}, {s(T0)}, {L.ST}')
        g(f'v_lshl_add_u32 {v(15)}, {v(vI)}, 4, {s(T0)}')
        g(f'v_lshl_add_u32 {v(16)}, {v(vG)}, 10, {v(15)}')
        keep(aSTG, 16)
        g(f's_lshl_b32 {s(T1)}, {s(sCG)}, 10')
        g(f'v_add_u32 {v(15)}, {s(T1)}, {v(15)}')
        keep(aSTP, 15)
        g(f's_lshl_b32 {s(T0)}, {s(sRB2)}, 5')
        g(f's_lshl_b32 {s(T1)}, {s(T3)}, 3')
        g(f's_add_u32 {s(T0)}, {s(T0)}, {s(T1)}')
        g(f's_mul_i32 {s(T0)}, {s(T0)}, 1152')
        g(f's_mul_i32 {s(T1)}, {s(sCG)}, 144')
        g(f's_add_u32 {s(T0)}, {s(T0)}, {s(T1)}')
        g(f'v_lshl_add_u32 {v(15)}, {v(14)}, 4, {v(13)}')
        g(f'v_mul_u32_u24 {v(15)}, 1152, {v(15)}')
        g(f'v_and_b32 {v(16)}, 1, {v(vG)}')
        g(f'v_lshl_add_u32 {v(15)}, {v(16)}, 5, {v(15)}')
        g(f'v_lshrrev_b32 {v(16)}, 1, {v(vG)}')
        g(f'v_lshl_add_u32 {v(15)}, {v(16)}, 4, {v(15)}')
        g(f'v_add_u32 {v(15)}, {s(T0)}, {v(15)}')
        keep(aOUT, 15)
        g(f'v_lshlrev_b32 {v(15)}, 7, {v(vG)}')
        g(f'v_lshl_add_u32 {v(15)}, {v(13)}, 4, {v(15)}')
        g(f'v_add_u32 {v(15)}, 4096, {v(15)}')
        keep(aW4, 15)
        g.wperm(15 + off, 16 + off)
        keep(aWP, 15)
        g(f's_mov_b32 {s(sLAY)}, 0')
        g(f's_mul_i32 {s(sXP)}, {s(sRB)}, 36864')
        g(f's_add_u32 {s(sXP)}, {s(sXP)}, {L.X1P}')
        g(f's_mov_b32 {s(sOFB)}, {L.OF}')
        g(f's_lshl_b32 {s(sKV1)}, {s(sP)}, 16')
        g(f's_add_u32 {s(sKV1)}, {s(sKV1)}, {L.KV1}')
        g(f's_lshl_b32 {s(sKV2)}, {s(sP)}, 12')
        g(f's_add_u32 {s(sKV2)}, {s(sKV2)}, {L.KV2}')
        g(f's_mov_b32 {s(sFO)}, {L.FO}')

    def clears(self):
        g = self

        def get(vr, ar):
            g(f'v_accvgpr_read_b32 {v(vr)}, {a(ar)}')

        if g.opt.clear:
            Z = 180
            g(f'v_mov_b64 {v(Z, 2)}, 0')
            g(f'v_mov_b64 {v(Z + 2, 2)}, 0')
            g(f's_lshl_b32 {s(T0)}, {s(sRB)}, 4')
            g(f's_add_u32 {s(T0)}, {s(T0)}, {s(sP)}')
            g(f's_lshl_b32 {s(T0)}, {s(T0)}, 7')
            g(f's_add_u32 {s(T0)}, {s(T0)}, {L.FO}')
            g(f's_add_u32 {s(T1)}, {s(T0)}, {1024 * 128}')
            g.fx_off(T2, T3)
            g.setexec(0xff)
            for r in (T0, T1, T2):
                g(f'buffer_store_dwordx4 {v(Z, 4)}, {v(vL16)}, {s(rWS, 4)}, {s(r)} offen sc1')
            g.setexec(-1)
            get(184, aSTP)
            get(185, aH2)
            g(f's_lshl_b32 {s(T0)}, {s(sR128)}, 12')
            g(f's_mul_i32 {s(T1)}, {s(sW)}, 960')
            g(f's_add_u32 {s(T0)}, {s(T0)}, {s(T1)}')
            g(f's_add_u32 {s(T0)}, {s(T0)}, {s(sKV1)}')
            g(f's_add_u32 {s(T1)}, {s(T0)}, {256 * 4096}')
            g(f's_add_u32 {s(T2)}, {s(sKV2)}, {16 * 4096}')
            g.setexec((1 << 60) - 1)
            for r in (T0, T1):
                g(f'buffer_store_dwordx4 {v(Z, 4)}, {v(vL16)}, {s(rWS, 4)}, {s(r)} offen sc1')
            g.setexec(0x0001000100010001)
            for r in (sKV2, T2):
                g(f'buffer_store_dwordx4 {v(Z, 4)}, {v(185)}, {s(rWS, 4)}, {s(r)} offen sc1')
            g.setexec(0xffff)
            g(f'buffer_store_dwordx4 {v(Z, 4)}, {v(184)}, {s(rWS, 4)}, 0 offen sc1')
            g.setexec(-1)

    def main(self):
        g = self
        vT = 6
        def keep(ar, vr):
            g(f'v_accvgpr_write_b32 {a(ar)}, {v(vr)}')

        def get(vr, ar):
            g(f'v_accvgpr_read_b32 {v(vr)}, {a(ar)}')

        g.stamp(7)
        for it in g.dma_items(8, stride=16384):
            it()
        get(vT, aFC)
        g.poll([(vT + 1, 1, vT, '0', 0)], (1 << 40) - 1, 4)
        g.barrier()
        if g.opt.stop == 'conv':
            g.branch('s_branch', 'L_fin')

        g.label('L_layer')
        g.stamp(8)
        XA = 112
        AC = [48, 76]
        GR = [104, 108]
        def ldX(j):
            if j >= 36 or 'noload1' in g.opt.exp:
                return
            if j and j % 4 == 0:
                g(f's_add_u32 {s(sXP)}, {s(sXP)}, 4096')
            off = f' offset:{(j % 4) * 1024}' if j % 4 else ''
            g(f'buffer_load_dwordx4 {v(XA + 4 * j, 4)}, {v(vL16)}, {s(rWS, 4)}, {s(sXP)} offen{off} sc1')
        NPRE = g.opt.npre
        for j in range(NPRE):
            ldX(j)
        g(f's_cmp_eq_u32 {s(sLAY)}, 0')
        with g.skip_if('s_cbranch_scc1'):
            g('s_barrier')
        vW1, vW2, vW0 = 6, 7, 8
        get(vW0, aWP)
        g(f'v_add_u32 {v(vW1)}, {9 * 5120}, {v(vW0)}')
        g(f'v_add_u32 {v(vW2)}, {L.L_P2}, {v(vW0)}')

        def rdW(k, T):
            if T < 5:
                base, off = (vW0, k * 5120) if k < 9 else (vW1, (k - 9) * 5120)
                g(f'ds_read_b128 {a(20 * (k & 1) + 4 * T, 4)}, {v(base)} offset:{off + 1024 * T}')
            else:
                g(f'ds_read_b128 {a(40 + 8 * (k & 3) + 4 * (T - 5), 4)}, {v(vW2)} offset:{k * 2048 + 1024 * (T - 5)}')
        for T in range(5):
            rdW(0, T)
        g(f'v_swap_b32 {v(XA + 2)}, {v(XA + 4)}')
        g(f'v_swap_b32 {v(XA + 3)}, {v(XA + 5)}')
        for k in range(18):
            x = XA + 8 * k
            for t in range(2):
                g.mfma(v(GR[t], 4), v(x + 4 * t, 4), v(x + 4 * t, 4), v(GR[t], 4) if k else '0')
                ldX(NPRE + 2 * k + t)
            for T in range(5):
                for t in range(2):
                    d = v(AC[t] + 4 * T, 4)
                    if 'nomfma1' not in g.opt.exp or k == 0:
                        g.mfma(d, a(20 * (k & 1) + 4 * T, 4), v(x + 4 * t, 4), d if k else '0')
                    if t == 0 and k < 17:
                        rdW(k + 1, T)
                    if t == 1 and T in (2, 3) and k < 17:
                        g(f'v_swap_b32 {v(x + 8 + T)}, {v(x + 10 + T)}')
        g.stamp(9)
        C = [8, 10]
        RSV = [12, 14]
        g(f'v_and_b32 {v(16)}, 3, {v(vI)}')
        for jj in range(1, 4):
            g(f'v_cmp_eq_u32 vcc, {jj}, {v(16)}')
            for t in range(2):
                g(f'v_cndmask_b32 {v(GR[t])}, {v(GR[t])}, {v(GR[t] + jj)}, vcc')
        g(f'v_lshrrev_b32 {v(16)}, 2, {v(vI)}')
        g(f'v_cmp_eq_u32 vcc, {v(16)}, {v(vG)}')
        for t in range(2):
            g(f'v_cndmask_b32 {v(GR[t])}, 0, {v(GR[t])}, vcc')
        g.xg_sum2(GR[0], GR[1], 16)
        for t in range(2):
            g.ln_coef(AC[t] + 18, GR[t], RSV[t], None)
        for t in range(2):
            g(f'v_mul_f32 {v(C[t])}, 0x3fb8aa3b, {v(RSV[t])}')
        TM = [16, 32]
        VP = [104, 108]
        vSC = 6
        get(vSC, aSCW)
        g(f'v_lshlrev_b32 {v(16)}, 4, {v(vG)}')
        g(f'v_sub_u32 {v(17)}, {v(vSC)}, {v(16)}')
        for t in range(2):
            b = AC[t]
            g(f'v_mul_f32 {v(b + 9)}, {v(RSV[t])}, {v(b + 9)}')
            for k in range(4):
                g(f'v_pk_mul_f32 {v(b + 10 + 2 * k, 2)}, {v(b + 10 + 2 * k, 2)}, {v(RSV[t], 2)} op_sel_hi:[1,0]')
            for d in range(4):
                g(f'v_cvt_pk_bf16_f32 {v(VP[t] + d)}, {v(b + 9 + 2 * d)}, {v(b + 10 + 2 * d)}')
            g(f'v_cvt_pk_bf16_f32 {v(b + 18)}, {v(b + 17)}, 1.0')
            o = 160 + 16 * 264 * t
            g(f'ds_write_b64 {v(17)}, {v(VP[t], 2)} offset:{o}')
            g(f'ds_write_b64 {v(17)}, {v(VP[t] + 2, 2)} offset:{o + 8}')
            g(f'ds_write_b32 {v(17)}, {v(b + 18)} offset:{o + 16}')
        PK = [[AC[t] + 10 + d for d in range(9)] for t in range(2)]
        g.softmax2([AC[0], AC[1]], False, C, TM, PK)
        for t in range(2):
            o = 16 * 264 * t
            for d in range(4):
                g(f'ds_write_b64 {v(vSC)}, {v(PK[t][2 * d], 2)} offset:{o + 8 * d}')
            g(f'ds_write_b32 {v(vSC)}, {v(PK[t][8])} offset:{o + 32}')
        vPA, vPB = 16, 19
        for Tm in range(3):
            get(vPA + Tm, aPA0 + Tm)
        get(vPB, aPB)
        g.barrier()
        g.stamp(10)
        KD = 20
        for ks in range(4):
            for rho in range(2):
                g(f'ds_read_b64_tr_b16 {a(72 + 16 * ks + 2 * rho, 2)}, {v(vPB)} offset:{(32 * ks + rho) * 264}')
            for Tm in range(3):
                for rho in range(2):
                    g(f'ds_read_b64_tr_b16 {a(72 + 16 * ks + 4 + 4 * Tm + 2 * rho, 2)}, {v(vPA + Tm)} offset:{(32 * ks + rho) * 264}')
            if ks == 1 or ks == 3:
                for k2 in (ks - 1, ks):
                    for Tm in range(3):
                        d = v(KD + 4 * Tm, 4)
                        g.mfma(d, a(72 + 16 * k2 + 4 + 4 * Tm, 4), a(72 + 16 * k2, 4), d if k2 else '0')
        for k in range(3):
            rdW(k, 5)
            rdW(k, 6)
        G1_, G2_ = 32, 36
        get(40, aKVS)
        get(41, aKVS2)
        g(f'v_mov_b32 {v(G1_ + 3)}, {v(vTAG)}')
        g(f'v_mov_b32 {v(G2_ + 3)}, {v(vTAG)}')
        g(f's_lshl_b32 {s(T0)}, {s(sR128)}, 12')
        g(f's_add_u32 {s(T0)}, {s(T0)}, {s(sKV1)}')
        for d in range(3):
            g(f'v_cvt_pk_bf16_f32 {v(G1_ + d)}, {v(KD + 2 * d)}, {v(KD + 2 * d + 1)}')
        for d in range(3):
            g(f'v_cvt_pk_bf16_f32 {v(G2_ + d)}, {v(KD + 6 + 2 * d)}, {v(KD + 7 + 2 * d)}')
        g.setexec(0x03ff03ff03ff03ff)
        g(f'buffer_store_dwordx4 {v(G1_, 4)}, {v(40)}, {s(rWS, 4)}, {s(T0)} offen sc1')
        g.setexec(0x000003ff000003ff)
        g.last_flag = g(f'buffer_store_dwordx4 {v(G2_, 4)}, {v(41)}, {s(rWS, 4)}, {s(T0)} offen sc1')
        g.setexec(-1)
        g.stamp(11)
        g(f's_mul_i32 {s(sBG)}, {s(sCG)}, {L.WOSZ}')
        g(f's_mul_i32 {s(sBL)}, {s(sW)}, {21 * 1024}')
        g(f's_add_u32 {s(sBG)}, {s(sBG)}, {s(sBL)}')
        g(f's_add_u32 {s(sBG)}, {s(sBG)}, {L.WOF}')
        woit = g.dma_items(21)
        NW0 = g.opt.nw0
        g.bg_start(woit[:NW0], 6, 3)
        H1 = 32
        get(41, aH1)
        for k in range(18):
            if k == g.opt.h1at:
                g.bg_flush()
                g(f'buffer_load_dwordx4 {v(H1, 4)}, {v(41)}, {s(rWS, 4)}, {s(sKV1)} offen sc1')
            x = XA + 8 * k
            if k + 3 < 18:
                rdW(k + 3, 5)
            for T in (5, 6):
                for t in range(2):
                    d = v(AC[t] + 4 * T, 4)
                    g.mfma(d, a(40 + 8 * (k & 3) + 4 * (T - 5), 4), v(x + 4 * t, 4), d if k else '0')
                    if T == 5 and t == 1 and k + 3 < 18:
                        rdW(k + 3, 6)
        g.stamp(12)
        g.poll_finish(H1, 41, s(sKV1), -1, 5, n=4)
        U = 116
        for d in range(3):
            g.unpack(U + 2 * d, U + 2 * d + 1, H1 + d)
        for sh in (8, 4, 2, 1):
            for d in range(6):
                g(f'v_add_f32_dpp {v(U + d)}, {v(U + d)}, {v(U + d)} row_ror:{sh} row_mask:0xf bank_mask:0xf')
        get(41, aH2)
        for d in range(3):
            g(f'v_cvt_pk_bf16_f32 {v(H1 + d)}, {v(U + 2 * d)}, {v(U + 2 * d + 1)}')
        g.setexec(0x0001000100010001)
        g.last_flag = g(f'buffer_store_dwordx4 {v(H1, 4)}, {v(41)}, {s(rWS, 4)}, {s(sKV2)} offen sc1')
        g.setexec(-1)
        g.stamp(13)
        PQ = [128, 140]
        for t in range(2):
            g(f'v_mov_b32 {v(PQ[t] + 9)}, 0')
            g(f'v_mov_b64 {v(PQ[t] + 10, 2)}, 0')
        g.softmax2([AC[0] + 19, AC[1] + 19], True, C, TM, [[PQ[t] + d for d in range(9)] for t in range(2)])
        g.stamp(14)
        get(41, aH3)
        get(42, aKT)
        get(43, aKZ)
        g(f'v_mov_b32 {v(44)}, 0')
        g.poll([(H1, 4, 41, s(sKV2), 0)], s(sM1, 2), 6)
        g.setexec(s(sM2, 2))
        g(f'ds_write2_b32 {v(42)}, {v(H1)}, {v(H1 + 1)} offset0:0 offset1:1')
        g(f'ds_write_b32 {v(42)}, {v(H1 + 2)} offset:8')
        g.setexec(s(sM0, 2))
        g(f'ds_write2_b32 {v(43)}, {v(44)}, {v(44)} offset0:0 offset1:1')
        g(f'ds_write_b32 {v(43)}, {v(44)} offset:8')
        g.setexec(-1)
        for T in range(3):
            get(16 + T, aOA0 + T)
        g.barrier()
        g.stamp(15)
        for T in range(3):
            for kk in range(3):
                g(f'ds_read_b128 {a(72 + 12 * T + 4 * kk, 4)}, {v(16 + T)} offset:{16 * kk}')
        OD = [48, 60]
        for T in (2, 0, 1):
            for kk in range(3):
                for t in range(2):
                    d = v(OD[t] + 4 * T, 4)
                    g.mfma(d, a(72 + 12 * T + 4 * kk, 4), v(PQ[t] + 4 * kk, 4), d if kk else '0')
        get(20, aOS)
        get(21, aOE)
        RC = [22, 24]
        OP = [28, 32]
        OX = 36
        for t in range(2):
            g(f'v_add_f32 {v(RC[t])}, 0x358637bd, {v(OD[t] + 8)}')
        for t in range(2):
            g(f'v_rcp_f32 {v(RC[t])}, {v(RC[t])}')
        for t in range(2):
            g(f'v_mul_f32 {v(OD[t] + 9)}, {v(RC[t])}, {v(OD[t] + 9)}')
            g(f'v_mul_f32 {v(OD[t] + 10)}, {v(RC[t])}, {v(OD[t] + 10)}')
            g(f'v_cvt_pk_bf16_f32 {v(OX + t)}, {v(OD[t] + 9)}, {v(OD[t] + 10)}')
        for t in range(2):
            for k in range(4):
                g(f'v_pk_mul_f32 {v(OD[t] + 2 * k, 2)}, {v(OD[t] + 2 * k, 2)}, {v(RC[t], 2)} op_sel_hi:[1,0]')
            for k in range(4):
                g(f'v_cvt_pk_bf16_f32 {v(OP[t] + k)}, {v(OD[t] + 2 * k)}, {v(OD[t] + 2 * k + 1)}')
            g(f'buffer_store_dwordx4 {v(OP[t], 4)}, {v(20)}, {s(rWS, 4)}, {s(sOFB)} offen offset:{128 * t} sc1')
        g(f'v_permlane32_swap_b32 {v(OX)}, {v(OX + 1)}')
        g.setexec(0x0000ffff0000ffff)
        ho = g(f'buffer_store_dwordx2 {v(OX, 2)}, {v(21)}, {s(rWS, 4)}, {s(sOFB)} offen sc1')
        g.setexec(-1)
        g.stamp(23)
        NW1 = NW0 + g.opt.nw1
        for it in woit[NW0:NW1]:
            it()
        g(f's_lshl_b32 {s(T0)}, {s(sRB)}, 4')
        g(f's_add_u32 {s(T0)}, {s(T0)}, {s(sP)}')
        g(f's_lshl_b32 {s(T0)}, {s(T0)}, 7')
        g(f's_add_u32 {s(T0)}, {s(T0)}, {s(sFO)}')
        g.stamp(24)
        g.wait_vm(ho)
        g.flag_store(T0)
        g.stamp(16)
        for it in woit[NW1:]:
            it()
        if g.opt.stop == 'o1':
            g.branch('s_branch', 'L_fin')
        X1, YY = 68, 78
        g(f's_cmp_lg_u32 {s(sLAY)}, 0')
        with g.skip_if('s_cbranch_scc1'):
            get(16, aX1)
            g(f's_mov_b32 {s(T1)}, {L.X1P}')
            for T in range(5):
                if T == 4:
                    g(f's_add_u32 {s(T1)}, {s(T1)}, 4096')
                o = 1024 * (T & 3)
                g(f'buffer_load_dwordx2 {v(X1 + 2 * T, 2)}, {v(16)}, {s(rWS, 4)}, {s(T1)} offen offset:{o} sc1')
        vWo1, vWo4, vWo5 = 6, 7, 8
        g(f'v_add_u32 {v(vWo1)}, {9 * 4608}, {v(vL16)}')
        get(vWo4, aW4)
        g(f'v_add_u32 {v(vWo5)}, {9 * 4608}, {v(vWo4)}')
        g(f'v_lshlrev_b32 {v(9)}, 8, {v(vG)}')
        g(f'v_lshl_add_u32 {v(9)}, {v(vI)}, 3, {v(9)}')

        def rdO(k, T):
            hi = k >= 9
            base = ((vL16, vWo1) if T < 4 else (vWo4, vWo5))[hi]
            off = (k - 9 * hi) * 4608 + (1024 * T if T < 4 else 0)
            g(f'ds_read_b128 {a(20 * (k % 3) + 4 * T, 4)}, {v(base)} offset:{off}')
        g(f'v_lshlrev_b32 {v(17)}, 7, {v(vI)}')
        g(f's_lshl_b32 {s(T0)}, {s(sRB2)}, 11')
        g(f's_add_u32 {s(T0)}, {s(T0)}, {s(sFO)}')
        g.poll([(18, 1, 17, s(T0), 0)], 0xffff, 7)
        g.stamp(17)
        OA = 112
        g(f's_lshl_b32 {s(T0)}, {s(sR64)}, 2')
        g(f's_add_u32 {s(T0)}, {s(T0)}, {s(sW)}')
        g(f's_mul_i32 {s(T0)}, {s(T0)}, 18432')
        g(f's_add_u32 {s(T0)}, {s(T0)}, {s(sOFB)}')
        def ldO(k):
            if k >= 18 or 'noload2' in g.opt.exp:
                return
            if k and k % 4 == 0:
                g(f's_add_u32 {s(T0)}, {s(T0)}, 4096')
            off = f' offset:{(k % 4) * 1024}' if k % 4 else ''
            if k < 16:
                g(f'buffer_load_dwordx4 {v(OA + 4 * k, 4)}, {v(vL16)}, {s(rWS, 4)}, {s(T0)} offen{off} sc1')
            else:
                for hf in range(2):
                    g(f'buffer_load_dwordx2 {v(OA + 4 * k + 2 * hf, 2)}, {v(9)}, {s(rWS, 4)}, {s(T0)} offen offset:{(k % 4) * 1024 + 128 * hf} sc1')
        NP2 = g.opt.np2
        for k in range(NP2):
            ldO(k)
        g.barrier()
        for k in range(2):
            for T in range(5):
                rdO(k, T)
        A2 = 48
        for k in range(18):
            for T in range(5):
                d = v(A2 + 4 * T, 4)
                g.mfma(d, a(20 * (k % 3) + 4 * T, 4), v(OA + 4 * k, 4), d if k else '0')
                if k + 2 < 18:
                    rdO(k + 2, T)
                if T == 0:
                    ldO(NP2 + k)
        g.stamp(18)
        g(f's_cmp_lg_u32 {s(sLAY)}, 0')
        g.branch('s_cbranch_scc1', 'L_last')
        g(f's_mov_b32 {s(T2)}, {L.YP}')
        for T in range(5):
            if T == 4:
                g(f's_add_u32 {s(T2)}, {s(T2)}, 4096')
            g(f'buffer_load_dwordx2 {v(YY + 2 * T, 2)}, {v(16)}, {s(rWS, 4)}, {s(T2)} offen offset:{1024 * (T & 3)} sc1')
        g.barrier()
        sDL, sDG = T4, T5
        g(f's_mul_i32 {s(sDL)}, {s(sW)}, {23 * 1024}')
        g(f's_mul_i32 {s(sDG)}, {s(sP)}, {L.WPSZ}')
        g(f's_add_u32 {s(sDG)}, {s(sDG)}, {s(sDL)}')
        g(f's_add_u32 {s(sDG)}, {s(sDG)}, {L.WP}')
        UX = 112
        for T in range(5):
            for d in range(2):
                g.unpack(UX + 4 * T + 2 * d, UX + 4 * T + 2 * d + 1, X1 + 2 * T + d)
        for k in range(10):
            g(f'v_pk_add_f32 {v(A2 + 2 * k, 2)}, {v(A2 + 2 * k, 2)}, {v(UX + 2 * k, 2)}')
        g.setexec(0xffffffff00000000)
        g(f'v_mov_b64 {v(A2 + 16, 2)}, 0')
        g(f'v_mov_b64 {v(A2 + 18, 2)}, 0')
        g.setexec(-1)
        SS, SQ = 8, 10
        g(f'v_pk_add_f32 {v(SS, 2)}, {v(A2, 2)}, {v(A2 + 2, 2)}')
        g(f'v_pk_mul_f32 {v(SQ, 2)}, {v(A2, 2)}, {v(A2, 2)}')
        g(f'v_pk_fma_f32 {v(SQ, 2)}, {v(A2 + 2, 2)}, {v(A2 + 2, 2)}, {v(SQ, 2)}')
        for k in range(2, 10):
            g(f'v_pk_add_f32 {v(SS, 2)}, {v(SS, 2)}, {v(A2 + 2 * k, 2)}')
            g(f'v_pk_fma_f32 {v(SQ, 2)}, {v(A2 + 2 * k, 2)}, {v(A2 + 2 * k, 2)}, {v(SQ, 2)}')
        SP = 12
        g(f'v_add_f32 {v(SP)}, {v(SS)}, {v(SS + 1)}')
        g(f'v_add_f32 {v(SP + 1)}, {v(SQ)}, {v(SQ + 1)}')
        get(16, aSTP)
        g(f'v_mov_b32 {v(SP + 3)}, {v(vTAG)}')
        g(f'v_mov_b32 {v(SP + 2)}, 0')
        g.xg_sum2(SP, SP + 1, 17)
        g.setexec(0xffff)
        hs = g(f'buffer_store_dwordx4 {v(SP, 4)}, {v(16)}, {s(rWS, 4)}, 0 offen sc1')
        g.setexec(-1)
        g.dma(sDL, sDG, 8)
        UY = 132
        for T in range(5):
            for d in range(2):
                g.unpack(UY + 4 * T + 2 * d, UY + 4 * T + 2 * d + 1, YY + 2 * T + d)
        get(16, aSTG)
        g(f's_movk_i32 {s(T0)}, 4096')
        g.wait_vm(hs)
        g.stamp(19)
        SA, SB = 20, 24
        g.poll([(SA, 4, 16, '0', 0), (SB, 4, 16, s(T0), 0)], -1, 8)
        g.stamp(20)
        g(f'v_pk_add_f32 {v(SA, 2)}, {v(SA, 2)}, {v(SB, 2)}')
        g.xg_sum2(SA, SA + 1, 17)
        g.ln_coef(SA, SA + 1, 8, 10)
        for k in range(10):
            g(f'v_pk_fma_f32 {v(UX + 2 * k, 2)}, {v(A2 + 2 * k, 2)}, {v(8, 2)}, {v(10, 2)} op_sel_hi:[1,0,0]')
        X3 = 28
        for k in range(10):
            g(f'v_pk_fma_f32 {v(UX + 2 * k, 2)}, {v(UX + 2 * k, 2)}, {v(UY + 2 * k, 2)}, {v(A2 + 2 * k, 2)}')
        for k in range(10):
            g(f'v_cvt_pk_bf16_f32 {v(X3 + k)}, {v(UX + 2 * k)}, {v(UX + 2 * k + 1)}')
        for k in range(10):
            keep(aKEEP + k, X3 + k)
        get(16, aX3)
        g(f's_mov_b32 {s(T0)}, {L.X3P}')
        g(f's_mov_b32 {s(T1)}, {L.X3P + 4096}')
        for pr in range(3):
            b = X3 + 4 * pr
            if pr < 2:
                g(f'v_mov_b64 {v(18, 2)}, {v(b, 2)}')
                for d in range(2):
                    g(f'v_mov_b32_dpp {v(b + d)}, {v(b + 2 + d)} row_ror:8 row_mask:0xf bank_mask:0xc')
                for d in range(2):
                    g(f'v_mov_b32_dpp {v(b + 2 + d)}, {v(18 + d)} row_ror:8 row_mask:0xf bank_mask:0x3')
                hx = g(f'buffer_store_dwordx4 {v(b, 4)}, {v(16)}, {s(rWS, 4)}, {s(T0)} offen offset:{2048 * pr} sc1')
            else:
                g(f'v_mov_b64 {v(b + 2, 2)}, 0')
                for d in range(2):
                    g(f'v_mov_b32_dpp {v(b + 2 + d)}, {v(b + d)} row_ror:8 row_mask:0xf bank_mask:0x3')
                g.setexec(0x00ff00ff)
                hx = g(f'buffer_store_dwordx4 {v(b, 4)}, {v(16)}, {s(rWS, 4)}, {s(T1)} offen sc1')
                g.setexec(-1)
        g(f's_add_u32 {s(sDL)}, {s(sDL)}, 4096')
        g(f's_add_u32 {s(sDG)}, {s(sDG)}, 4096')
        g.dma(sDL, sDG, 8)
        g.fx_off(T0, T1)
        g.wait_vm(hx)
        g.flag_store(T0)
        g.stamp(21)
        g(f's_add_u32 {s(sDL)}, {s(sDL)}, 4096')
        g(f's_add_u32 {s(sDG)}, {s(sDG)}, 4096')
        g.dma(sDL, sDG, 7)
        if g.opt.stop == 'x3':
            g.branch('s_branch', 'L_fin')
        g(f's_mov_b32 {s(sLAY)}, 1')
        g(f's_mul_i32 {s(sXP)}, {s(sRB)}, 36864')
        g(f's_add_u32 {s(sXP)}, {s(sXP)}, {L.X3P}')
        g(f's_add_u32 {s(sOFB)}, {s(sOFB)}, {L.ARR}')
        g(f's_add_u32 {s(sKV1)}, {s(sKV1)}, {256 * 4096}')
        g(f's_add_u32 {s(sKV2)}, {s(sKV2)}, {16 * 4096}')
        g(f's_add_u32 {s(sFO)}, {s(sFO)}, {1024 * 128}')
        g(f'v_lshlrev_b32 {v(17)}, 7, {v(vI)}')
        g(f's_lshl_b32 {s(T0)}, {s(sRB)}, 11')
        g(f's_add_u32 {s(T0)}, {s(T0)}, {L.FX}')
        g.poll([(18, 1, 17, s(T0), 0)], 0xffff, 9)
        if g.opt.stamps:
            g(f'v_accvgpr_read_b32 v47, a255')
            g(f'v_accvgpr_write_b32 a254, v47')
        assert not g.vm and not g.lg
        g.branch('s_branch', 'L_layer')
        g.label('L_last')
        g.vm, g.lg = [], []
        for k in range(10):
            get(X1 + k, aKEEP + k)
        get(16, aOUT)
        for k in range(10):
            g.unpack(UX + 2 * k, UX + 2 * k + 1, X1 + k)
        for k in range(10):
            g(f'v_pk_add_f32 {v(A2 + 2 * k, 2)}, {v(A2 + 2 * k, 2)}, {v(UX + 2 * k, 2)}')
        for k in range(10):
            g(f'v_cvt_pk_bf16_f32 {v(X3 + k)}, {v(A2 + 2 * k)}, {v(A2 + 2 * k + 1)}')
        g(f'v_mov_b64 {v(X3 + 10, 2)}, 0')
        for pr in range(3):
            b = X3 + 4 * pr
            g(f'v_permlane16_swap_b32 {v(b)}, {v(b + 2)}')
            g(f'v_permlane16_swap_b32 {v(b + 1)}, {v(b + 3)}')
            if pr == 2:
                g.setexec(0xffff)
            g(f'buffer_store_dwordx4 {v(b, 4)}, {v(16)}, {s(rOUT, 4)}, 0 offen offset:{64 * pr}{" sc1" if g.opt.outsc1 else ""}')
        g.setexec(-1)
        g.stamp(22)
        g.stamp(31, True)

    def finish(self):
        g = self
        g.label('L_fin')
        g.vm, g.lg = [], []
        if g.opt.stamps:
            g(f's_lshl_b32 {s(T0)}, {s(sWG)}, 2')
            g(f's_add_u32 {s(T0)}, {s(T0)}, {s(sW)}')
            g(f's_lshl_b32 {s(T0)}, {s(T0)}, 8')
            g(f's_add_u32 {s(T0)}, {s(T0)}, {L.STAMP}')
            g('v_accvgpr_read_b32 v6, a255')
            g('v_accvgpr_read_b32 v7, a254')
            g(f'v_lshlrev_b32 v8, 2, {v(vLANE)}')
            g.setexec(0xffffffff)
            g(f'buffer_store_dword v6, v8, {s(rWS, 4)}, {s(T0)} offen offset:128')
            g(f'buffer_store_dword v7, v8, {s(rWS, 4)}, {s(T0)} offen')
            g.setexec(-1)
        g(f's_or_b32 {s(T0)}, {s(sWG)}, {s(sW)}')
        g(f's_cmp_lg_u32 {s(T0)}, 0')
        with g.skip_if('s_cbranch_scc1'):
            g(f's_mov_b32 {s(T0)}, {L.E}')
            g.flag_store(T0)
        g.label('L_end')
        g('s_endpgm')

    def build(self):
        g = self
        g.prologue()
        st = g.state()
        g(f's_cmp_ge_u32 {s(sWG)}, 208')
        g.branch('s_cbranch_scc1', 'L_role_w')
        g(f's_cmp_ge_u32 {s(sWG)}, 144')
        g.branch('s_cbranch_scc1', 'L_role_q')
        g.vtmp_stamp = 250
        g.role_conv()
        g.vtmp_stamp = 47
        stc, lf = g.state(), g.last_flag
        g.branch('s_cbranch_scc0', 'L_main')
        g.w_first_half()
        g.branch('s_branch', 'L_main')
        g.label('L_role_q')
        g.set_state(st)
        g.role_q()
        g.branch('s_branch', 'L_main_nc')
        g.label('L_role_w')
        g.set_state(st)
        g.role_w()
        g.vtmp_stamp = 47
        g.label('L_main_nc')
        g.vm, g.lg = [], []
        g.consts(0)
        g.clears()
        g.w_first_half()
        g.sentinel_wait()
        g.label('L_main')
        g.set_state(stc)
        g.last_flag = lf
        g.main()
        g.finish()


HEADER = '''; Persistent single-launch kernel: H3 long-conv (MFMA Hankel form) + two Hedgehog linear-attention layers.
; @launch grid=(256,1,1) block=(256,1,1) lds={lds}
.amdgcn_target "amdgcn-amd-amdhsa--gfx950"
.text
.globl {name}_kernel
.p2align 8
.type {name}_kernel,@function
{name}_kernel:
'''
FOOTER = '''.section .rodata,"a"
.p2align 6
.amdhsa_kernel {name}_kernel
  .amdhsa_next_free_vgpr 512
  .amdhsa_next_free_sgpr 102
  .amdhsa_accum_offset 256
  .amdhsa_group_segment_fixed_size 0
  .amdhsa_kernarg_size 104
  .amdhsa_user_sgpr_count 2
  .amdhsa_user_sgpr_kernarg_segment_ptr 1
  .amdhsa_system_sgpr_workgroup_id_x 1
  .amdhsa_float_denorm_mode_32 3
.end_amdhsa_kernel
'''


def generate(opt):
    k = K(opt)
    k.build()
    sys.stderr.write(f'instructions {k.stats["n"]} nop-states {k.stats["nop"]} maxv {k.maxv} maxa {k.maxa} maxs {k.maxs}\n')
    return HEADER.format(name=NAME, lds=L.LDS_SIZE) + k.text() + FOOTER.format(name=NAME)


if __name__ == '__main__':
    ap = argparse.ArgumentParser()
    ap.add_argument('-o', default=f'cdna_kernels/{NAME}.s')
    ap.add_argument('--stamps', action='store_true')
    ap.add_argument('--dbg', action='store_true')
    ap.add_argument('--stop', default='')
    ap.add_argument('--prewait', type=int, default=1)
    ap.add_argument('--sleep', type=int, default=0)
    ap.add_argument('--exp', default='')
    ap.add_argument('--outsc1', type=int, default=0)
    ap.add_argument('--h1at', type=int, default=11)
    ap.add_argument('--nw0', type=int, default=5)
    ap.add_argument('--nw1', type=int, default=8)
    ap.add_argument('--clear', type=int, default=1)
    ap.add_argument('--dmask', type=int, default=1)
    ap.add_argument('--dwho', default='qw')
    ap.add_argument('--sentinel', type=int, default=1)
    ap.add_argument('--wat', type=int, default=4)
    ap.add_argument('--npre', type=int, default=8)
    ap.add_argument('--np2', type=int, default=8)
    ap.add_argument('--wo_every', type=int, default=13)
    opt = ap.parse_args()
    open(opt.o, 'w').write(generate(opt))
```

```python
import sys
import argparse
from asmgen import Gen, v, a, s
import layout as L

NAME = 'interleave_layers__ssm_conv_h3__linear_kernel_hedgehog__prompt'

sWG, sW, sTAG = 2, 3, 4
T0, T1, T2, T3, T4, T5, T6, T7 = 5, 6, 7, 8, 9, 10, 11, 12
pQ, pK, pV, pSH, pSK, pSD, pBX, pWQ = 16, 18, 20, 22, 24, 26, 28, 30
pPH, pWO, pOUT, pDBG, pWS = 32, 34, 36, 38, 40
sCNT, sLAY = 42, 43
rWS, rA, rB, rC, rD, rOUT = 44, 48, 52, 56, 60, 64
sR128, sP, sR64, sCG, sRB, sRB2 = 68, 69, 70, 71, 72, 73
sM0, sM1, sM2, sM3 = 74, 76, 78, 80
sMA, sMB = 82, 84
sXP, sOFB, sKV1, sKV2, sFO = 86, 87, 88, 89, 90
sBL, sBG = 91, 92
sINC, sOB, sWB = 95, 96, 97
sFAST, sXCC = 13, 14
sSTP = 98
vTID, vLANE, vI, vG, vL16, vTAG = 0, 1, 2, 3, 4, 5
aSCW, aPA0, aPB, aKVS, aH1, aH2, aKT, aOA0, aOS, aOE = 200, 201, 204, 205, 206, 207, 208, 209, 212, 213
aX1, aSTP, aSTG, aX3, aOUT, aW4 = 214, 215, 216, 217, 218, 219
aKVS2, aH3, aWP, aKZ, aFC = 220, 221, 222, 223, 224
aKEEP = 240
aJUNK = 230
POLL_LIMIT = 40000
MASKHI = '0xffff0000'


class K(Gen):
    def __init__(self, opt):
        super().__init__()
        self.opt = opt
        self.nstamp = 0
        self.last_flag = None

    def srd(self, r, ptr, size):
        self(f's_mov_b64 {s(r, 2)}, {s(ptr, 2)}')
        self(f's_mov_b32 {s(r + 2)}, {size}')
        self(f's_mov_b32 {s(r + 3)}, 0x20000')

    def stamp(self, k, cyc=False):
        if not self.opt.stamps:
            return
        self(f's_memtime {s(sSTP, 2)}' if cyc else f's_memrealtime {s(sSTP, 2)}')
        self.drain(vm=False)
        self(f'v_accvgpr_read_b32 v{self.vtmp_stamp}, a255')
        self(f'v_writelane_b32 v{self.vtmp_stamp}, {s(sSTP)}, {k}')
        self(f'v_accvgpr_write_b32 a255, v{self.vtmp_stamp}')

    vtmp_stamp = 47

    def unpack(self, dlo, dhi, src):
        self(f'v_lshlrev_b32 {v(dlo)}, 16, {v(src)}')
        self(f'v_and_b32 {v(dhi)}, {MASKHI}, {v(src)}')

    def make_tag(self):
        self(f'v_readfirstlane_b32 {s(sTAG)}, {v(vTAG)}')
        self(f's_mul_i32 {s(sTAG)}, {s(sTAG)}, {hex(L.TAGA)}')
        self(f's_add_u32 {s(sTAG)}, {s(sTAG)}, {hex(L.TAGC)}')
        self(f's_or_b32 {s(sTAG)}, {s(sTAG)}, 1')
        self(f'v_mov_b32 {v(vTAG)}, {s(sTAG)}')

    def setexec(self, m):
        if isinstance(m, int):
            m &= (1 << 64) - 1
            lo, hi = m & 0xffffffff, m >> 32
            if m == (1 << 64) - 1:
                self('s_mov_b64 exec, -1')
            elif hi == 0 and lo <= 64:
                self(f's_mov_b64 exec, {lo}')
            else:
                self(f's_mov_b32 exec_lo, {hex(lo)}')
                self(f's_mov_b32 exec_hi, {hex(hi)}')
        else:
            self(f's_mov_b64 exec, {m}')

    def flag_store(self, soff):
        self.setexec(0xff)
        h = self(f'buffer_store_dwordx4 {v(vTAG - 3, 4)}, {v(vL16)}, {s(rWS, 4)}, {s(soff)} offen sc1')
        self.setexec(-1)
        self.last_flag = h
        return h

    def store_local(self, text):
        if not self.opt.fast:
            return self(text + ' sc1')
        l1, l2 = self.newlabel('far'), self.newlabel('join')
        self(f's_cmp_eq_u32 {s(sFAST)}, 0')
        self.branch('s_cbranch_scc1', l1)
        st = self.state()
        self(text)
        self.branch('s_branch', l2)
        self.label(l1)
        self.set_state(st)
        h = self(text + ' sc1')
        self.label(l2)
        return h

    def flag_local(self, soff):
        self.setexec(0xff)
        h = self.store_local(f'buffer_store_dwordx4 {v(vTAG - 3, 4)}, {v(vL16)}, {s(rWS, 4)}, {s(soff)} offen')
        self.setexec(-1)
        self.last_flag = h
        return h

    def hello(self):
        g = self
        if not g.opt.fast:
            return
        g(f's_getreg_b32 {s(sXCC)}, hwreg(HW_REG_XCC_ID, 0, 4)')
        g(f's_cmp_lg_u32 {s(sW)}, 0')
        with g.skip_if('s_cbranch_scc1'):
            g(f's_lshl_b32 {s(T0)}, {s(sR128)}, 4')
            g(f's_add_u32 {s(T0)}, {s(T0)}, {s(sP)}')
            g(f's_lshl_b32 {s(T0)}, {s(T0)}, 7')
            g(f's_add_u32 {s(T0)}, {s(T0)}, {L.FH}')
            g(f'v_mov_b32 {v(186)}, {s(sXCC)}')
            g(f'v_mov_b32 {v(187)}, {v(vTAG)}')
            g.setexec(0xff)
            g(f'buffer_store_dwordx4 {v(184, 4)}, {v(vL16)}, {s(rWS, 4)}, {s(T0)} offen sc1')
            g.setexec(-1)

    def poll(self, loads, mask, code):
        lp, done = self.newlabel('poll'), self.newlabel('polld')
        if self.opt.prewait:
            self.wait_vm(self.last_flag)
        self.setexec(mask)
        self(f's_mov_b32 {s(sCNT)}, {POLL_LIMIT}')
        self.label(lp)
        for dst, n, voff, soff, imm in loads:
            op = {1: 'buffer_load_dword', 4: 'buffer_load_dwordx4'}[n]
            imm += 12 if n == 1 else 0
            off = f' offset:{imm}' if imm else ''
            self(f'{op} {v(dst, n)}, {v(voff)}, {s(rWS, 4)}, {soff} offen{off} sc1')
        self.drain(lg=False)
        dst, n = loads[0][:2]
        self(f'v_cmp_ne_u32 vcc, {s(sTAG)}, {v(dst + n - 1)}')
        for dst, n, *_ in loads[1:]:
            self(f'v_cmp_ne_u32 {s(sMA, 2)}, {s(sTAG)}, {v(dst + n - 1)}')
            self(f's_or_b64 vcc, vcc, {s(sMA, 2)}')
        self.branch('s_cbranch_vccz', done)
        self('s_mov_b64 exec, vcc')
        if self.opt.sleep:
            self(f's_sleep {self.opt.sleep}')
        self(f's_sub_u32 {s(sCNT)}, {s(sCNT)}, 1')
        self.branch('s_cbranch_scc0', lp)
        if self.opt.dbg:
            self.srd(rD, pDBG, 256)
            self(f'v_mov_b32 v{self.vtmp_stamp}, {code + 1}')
            self(f'buffer_store_dword v{self.vtmp_stamp}, off, {s(rD, 4)}, 0 offset:{4 * code}')
            self.drain(lg=False)
        self.label(done)
        self.setexec(-1)

    def dma(self, lds_base_s, soff_s, n, voff=vL16, srd=rWS, sc1=True):
        h = None
        for i in range(n):
            if i % 4 == 0:
                if i:
                    self(f's_add_u32 {s(lds_base_s)}, {s(lds_base_s)}, 4096')
                    self(f's_add_u32 {s(soff_s)}, {s(soff_s)}, 4096')
                self(f's_mov_b32 m0, {s(lds_base_s)}')
            off = f' offset:{(i % 4) * 1024}' if i % 4 else ''
            h = self(f'buffer_load_dwordx4 {v(voff)}, {s(srd, 4)}, {s(soff_s)} offen{off}{" sc1" if sc1 else ""} lds')
        return h

    def dma_items(self, n, voff=vL16, srd=rWS, sc1=True, stride=4096, gate=None):
        def item(i):
            def f():
                if i % 4 == 0:
                    self(f's_mov_b32 m0, {s(sBL)}')
                off = f' offset:{(i % 4) * 1024}' if i % 4 else ''
                if gate is not None:
                    self.setexec(s(gate, 2))
                    self.cond_depth += 1
                self.last_dma = self(f'buffer_load_dwordx4 {v(voff)}, {s(srd, 4)}, {s(sBG)} offen{off}{" sc1" if sc1 else ""} lds')
                if gate is not None:
                    self.cond_depth -= 1
                    self.setexec(-1)
                if i % 4 == 3:
                    self(f's_add_u32 {s(sBL)}, {s(sBL)}, {stride}')
                    self(f's_add_u32 {s(sBG)}, {s(sBG)}, {stride}')
            return f
        return [item(i) for i in range(n)]

    def poll_issue(self, dst, voff, soff, mask):
        self.setexec(mask)
        self(f'buffer_load_dword {v(dst)}, {v(voff)}, {s(rWS, 4)}, {soff} offen offset:12 sc1')
        self.setexec(-1)

    def poll_finish(self, dst, voff, soff, mask, code, n=1):
        if mask != -1:
            self.setexec(mask)
        self(f'v_cmp_ne_u32 vcc, {s(sTAG)}, {v(dst + n - 1)}')
        if mask != -1:
            self.setexec(-1)
        with self.skip_if('s_cbranch_vccz'):
            self.poll([(dst, n, voff, soff, 0)], 'vcc', code)

    def xg_sum2(self, x, y, t):
        self(f'v_permlane16_swap_b32 {v(x)}, {v(y)}')
        self(f'v_add_f32 {v(x)}, {v(x)}, {v(y)}')
        self(f'v_mov_b32 {v(y)}, {v(x)}')
        self(f'v_permlane32_swap_b32 {v(x)}, {v(y)}')
        self(f'v_add_f32 {v(x)}, {v(x)}, {v(y)}')
        self(f'v_mov_b32 {v(y)}, {v(x)}')
        self(f'v_permlane16_swap_b32 {v(x)}, {v(y)}')

    def mfma(self, d, A, B, c):
        self(f'v_mfma_f32_16x16x32_bf16 {d}, {A}, {B}, {c}')

    def prologue(self):
        g = self
        g(f's_cmp_ge_u32 {s(sWG)}, 256')
        g.branch('s_cbranch_scc1', 'L_end')
        g(f's_load_dwordx16 {s(16, 16)}, s[0:1], 0')
        g(f's_load_dwordx8 {s(32, 8)}, s[0:1], 64')
        g(f's_load_dwordx2 {s(40, 2)}, s[0:1], 96')
        g(f'v_lshrrev_b32 v6, 6, {v(vTID)}')
        g(f'v_and_b32 {v(vLANE)}, 63, {v(vTID)}')
        g(f'v_readfirstlane_b32 {s(sW)}, v6')
        g(f'v_and_b32 {v(vI)}, 15, {v(vTID)}')
        g(f'v_lshrrev_b32 {v(vG)}, 4, {v(vLANE)}')
        g(f'v_lshlrev_b32 {v(vL16)}, 4, {v(vLANE)}')
        if g.opt.stamps:
            g('v_accvgpr_write_b32 a255, 0')
        g.srd(rWS, pWS, L.WSSZ)
        g(f'buffer_load_dword {v(vTAG)}, off, {s(rWS, 4)}, 0 offset:12 sc1')
        g.stamp(0)
        g.stamp(30, True)
        g(f's_and_b32 {s(T0)}, {s(sWG)}, 7')
        g(f's_lshr_b32 {s(T1)}, {s(sWG)}, 7')
        g(f's_lshl_b32 {s(T0)}, {s(T0)}, 1')
        g(f's_add_u32 {s(sR128)}, {s(T0)}, {s(T1)}')
        g(f's_bfe_u32 {s(sP)}, {s(sWG)}, 0x40003')
        g(f's_lshr_b32 {s(T0)}, {s(sP)}, 3')
        g(f's_lshl_b32 {s(sR64)}, {s(sR128)}, 1')
        g(f's_add_u32 {s(sR64)}, {s(sR64)}, {s(T0)}')
        g(f's_and_b32 {s(sCG)}, {s(sP)}, 7')
        g(f's_lshl_b32 {s(sRB)}, {s(sR128)}, 2')
        g(f's_add_u32 {s(sRB)}, {s(sRB)}, {s(sW)}')
        g(f's_lshr_b32 {s(T0)}, {s(sW)}, 1')
        g(f's_lshl_b32 {s(sRB2)}, {s(sR64)}, 1')
        g(f's_add_u32 {s(sRB2)}, {s(sRB2)}, {s(T0)}')
        g.srd(rOUT, pOUT, L.ARR)

    def role_conv(self):
        g = self
        vOK, vOA, vO2 = 6, 7, 48
        RK, RV, RW = 8, 30, 50
        UK, UW, UV, KS, OUT = 58, 102, 118, 150, 156
        sGam, sMu, sCh, sLB = T4, T5, T6, T7
        g.srd(rA, pK, L.ARR)
        g.srd(rB, pV, L.ARR)
        g.srd(rD, pSH, 576 * 8)
        g(f's_lshr_b32 {s(sGam)}, {s(sWG)}, 4')
        g(f's_and_b32 {s(sMu)}, {s(sWG)}, 15')
        g(f's_lshl_b32 {s(T0)}, {s(sMu)}, 7')
        g(f's_lshl_b32 {s(T1)}, {s(sW)}, 5')
        g(f's_add_u32 {s(T0)}, {s(T0)}, {s(T1)}')
        g(f's_mul_i32 {s(T1)}, {s(T0)}, 1152')
        g(f's_lshl_b32 {s(T2)}, {s(sGam)}, 7')
        g(f's_add_u32 {s(T1)}, {s(T1)}, {s(T2)}')
        g(f'v_mul_u32_u24 {v(vOK)}, 9216, {v(vG)}')
        g(f'v_lshl_add_u32 {v(vOK)}, {v(vI)}, 3, {v(vOK)}')
        g(f'v_add_u32 {v(vOK)}, {s(T1)}, {v(vOK)}')
        g(f'v_subrev_u32 {v(vOA)}, 3456, {v(vOK)}')
        g(f's_lshl_b32 {s(T2)}, {s(sGam)}, 9')
        g(f'v_lshlrev_b32 {v(vO2)}, 5, {v(vI)}')
        g(f's_movk_i32 {s(T3)}, 4608')
        g(f'buffer_load_dwordx4 {v(RW, 4)}, {v(vO2)}, {s(rD, 4)}, {s(T2)} offen')
        g(f'buffer_load_dwordx4 {v(RW + 4, 4)}, {v(vO2)}, {s(rD, 4)}, {s(T2)} offen offset:16')
        for j in range(11):
            if j < 3:
                g(f'buffer_load_dwordx2 {v(RK + 2 * j, 2)}, {v(vOA)}, {s(rA, 4)}, 0 offen offset:{1152 * j}')
            else:
                jj = j - 3
                so = '0' if jj < 4 else s(T3)
                g(f'buffer_load_dwordx2 {v(RK + 2 * j, 2)}, {v(vOK)}, {s(rA, 4)}, {so} offen offset:{1152 * (jj % 4)}')
        for j in range(8):
            so = '0' if j < 4 else s(T3)
            g(f'buffer_load_dwordx2 {v(RV + 2 * j, 2)}, {v(vOK)}, {s(rB, 4)}, {so} offen offset:{1152 * (j % 4)}')
        vK0, vDv, vS2 = 46, 172, 49
        g.srd(rC, pSK, L.ARR)
        g(f's_lshl_b32 {s(sCh)}, {s(sWG)}, 2')
        g(f's_add_u32 {s(sCh)}, {s(sCh)}, {s(sW)}')
        g(f's_mul_i32 {s(sLB)}, {s(sW)}, {L.CONVW}')
        g(f's_add_u32 {s(sLB)}, {s(sLB)}, {L.L_CONV}')
        g(f's_lshl_b32 {s(T2)}, {s(sCh)}, 12')
        g(f'v_lshlrev_b32 {v(vS2)}, 6, {v(vLANE)}')
        g(f'buffer_load_ushort {v(vK0)}, {v(vS2)}, {s(rC, 4)}, {s(T2)} offen')
        g.srd(rD, pSD, 1152)
        g(f's_lshl_b32 {s(T2)}, {s(sCh)}, 1')
        g(f'buffer_load_ushort {v(vDv)}, off, {s(rD, 4)}, {s(T2)}')
        g(f's_lshl_b32 {s(T2)}, {s(sCh)}, 7')
        g(f's_add_u32 {s(T2)}, {s(T2)}, {L.FT}')
        g.clear_line(T2)
        vOU = vOA
        g(f's_lshl_b32 {s(T2)}, {s(sGam)}, 18')
        g(f's_lshl_b32 {s(T0)}, {s(T0)}, 1')
        g(f's_sub_u32 {s(T2)}, {s(T2)}, {s(T0)}')
        g(f's_add_u32 {s(T2)}, {s(T2)}, {L.UR + 4080}')
        g(f'v_lshlrev_b32 {v(vOU)}, 14, {v(vI)}')
        g(f'v_lshlrev_b32 {v(vO2)}, 4, {v(vG)}')
        g(f'v_sub_u32 {v(vOU)}, {v(vOU)}, {v(vO2)}')
        g(f'v_add_u32 {v(vOU)}, {s(T2)}, {v(vOU)}')
        g.consts(180)
        for cc in range(4):
            for dd in range(2):
                b = UW + 8 * (cc >> 1) + (cc & 1)
                g.unpack(b + 4 * dd, b + 4 * dd + 2, RW + 2 * cc + dd)
        g.stamp(1)
        for j in range(11):
            for P in range(2):
                g.unpack(UK + 4 * j + 2 * P, UK + 4 * j + 2 * P + 1, RK + 2 * j + P)
        for j in range(8):
            for P in range(2):
                g.unpack(UV + 4 * j + 2 * P, UV + 4 * j + 2 * P + 1, RV + 2 * j + P)
            for P in range(2):
                g(f'v_pk_mul_f32 {v(KS + 2 * P, 2)}, {v(UK + 4 * (j + 3) + 2 * P, 2)}, {v(UW + 8 * P, 2)}')
            for aa in range(1, 4):
                for P in range(2):
                    g(f'v_pk_fma_f32 {v(KS + 2 * P, 2)}, {v(UK + 4 * (j + 3 - aa) + 2 * P, 2)}, {v(UW + 8 * P + 2 * aa, 2)}, {v(KS + 2 * P, 2)}')
            for P in range(2):
                g(f'v_pk_mul_f32 {v(UV + 4 * j + 2 * P, 2)}, {v(UV + 4 * j + 2 * P, 2)}, {v(KS + 2 * P, 2)}')
        for cc in range(4):
            for d in range(4):
                g(f'v_cvt_pk_bf16_f32 {v(OUT + 4 * cc + d)}, {v(UV + 4 * (7 - 2 * d) + cc)}, {v(UV + 4 * (6 - 2 * d) + cc)}')
            g(f's_movk_i32 {s(T2)}, {4096 * cc}')
            g(f'buffer_store_dwordx4 {v(OUT + 4 * cc, 4)}, {v(vOU)}, {s(rWS, 4)}, {s(T2)} offen sc1')
        g.make_tag()
        g(f's_lshl_b32 {s(T3)}, {s(sCh)}, 7')
        g(f's_add_u32 {s(T3)}, {s(T3)}, {L.FT}')
        g(f'v_add_u32 {v(vS2)}, 2, {v(vL16)}')
        g(f'v_readfirstlane_b32 {s(T1)}, {v(vK0)}')
        g.drain(lg=False)
        g.flag_store(T3)
        g.stamp(2)
        g(f's_lshl_b32 {s(T2)}, {s(sCh)}, 12')
        g(f's_add_u32 {s(T3)}, {s(sLB)}, {4608 + 32}')
        g.dma(T3, T2, 4, srd=rC, sc1=False)
        g(f's_add_u32 {s(T3)}, {s(sLB)}, {4608 + 4160 + 32}')
        hK = g.dma(T3, T2, 4, voff=vS2, srd=rC, sc1=False)
        g(f'v_mov_b32 {v(vK0)}, {s(T1)}')
        if g.opt.clear:
            g(f'v_mov_b64 {v(176, 2)}, 0')
            g(f'v_mov_b64 {v(178, 2)}, 0')
            g(f's_mul_i32 {s(T3)}, {s(sW)}, 144')
            g(f's_add_u32 {s(T3)}, {s(T3)}, {s(sWG)}')
            g(f's_lshl_b32 {s(T3)}, {s(T3)}, 7')
            g(f's_add_u32 {s(T3)}, {s(T3)}, {L.FC}')
            g.setexec(0xff)
            g(f'buffer_store_dwordx4 {v(176, 4)}, {v(vL16)}, {s(rWS, 4)}, {s(T3)} offen sc1')
            g.setexec(-1)
        g.clears()
        vT, vZ, vUB, vKA = 6, 8, 10, 12
        g(f'v_mov_b64 {v(vZ, 2)}, 0')
        g(f'v_lshl_add_u32 {v(vT)}, {v(vLANE)}, 3, {s(sLB)}')
        g(f'ds_write_b64 {v(vT)}, {v(vZ, 2)} offset:4096')
        g(f'v_and_b32 {v(vT)}, 7, {v(vLANE)}')
        g(f'v_lshrrev_b32 {v(vT + 1)}, 3, {v(vLANE)}')
        g(f'v_mul_u32_u24 {v(vT + 1)}, 4160, {v(vT + 1)}')
        g(f'v_lshl_add_u32 {v(vT)}, {v(vT)}, 2, {v(vT + 1)}')
        g(f'v_add_u32 {v(vT)}, {s(sLB)}, {v(vT)}')
        g(f'v_lshlrev_b32 {v(vK0)}, 16, {v(vK0)}')
        g(f'v_cmp_eq_u32 vcc, 15, {v(vLANE)}')
        g(f'v_cndmask_b32 {v(vK0)}, 0, {v(vK0)}, vcc')
        g.setexec(0xffff)
        g(f'ds_write_b32 {v(vT)}, {v(vK0)} offset:4608')
        g.setexec(-1)
        g(f'v_lshlrev_b32 {v(vT)}, 5, {v(vI)}')
        g(f'v_lshlrev_b32 {v(vT + 1)}, 4, {v(vG)}')
        g(f'v_sub_u32 {v(vUB)}, {v(vT + 1)}, {v(vT)}')
        g(f's_add_u32 {s(T2)}, {s(sLB)}, 480')
        g(f'v_add_u32 {v(vUB)}, {s(T2)}, {v(vUB)}')
        g(f'v_and_b32 {v(vT)}, 1, {v(vI)}')
        g(f'v_cmp_eq_u32 vcc, 1, {v(vT)}')
        g(f'v_mov_b32 {v(vKA + 1)}, 4160')
        g(f'v_cndmask_b32 {v(vKA)}, {v(vKA + 1)}, 2, vcc' if False else f'v_mov_b32 {v(vKA + 2)}, 2')
        g(f'v_cndmask_b32 {v(vKA)}, {v(vKA + 1)}, {v(vKA + 2)}, vcc')
        g(f'v_lshl_add_u32 {v(vKA)}, {v(vI)}, 1, {v(vKA)}')
        g(f'v_add_u32 {v(vKA)}, {v(vT + 1)}, {v(vKA)}')
        g(f's_add_u32 {s(T2)}, {s(sLB)}, 4608')
        g(f'v_add_u32 {v(vKA)}, {s(T2)}, {v(vKA)}')
        for b in range(1, 4):
            g(f'v_add_u32 {v(vKA + b)}, {1024 * b}, {v(vKA)}')

        def rdA(e, dst):
            b, ee = e >> 4, e & 15
            g(f'ds_read2_b32 {a(dst, 2)}, {v(vKA + b)} offset0:{16 * ee} offset1:{16 * ee + 1}')
            g(f'ds_read2_b32 {a(dst + 2, 2)}, {v(vKA + b)} offset0:{16 * ee + 2} offset1:{16 * ee + 3}')

        def rdB(m, rho, dst):
            g(f'ds_read_b128 {a(dst, 4)}, {v(vUB)} offset:{3584 - 512 * m + 64 * rho}')

        AS = lambda rho, aa: 64 * (rho & 1) + 4 * aa
        BS = lambda rho, m: 64 * (rho & 1) + 32 + 4 * m
        vAD = 16
        g(f'v_lshlrev_b32 {v(vT)}, 3, {v(vG)}')
        g(f'v_add_u32 {v(vT)}, {v(vT)}, {v(vI)}')
        g(f'v_sub_u32 {v(vT)}, 15, {v(vT)}')
        g(f'v_lshlrev_b32 {v(vT + 1)}, 16, {v(vDv)}')
        for d in range(4):
            g(f'v_cmp_eq_u32 vcc, {2 * d}, {v(vT)}')
            g(f'v_cndmask_b32 {v(vAD + d)}, 0, {v(vDv)}, vcc')
            g(f'v_cmp_eq_u32 vcc, {2 * d + 1}, {v(vT)}')
            g(f'v_cndmask_b32 {v(vAD + d)}, {v(vAD + d)}, {v(vT + 1)}, vcc')
        vF, vFO = 20, 21
        g(f'v_lshlrev_b32 {v(vFO)}, 7, {v(vLANE)}')
        g(f's_lshl_b32 {s(T2)}, {s(sGam)}, 13')
        g(f's_add_u32 {s(T2)}, {s(T2)}, {L.FT}')
        g.poll([(vF, 1, vFO, s(T2), 0)], -1, 0)
        g.stamp(3)
        g(f's_lshl_b32 {s(T2)}, {s(sCh)}, 12')
        g(f's_add_u32 {s(T2)}, {s(T2)}, {L.UR}')
        g(f's_mov_b32 {s(T3)}, {s(sLB)}')
        g.dma(T3, T2, 4)
        for aa in range(8):
            rdA(8 * aa, AS(0, aa))
        vPO, vYW, vYR = 22, 23, 24
        g(f's_mul_i32 {s(T2)}, {s(sW)}, {16 * 36864}')
        g(f's_lshl_b32 {s(T3)}, {s(sWG)}, 8')
        g(f's_add_u32 {s(T2)}, {s(T2)}, {s(T3)}')
        g(f'v_mul_u32_u24 {v(vPO)}, {2 * 36864}, {v(vG)}')
        g(f'v_lshl_add_u32 {v(vPO)}, {v(vI)}, 4, {v(vPO)}')
        g(f'v_add_u32 {v(vPO)}, {s(T2)}, {v(vPO)}')
        g(f'v_lshlrev_b32 {v(vYW)}, 5, {v(vI)}')
        g(f'v_lshl_add_u32 {v(vYW)}, {v(vG)}, 3, {v(vYW)}')
        g(f'v_add_u32 {v(vYW)}, {s(sLB)}, {v(vYW)}')
        g(f'v_bfe_u32 {v(vT)}, {v(vLANE)}, 2, 2')
        g(f'v_mul_u32_u24 {v(vYR)}, {L.CONVW}, {v(vT)}')
        g(f'v_and_b32 {v(vT)}, 3, {v(vLANE)}')
        g(f'v_lshl_add_u32 {v(vYR)}, {v(vT)}, 3, {v(vYR)}')
        g(f'v_lshl_add_u32 {v(vYR)}, {v(vG)}, 7, {v(vYR)}')
        g(f's_lshl_b32 {s(T2)}, {s(sW)}, 10')
        g(f's_add_u32 {s(T2)}, {s(T2)}, {L.L_CONV}')
        g(f'v_add_u32 {v(vYR)}, {s(T2)}, {v(vYR)}')
        g(f'v_lshlrev_b32 {v(vFO)}, 7, {v(vI)}')
        g(f's_lshl_b32 {s(T0)}, {s(sW)}, 11')
        g(f's_add_u32 {s(T0)}, {s(T0)}, {L.FQ}')
        vFW, vSO, vF2 = 25, 26, 27
        g(f's_lshl_b32 {s(T2)}, {s(sW)}, 12')
        g(f'v_lshlrev_b32 {v(vSO)}, 9, {v(vG)}')
        g(f'v_lshl_add_u32 {v(vSO)}, {v(vI)}, 4, {v(vSO)}')
        g(f'v_add_u32 {v(vSO)}, {s(T2)}, {v(vSO)}')
        g(f'v_min_u32 {v(vFW)}, 2, {v(vLANE)}')
        g(f'v_lshlrev_b32 {v(vFW)}, 11, {v(vFW)}')
        g(f's_lshl_b32 {s(T1)}, {s(sP)}, 7')
        g(f's_add_u32 {s(T1)}, {s(T1)}, {L.FW}')
        g.w_dma_setup()
        g.drain(lg=False)
        g.stamp(4)
        ACC = 32
        X0, N0 = 64, 80
        for m in range(8):
            rdB(m, 0, BS(0, m))
        for q in range(8):
            g.mfma(v(ACC + 4 * q, 4), v(vAD, 4), a(BS(0, q), 4), '0')
        for rho in range(8):
            nxt = []
            if rho < 7:
                for i in range(8):
                    nxt.append(lambda i=i: rdB(i, rho + 1, BS(rho + 1, i)))
                    nxt.append(lambda i=i: rdA(rho + 1 + 8 * i, AS(rho + 1, i)))
            if rho == 3:
                g.poll_issue(vF, vFO, s(T0), 0xffff)
            ext = []
            if rho >= 2:
                ext += [f'v_cmp_ne_u32 vcc, {s(sTAG)}, {v(vF2)}', 's_nop 0', 's_cmp_eq_u64 vcc, 0',
                        f's_cselect_b32 {s(sINC)}, 4096, 0\ns_cselect_b32 {s(sOB)}, {s(sWB)}, 0x7f000000']
            if 1 <= rho < 7:
                ext.append(f'buffer_load_dword {v(vF2)}, {v(vFW)}, {s(rWS, 4)}, {s(T1)} offen offset:12 sc1')
            if rho >= 2:
                for _ in range(g.opt.wcnt[rho - 2]):
                    ext += [f's_add_u32 {s(sBG)}, {s(sOB)}, {s(sBL)}', f's_mov_b32 m0, {s(sBL)}',
                            f's_add_u32 {s(sBL)}, {s(sBL)}, {s(sINC)}',
                            f'buffer_load_dwordx4 {v(vL16)}, {s(rWS, 4)}, {s(sBG)} offen sc1 lds']
            if rho == 5:
                g.poll_finish(vF, vFO, s(T0), 0xffff, 1)
                for j in range(4):
                    o = (8 * (j >> 1) + (j & 1)) * 36864
                    g(f's_mov_b32 {s(T2)}, {L.X0P + o}')
                    g(f'buffer_load_dwordx4 {v(X0 + 4 * j, 4)}, {v(vPO)}, {s(rWS, 4)}, {s(T2)} offen sc1')
                    g(f's_mov_b32 {s(T2)}, {L.N0P + o // 144}')
                    g(f'buffer_load_dwordx4 {v(N0 + 4 * j, 4)}, {v(vSO)}, {s(rWS, 4)}, {s(T2)} offen sc1')
            n = 0
            for aa in range(8):
                for q in range(aa, 8):
                    g.mfma(v(ACC + 4 * q, 4), a(AS(rho, aa), 4), a(BS(rho, q - aa), 4), v(ACC + 4 * q, 4))
                    if n % 2 == 0 and nxt:
                        nxt.pop(0)()
                    else:
                        for _ in range(2):
                            if ext:
                                g(ext.pop(0))
                    n += 1
            assert not nxt and not ext
        g.stamp(5)
        YP_, YG, TMP, XO = 96, 112, 128, 152
        for q in range(8):
            g(f'v_cvt_pk_bf16_f32 {v(YP_ + 2 * q)}, {v(ACC + 4 * q)}, {v(ACC + 4 * q + 1)}')
            g(f'v_cvt_pk_bf16_f32 {v(YP_ + 2 * q + 1)}, {v(ACC + 4 * q + 2)}, {v(ACC + 4 * q + 3)}')
            g(f'ds_write_b64 {v(vYW)}, {v(YP_ + 2 * q, 2)} offset:{512 * q}')
        U2 = 176

        def prep(j):
            for d in range(4):
                t = U2 + 16 * j + 4 * d
                g.unpack(t + 2, t + 3, X0 + 4 * j + d)
            for d in range(4):
                t = U2 + 16 * j + 4 * d
                c = N0 + 4 * j + 2 * (d >> 1)
                g(f'v_pk_fma_f32 {v(t, 2)}, {v(t + 2, 2)}, {v(c, 2)}, {v(c, 2)} op_sel:[0,0,1] op_sel_hi:[1,0,1]')
        prep(0)
        prep(1)
        g.barrier()
        for j in range(4):
            o = (8 * (j >> 1) + (j & 1)) * 64
            g(f'ds_read_b64_tr_b16 {v(YG + 4 * j, 2)}, {v(vYR)} offset:{o}')
            g(f'ds_read_b64_tr_b16 {v(YG + 4 * j + 2, 2)}, {v(vYR)} offset:{o + 32}')
        prep(2)
        prep(3)
        for j in range(4):
            o = (8 * (j >> 1) + (j & 1)) * 36864
            for d in range(4):
                g.unpack(TMP + 2 * d, TMP + 2 * d + 1, YG + 4 * j + d)
            for d in range(4):
                t = U2 + 16 * j + 4 * d
                g(f'v_pk_fma_f32 {v(t, 2)}, {v(TMP + 2 * d, 2)}, {v(t, 2)}, {v(t + 2, 2)}')
            for d in range(4):
                t = U2 + 16 * j + 4 * d
                g(f'v_cvt_pk_bf16_f32 {v(XO + 4 * j + d)}, {v(t)}, {v(t + 1)}')
            g(f's_mov_b32 {s(T2)}, {L.X1P + o}')
            hx = g(f'buffer_store_dwordx4 {v(XO + 4 * j, 4)}, {v(vPO)}, {s(rWS, 4)}, {s(T2)} offen sc1')
        g(f's_mul_i32 {s(T3)}, {s(sW)}, 144')
        g(f's_add_u32 {s(T3)}, {s(T3)}, {s(sWG)}')
        g(f's_lshl_b32 {s(T3)}, {s(T3)}, 7')
        g(f's_add_u32 {s(T3)}, {s(T3)}, {L.FC}')
        g.wait_vm(hx)
        g.flag_store(T3)
        g.stamp(6)
        lf = g.last_flag
        if g.opt.sentinel:
            g(f's_lshl_b32 {s(T3)}, {s(sWG)}, 2')
            g(f's_add_u32 {s(T3)}, {s(T3)}, {s(sW)}')
            g(f's_and_b32 {s(T2)}, {s(T3)}, 0xffffffe3')
            g(f's_cmp_lg_u32 {s(T2)}, 0')
            with g.skip_if('s_cbranch_scc1'):
                g(f's_lshl_b32 {s(T3)}, {s(sWG)}, 7')
                g(f's_add_u32 {s(T3)}, {s(T3)}, {L.FS_}')
                g.flag_store(T3)
        g.last_flag = lf
        for j in range(4):
            o = (8 * (j >> 1) + (j & 1)) * 36864
            g(f's_mov_b32 {s(T2)}, {L.YP + o}')
            g(f'buffer_store_dwordx4 {v(YG + 4 * j, 4)}, {v(vPO)}, {s(rWS, 4)}, {s(T2)} offen sc1')
        g.barrier()
        g(f's_cmp_eq_u32 {s(sINC)}, 0')

    def wperm(self, d, t):
        g = self
        g(f'v_and_b32 {v(t)}, 3, {v(vI)}')
        g(f'v_lshlrev_b32 {v(d)}, 8, {v(vG)}')
        g(f'v_lshl_add_u32 {v(d)}, {v(t)}, 6, {v(d)}')
        g(f'v_lshrrev_b32 {v(t)}, 2, {v(vI)}')
        g(f'v_lshl_add_u32 {v(d)}, {v(t)}, 4, {v(d)}')

    def fx_off(self, d, t):
        g = self
        g(f's_lshl_b32 {s(d)}, {s(sRB2)}, 4')
        g(f's_lshl_b32 {s(t)}, {s(sCG)}, 1')
        g(f's_add_u32 {s(d)}, {s(d)}, {s(t)}')
        g(f's_and_b32 {s(t)}, {s(sW)}, 1')
        g(f's_add_u32 {s(d)}, {s(d)}, {s(t)}')
        g(f's_lshl_b32 {s(d)}, {s(d)}, 7')
        g(f's_add_u32 {s(d)}, {s(d)}, {L.FX}')

    def clear_line(self, soff, z=None):
        g = self
        if not g.opt.clear:
            return
        z = 248 if z is None else z
        g(f'v_mov_b64 {v(z, 2)}, 0')
        g(f'v_mov_b64 {v(z + 2, 2)}, 0')
        g.setexec(0xff)
        g(f'buffer_store_dwordx4 {v(z, 4)}, {v(vL16)}, {s(rWS, 4)}, {s(soff)} offen sc1')
        g.setexec(-1)

    def delay_start(self):
        g = self
        if 'delay' in g.opt.exp:
            g.make_tag()
            g(f'v_lshlrev_b32 {v(6)}, 7, {v(vLANE)}')
            g(f's_and_b32 {s(T0)}, {s(sWG)}, 7')
            g(f's_lshl_b32 {s(T0)}, {s(T0)}, 13')
            g(f's_add_u32 {s(T0)}, {s(T0)}, {L.FT}')
            g.poll([(7, 1, 6, s(T0), 0)], g.opt.dmask, 10)
            g.make_tag = lambda: None

    def w_dma_setup(self):
        g = self
        g(f's_lshl_b32 {s(sBL)}, {s(sW)}, 10')
        g(f's_mul_i32 {s(sWB)}, {s(sP)}, {L.WPSZ}')
        g(f's_add_u32 {s(sWB)}, {s(sWB)}, {L.WP}')

    def w_wait(self):
        g = self
        vT = 6
        g(f'v_lshlrev_b32 {v(vT)}, 11, {v(vLANE)}')
        g(f's_lshl_b32 {s(T0)}, {s(sP)}, 7')
        g(f's_add_u32 {s(T0)}, {s(T0)}, {L.FW}')
        g.poll([(vT + 1, 1, vT, s(T0), 0)], 7, 2)

    def w_rest(self):
        g = self
        lp = g.newlabel('wrest')
        g.label(lp)
        g.cond_depth += 1
        g(f's_add_u32 {s(sBG)}, {s(sWB)}, {s(sBL)}')
        g(f's_mov_b32 m0, {s(sBL)}')
        g(f's_add_u32 {s(sBL)}, {s(sBL)}, 4096')
        g(f'buffer_load_dwordx4 {v(vL16)}, {s(rWS, 4)}, {s(sBG)} offen sc1 lds')
        g.cond_depth -= 1
        g(f's_cmp_lt_u32 {s(sBL)}, 0x20000')
        g.branch('s_cbranch_scc1', lp)

    def sentinel_wait(self):
        g = self
        if g.opt.sentinel:
            g(f's_and_b32 {s(T0)}, {s(sWG)}, 7')
            g(f's_lshl_b32 {s(T0)}, {s(T0)}, 7')
            g(f's_add_u32 {s(T0)}, {s(T0)}, {L.FS_}')
            g(f'v_mov_b32 {v(6)}, 0')
            g.poll([(7, 1, 6, s(T0), 0)], 1, 11)

    def role_q(self):
        g = self
        sJ = T7
        vO, vT = 6, 8
        R = 16
        g.srd(rA, pQ, L.ARR)
        g.srd(rB, pWO, 576 * 1152)
        g(f's_sub_u32 {s(sJ)}, {s(sWG)}, 144')
        g(f's_lshl_b32 {s(T0)}, {s(sJ)}, 7')
        g(f's_add_u32 {s(T1)}, {s(T0)}, {L.FWO}')
        g(f's_add_u32 {s(T0)}, {s(T0)}, {L.FQ}')
        g(f's_cmp_eq_u32 {s(sW)}, 0')
        g(f's_cselect_b32 {s(T0)}, {s(T0)}, {s(T1)}')
        g(f's_cmp_ge_u32 {s(sW)}, 2')
        with g.skip_if('s_cbranch_scc1'):
            g.clear_line(T0)
        mt = g.make_tag
        g.delay_start()
        LQ = 16384
        g(f's_mul_i32 {s(T0)}, {s(sJ)}, {32 * 1152}')
        g(f's_mul_i32 {s(T1)}, {s(sW)}, 640')
        for i in range(10):
            g(f'v_add_u32 {v(vT)}, {s(T1)}, {v(vLANE)}')
            g(f'v_mul_u32_u24 {v(vT + 1)}, 3592, {v(vT)}')
            g(f'v_lshrrev_b32 {v(vT + 1)}, 18, {v(vT + 1)}')
            g(f'v_sub_u32 {v(vT)}, {v(vT)}, {v(vT + 1)}')
            g(f'v_lshlrev_b32 {v(vT)}, 4, {v(vT)}')
            g(f's_lshl_b32 {s(T2)}, {s(T1)}, 4')
            g(f's_add_u32 {s(T2)}, {s(T2)}, {LQ}')
            g(f's_mov_b32 m0, {s(T2)}')
            g(f's_add_u32 {s(T1)}, {s(T1)}, 64')
            hq = g(f'buffer_load_dwordx4 {v(vT)}, {s(rA, 4)}, {s(T0)} offen lds')
        sPp, sCq = T5, T6
        g(f's_and_b32 {s(sPp)}, {s(sJ)}, 15')
        g(f's_lshr_b32 {s(sCq)}, {s(sJ)}, 4')
        g(f's_mul_i32 {s(T0)}, {s(sPp)}, {36 * 1152}')
        g(f's_mul_i32 {s(T1)}, {s(sCq)}, 288')
        g(f's_add_u32 {s(T0)}, {s(T0)}, {s(T1)}')
        g(f's_mul_i32 {s(T1)}, {s(sW)}, 192')
        for i in range(3):
            g(f'v_add_u32 {v(vT)}, {s(T1)}, {v(vLANE)}')
            if i:
                g(f'v_add_u32 {v(vT)}, {64 * i}, {v(vT)}')
            g(f'v_mul_u32_u24 {v(vT + 1)}, 3641, {v(vT)}')
            g(f'v_lshrrev_b32 {v(vT + 1)}, 16, {v(vT + 1)}')
            g(f'v_mul_u32_u24 {v(vT + 1)}, {1152 - 288}, {v(vT + 1)}')
            g(f'v_lshl_add_u32 {v(vT)}, {v(vT)}, 4, {v(vT + 1)}')
            g(f's_lshl_b32 {s(T2)}, {s(T1)}, 4')
            g(f's_add_u32 {s(T2)}, {s(T2)}, {1024 * i}')
            g(f's_mov_b32 m0, {s(T2)}')
            g(f'buffer_load_dwordx4 {v(vT)}, {s(rB, 4)}, {s(T0)} offen lds')
        g(f's_mul_i32 {s(T0)}, {s(sJ)}, 36864')
        g(f's_lshl_b32 {s(T1)}, {s(sW)}, 11')
        g(f's_add_u32 {s(T0)}, {s(T0)}, {s(T1)}')
        g(f'v_lshlrev_b32 {v(vO)}, 9, {v(vG)}')
        g(f'v_lshl_add_u32 {v(vO)}, {v(vI)}, 4, {v(vO)}')
        g(f'v_add_u32 {v(vO)}, {s(T0)}, {v(vO)}')
        g(f's_cmp_lt_u32 {s(sW)}, 2')
        g(f's_cselect_b32 {s(T2)}, 0, 0x40000000')
        g(f's_cselect_b32 {s(T4)}, -1, 0')
        g(f'v_add_u32 {v(vO + 1)}, {s(T2)}, {v(vO)}')
        g(f's_lshl_b32 {s(T1)}, {s(sW)}, 6')
        g(f's_add_u32 {s(T1)}, {s(T1)}, {LQ}')
        g(f'v_mul_u32_u24 {v(vT)}, 1168, {v(vI)}')
        g(f'v_lshl_add_u32 {v(vT)}, {v(vG)}, 4, {v(vT)}')
        g(f'v_add_u32 {v(vT)}, {s(T1)}, {v(vT)}')
        S_ = 56
        g(f'v_mov_b64 {v(S_, 2)}, 0')
        g(f'v_mov_b64 {v(S_ + 2, 2)}, 0')
        g.make_tag()
        g.wait_vm(hq)
        g.barrier()
        for aa in range(5):
            for hh in range(2):
                g(f'ds_read_b128 {v(R + 8 * aa + 4 * hh, 4)}, {v(vT)} offset:{256 * aa + 16 * 1168 * hh}')
        g(f's_mov_b32 {s(T2)}, 0x3f803f80')
        for aa in range(5):
            r = R + 8 * aa
            if aa == 4:
                for d in range(8):
                    g(f'v_and_b32 {v(r + d)}, {s(T4)}, {v(r + d)}')
            g(f'v_swap_b32 {v(r + 2)}, {v(r + 4)}')
            g(f'v_swap_b32 {v(r + 3)}, {v(r + 5)}')
            g(f's_mov_b32 {s(T3)}, {L.X0P + 8192 * aa}')
            for qq in range(2):
                g(f'buffer_store_dwordx4 {v(r + 4 * qq, 4)}, {v(vO + (aa == 4))}, {s(rWS, 4)}, {s(T3)} offen offset:{256 * qq} sc1')
            for d in range(8):
                hh = (d >> 1) & 1
                g(f'v_dot2c_f32_bf16 {v(S_ + 2 * hh)}, {s(T2)}, {v(r + d)}')
                g(f'v_dot2c_f32_bf16 {v(S_ + 2 * hh + 1)}, {v(r + d)}, {v(r + d)}')
        g('s_nop 2')
        g.xg_sum2(S_, S_ + 1, vT)
        g.xg_sum2(S_ + 2, S_ + 3, vT)
        LS = 13312
        g(f's_lshl_b32 {s(T2)}, {s(sW)}, 8')
        g(f'v_lshl_add_u32 {v(vT)}, {v(vI)}, 4, {s(T2)}')
        g(f'ds_write_b128 {v(vT)}, {v(S_, 4)} offset:{LS}')
        g.barrier()
        g(f's_cmp_lg_u32 {s(sW)}, 0')
        with g.skip_if('s_cbranch_scc1'):
            g(f'v_lshlrev_b32 {v(vT)}, 4, {v(vI)}')
            P_ = 60
            for w in range(4):
                g(f'ds_read_b128 {v(P_ + 4 * w, 4)}, {v(vT)} offset:{LS + 256 * w}')
            for h2 in range(2):
                g(f'v_pk_add_f32 {v(P_ + 2 * h2, 2)}, {v(P_ + 2 * h2, 2)}, {v(P_ + 4 + 2 * h2, 2)}')
                g(f'v_pk_add_f32 {v(P_ + 8 + 2 * h2, 2)}, {v(P_ + 8 + 2 * h2, 2)}, {v(P_ + 12 + 2 * h2, 2)}')
                g(f'v_pk_add_f32 {v(P_ + 2 * h2, 2)}, {v(P_ + 2 * h2, 2)}, {v(P_ + 8 + 2 * h2, 2)}')
            RS = 76
            for hh in range(2):
                self.ln_coef(P_ + 2 * hh, P_ + 2 * hh + 1, RS + 2 * hh, RS + 2 * hh + 1)
            g(f's_lshl_b32 {s(T2)}, {s(sJ)}, 8')
            g(f's_add_u32 {s(T2)}, {s(T2)}, {L.N0P}')
            g.setexec(0xffff)
            g(f'buffer_store_dwordx4 {v(RS, 4)}, {v(vL16)}, {s(rWS, 4)}, {s(T2)} offen sc1')
            g.setexec(-1)
        g(f's_lshl_b32 {s(T3)}, {s(sJ)}, 7')
        g(f's_add_u32 {s(T3)}, {s(T3)}, {L.FQ}')
        g.drain(force=True)
        g.barrier()
        g(f's_cmp_lg_u32 {s(sW)}, 0')
        with g.skip_if('s_cbranch_scc1'):
            g.flag_store(T3)
        g.stamp(2)
        vA, vA2, vD_ = 8, 9, 10
        g(f'v_lshrrev_b32 {v(vT + 4)}, 1, {v(vG)}')
        g(f'v_mul_u32_u24 {v(vT + 4)}, 2, {v(vT + 4)}')
        g(f'v_lshl_add_u32 {v(vT + 4)}, {v(vG)}, 3, {v(vT + 4)}')
        g(f'v_bfe_u32 {v(vT + 5)}, {v(vLANE)}, 2, 2')
        g(f'v_add_u32 {v(vT + 4)}, {v(vT + 4)}, {v(vT + 5)}')
        g(f'v_mul_u32_u24 {v(vT + 4)}, 288, {v(vT + 4)}')
        g(f'v_and_b32 {v(vT + 6)}, 3, {v(vLANE)}')
        g(f'v_lshl_add_u32 {v(vT + 4)}, {v(vT + 6)}, 3, {v(vT + 4)}')
        g(f'v_lshrrev_b32 {v(vT + 7)}, 1, {v(vT + 5)}')
        g(f'v_mul_u32_u24 {v(vT + 7)}, 16, {v(vT + 7)}')
        g(f'v_add_u32 {v(vT + 7)}, {v(vT + 7)}, {v(vT + 5)}')
        g(f'v_add_u32 {v(vT + 7)}, 16, {v(vT + 7)}')
        g(f'v_mul_u32_u24 {v(vT + 7)}, 288, {v(vT + 7)}')
        g(f'v_lshl_add_u32 {v(vT + 7)}, {v(vT + 6)}, 3, {v(vT + 7)}')
        vM, vE = vT + 4, vT + 7
        vD4 = 17
        g(f'v_and_b32 {v(16)}, 7, {v(vI)}')
        g(f'v_lshlrev_b32 {v(16)}, 4, {v(16)}')
        g(f'v_lshl_add_u32 {v(vD4)}, {v(vG)}, 7, {v(16)}')
        g(f's_mul_i32 {s(T0)}, {s(sCq)}, {2 * L.WOSZ}')
        g(f's_add_u32 {s(T0)}, {s(T0)}, {L.WOF}')
        g(f's_mul_i32 {s(T1)}, {s(sPp)}, 4608')
        g(f's_add_u32 {s(T1)}, {s(T1)}, {s(T0)}')
        g(f's_lshr_b32 {s(T2)}, {s(sPp)}, 3')
        g(f's_add_u32 {s(T2)}, {s(T2)}, 16')
        g(f's_mul_i32 {s(T2)}, {s(T2)}, 4608')
        g(f's_add_u32 {s(T0)}, {s(T0)}, {s(T2)}')
        g(f's_and_b32 {s(T2)}, {s(sPp)}, 1')
        g(f's_lshl_b32 {s(T2)}, {s(T2)}, 3')
        g(f's_add_u32 {s(T0)}, {s(T0)}, {s(T2)}')
        g(f's_bfe_u32 {s(T4)}, {s(sPp)}, 0x20001')
        for w in range(4):
            lab = g.newlabel('wo')
            g(f's_cmp_lg_u32 {s(sW)}, {w}')
            with g.skip_if('s_cbranch_scc1'):
                for idx in range(w, 10, 4):
                    cgl, T = divmod(idx, 5)
                    co = cgl * 144 + T * 32
                    g(f'ds_read_b64_tr_b16 {v(20, 2)}, {v(vM)} offset:{co}')
                    g(f'ds_read_b64_tr_b16 {v(22, 2)}, {v(vM)} offset:{co + 4 * 288}')
                    g(f'ds_read_b64_tr_b16 {v(24, 2)}, {v(vE)} offset:{co}')
                    g(f's_add_u32 {s(T2)}, {s(T1)}, {cgl * L.WOSZ + T * 1024}')
                    g(f's_lshl_b32 {s(T3)}, {s(T4)}, {8 if T < 4 else 7}')
                    g(f's_add_u32 {s(T3)}, {s(T3)}, {s(T0)}')
                    g(f's_add_u32 {s(T3)}, {s(T3)}, {cgl * L.WOSZ + T * 1024}')
                    g(f'v_lshlrev_b32 {v(18)}, 4, {v(vI)}')
                    g.drain(vm=False)
                    if T == 4:
                        g.setexec(0x00ff00ff00ff00ff)
                    g(f'buffer_store_dwordx4 {v(20, 4)}, {v(vL16 if T < 4 else vD4)}, {s(rWS, 4)}, {s(T2)} offen sc1')
                    g.setexec(0xffff if T < 4 else 0xff)
                    g(f'buffer_store_dwordx2 {v(24, 2)}, {v(18)}, {s(rWS, 4)}, {s(T3)} offen sc1')
                    g.setexec(-1)
                    g('s_nop 1')
        g(f's_lshl_b32 {s(T3)}, {s(sJ)}, 7')
        g(f's_add_u32 {s(T3)}, {s(T3)}, {L.FWO}')
        g.drain(force=True)
        g.barrier()
        g(f's_cmp_lg_u32 {s(sW)}, 0')
        with g.skip_if('s_cbranch_scc1'):
            g.flag_store(T3)
        g.stamp(6)
        g.make_tag = mt

    def ln_coef(self, vS, vQ, vRS, vB):
        g = self
        inv = '0x3ae38e39'
        g(f'v_mul_f32 {v(vS)}, {inv}, {v(vS)}')
        g(f'v_mul_f32 {v(vQ)}, {inv}, {v(vQ)}')
        g(f'v_fma_f32 {v(vQ)}, -{v(vS)}, {v(vS)}, {v(vQ)}')
        g(f'v_max_f32 {v(vQ)}, 0, {v(vQ)}')
        g(f'v_add_f32 {v(vQ)}, 0x3727c5ac, {v(vQ)}')
        g(f'v_rsq_f32 {v(vRS)}, {v(vQ)}')
        if vB is not None:
            g(f'v_mul_f32 {v(vB)}, {v(vS)}, {v(vRS)}')
            g(f'v_sub_f32 {v(vB)}, 0, {v(vB)}')

    def role_w(self):
        g = self
        sU, sPp, sPart = T7, T6, T5
        vO, vT = 6, 8
        RA = 16
        BV, BF = 96, 108
        ACC = 132
        g.srd(rA, pWQ, 576 * 3456)
        g.srd(rB, pPH, 32 * 648)
        g(f's_sub_u32 {s(sU)}, {s(sWG)}, 208')
        g(f's_lshl_b32 {s(T0)}, {s(sU)}, 7')
        g(f's_add_u32 {s(T0)}, {s(T0)}, {L.FW}')
        g(f's_cmp_lg_u32 {s(sW)}, 0')
        with g.skip_if('s_cbranch_scc1'):
            g.clear_line(T0, 252)
        if 'w' in g.opt.dwho:
            g.delay_start()
        g(f's_and_b32 {s(sPp)}, {s(sU)}, 15')
        g(f's_lshr_b32 {s(sPart)}, {s(sU)}, 4')
        g(f's_add_u32 {s(T0)}, {s(sPart)}, 1')
        g(f's_cmp_eq_u32 {s(sPart)}, 2')
        g(f's_cselect_b32 {s(T0)}, 0, {s(T0)}')
        g(f's_mul_i32 {s(T0)}, {s(T0)}, 1152')
        g(f's_mul_i32 {s(T1)}, {s(sPp)}, 72')
        g(f's_add_u32 {s(T0)}, {s(T0)}, {s(T1)}')
        g.vtmp_stamp = 255
        sLP, sLW = 93, 94
        g(f's_lshl_b32 {s(sLP)}, {s(sW)}, 11')
        g(f's_add_u32 {s(sLP)}, {s(sLP)}, 2048')
        g(f's_mul_i32 {s(sLW)}, {s(sW)}, {5 * 3072}')
        g(f's_add_u32 {s(sLW)}, {s(sLW)}, 12288')
        g(f's_cmp_eq_u32 {s(sPart)}, 1')
        hphi = None
        with g.skip_if('s_cbranch_scc1'):
            g(f's_mul_i32 {s(T2)}, {s(sPp)}, 1296')
            g(f's_mov_b32 m0, {s(sLP)}')
            g(f'buffer_load_dwordx4 {v(vL16)}, {s(rB, 4)}, {s(T2)} offen lds')
            hphi = g(f'buffer_load_dwordx4 {v(vL16)}, {s(rB, 4)}, {s(T2)} offen offset:1024 lds')
        vS = 13
        for i in range(3):
            g(f'v_add_u32 {v(vT)}, {64 * i}, {v(vLANE)}')
            g(f'v_mul_u32_u24 {v(vT + 1)}, 43691, {v(vT)}')
            g(f'v_lshrrev_b32 {v(vT + 2)}, 17, {v(vT + 1)}')
            g(f'v_lshrrev_b32 {v(vT + 1)}, 18, {v(vT + 1)}')
            g(f'v_mul_u32_u24 {v(vT + 1)}, {3456 - 72}, {v(vT + 1)}')
            g(f'v_lshl_add_u32 {v(vT)}, {v(vT)}, 4, {v(vT + 1)}')
            g(f'v_mul_u32_u24 {v(vT + 2)}, 12, {v(vT + 2)}')
            g(f'v_sub_u32 {v(vS + i)}, {v(vT)}, {v(vT + 2)}')
        g(f's_mul_i32 {s(T1)}, {s(sW)}, {32 * 3456}')
        g(f's_add_u32 {s(T0)}, {s(T0)}, {s(T1)}')
        g(f's_mov_b32 {s(T2)}, {s(sLW)}')
        hs = []
        for kk in range(5):
            for i in range(3):
                g(f's_mov_b32 m0, {s(T2)}')
                g(f's_add_u32 {s(T2)}, {s(T2)}, 1024')
                h = g(f'buffer_load_dwordx4 {v(vS + i)}, {s(rA, 4)}, {s(T0)} offen lds')
            hs.append(h)
            g(f's_add_u32 {s(T0)}, {s(T0)}, {128 * 3456}')
        g.stamp(1)
        g(f's_cmp_lg_u32 {s(sPart)}, 1')
        with g.skip_if('s_cbranch_scc1'):
            g(f'v_mov_b64 {v(16, 2)}, 0')
            g(f'v_mov_b64 {v(18, 2)}, 0')
            g(f'v_add_u32 {v(vT)}, {s(sLP)}, {v(vL16)}')
            g(f'ds_write_b128 {v(vT)}, {v(16, 4)}')
            g(f'ds_write_b128 {v(vT)}, {v(16, 4)} offset:1024')
            g(f'v_mul_u32_u24 {v(vT)}, 38, {v(vLANE)}')
            g(f'v_add_u32 {v(vT)}, {s(sLP)}, {v(vT)}')
            g(f'v_mov_b32 {v(16)}, 0x3f80')
            g.setexec((1 << 18) - 1)
            g(f'ds_write_b16 {v(vT)}, {v(16)}')
            g(f'ds_write_b16 {v(vT)}, {v(16)} offset:648')
            g.setexec(-1)
        g(f'v_min_u32 {v(vT)}, 2, {v(vG)}')
        g(f'v_mul_u32_u24 {v(vO)}, 96, {v(vI)}')
        g(f'v_lshl_add_u32 {v(vO)}, {v(vT)}, 4, {v(vO)}')
        g(f'v_add_u32 {v(vO)}, {s(sLW)}, {v(vO)}')
        g(f's_lshl_b32 {s(T1)}, 1, {s(sPart)}')
        g(f's_sub_u32 {s(T1)}, {s(T1)}, 1')
        vF9, vHF, vHD, vPB = 9, 10, 11, 12
        g(f'v_and_b32 {v(vF9)}, 3, {v(vI)}')
        g(f'v_subrev_u32 {v(vF9)}, {s(T1)}, {v(vF9)}')
        g(f'v_bfe_u32 {v(vHF)}, {v(vI)}, 2, 1')
        g(f'v_lshrrev_b32 {v(vHD)}, 3, {v(vI)}')
        g(f'v_mul_u32_u24 {v(vPB)}, 648, {v(vHD)}')
        g(f'v_mul_u32_u24 {v(vT)}, 288, {v(vG)}')
        g(f'v_add3_u32 {v(vPB)}, {v(vPB)}, {v(vT)}, {s(sLP)}')
        g(f'v_mad_u32_u24 {v(vPB)}, {v(vHF)}, 18, {v(vPB)}')
        g(f'v_lshl_add_u32 {v(vPB)}, {v(vF9)}, 1, {v(vPB)}')
        masks = [sM0, sM1, sM2]
        for Tp in range(3):
            g(f'v_add_u32 {v(vT)}, {4 * Tp}, {v(vF9)}')
            g(f'v_cmp_gt_u32 {s(masks[Tp], 2)}, 9, {v(vT)}')
        for d in range(12):
            g(f'v_mov_b64 {v(ACC + 2 * d, 2)}, 0')
        g(f's_mul_i32 {s(T0)}, {s(sPp)}, {L.WPSZ}')
        g(f's_add_u32 {s(T0)}, {s(T0)}, {L.WP}')
        bases, steps = [T1, T2, T3], [T4, 13, 14]
        for Tp in range(3):
            g(f's_lshl_b32 {s(15)}, {s(sPart)}, 1')
            g(f's_add_u32 {s(15)}, {s(15)}, {Tp}')
            g(f's_lshl_b32 {s(bases[Tp])}, {s(15)}, 10')
            g(f's_cmp_lt_u32 {s(15)}, 5')
            g(f's_cselect_b32 {s(steps[Tp])}, 3072, 0')
            g(f's_cselect_b32 {s(15)}, 0, {L.L_P2 - 5120}')
            g(f's_add_u32 {s(steps[Tp])}, {s(steps[Tp])}, 2048')
            g(f's_add_u32 {s(bases[Tp])}, {s(bases[Tp])}, {s(15)}')
            g(f's_add_u32 {s(bases[Tp])}, {s(bases[Tp])}, {s(T0)}')
            g(f's_mul_i32 {s(15)}, {s(steps[Tp])}, {s(sW)}')
            g(f's_add_u32 {s(bases[Tp])}, {s(bases[Tp])}, {s(15)}')
            g(f's_lshl_b32 {s(steps[Tp])}, {s(steps[Tp])}, 2')
        g.wperm(7, vT)
        g.make_tag()
        g.wait_vm(hphi)
        for Tp in range(3):
            for jj in range(8):
                if jj in (0, 2):
                    m = 0xffffffffffff if jj < 2 else 0xffffffff
                    g(f's_mov_b32 {s(sMA)}, {hex(m & 0xffffffff)}')
                    g(f's_mov_b32 {s(sMA + 1)}, {hex(m >> 32)}')
                    g(f's_and_b64 exec, {s(sMA, 2)}, {s(masks[Tp], 2)}')
                g(f'ds_read_u16 {v(ACC + 8 * Tp + jj)}, {v(vPB)} offset:{36 * jj + 8 * Tp}')
        g.setexec(-1)
        g(f'v_cmp_eq_u32 vcc, 0, {v(vHD)}')
        for Tp in range(3):
            for d in range(4):
                g(f'v_lshl_or_b32 {v(BV + d)}, {v(ACC + 8 * Tp + 2 * d + 1)}, 16, {v(ACC + 8 * Tp + 2 * d)}')
            for d in range(4):
                g(f'v_cndmask_b32 {v(BF + 8 * Tp + d)}, 0, {v(BV + d)}, vcc')
            for d in range(4):
                g(f'v_sub_u32 {v(BF + 8 * Tp + 4 + d)}, {v(BV + d)}, {v(BF + 8 * Tp + d)}')
        g.stamp(2)
        SM = 96
        pend = []

        def sums(mt):
            out = []
            for hf in range(2):
                for Tp in range(3):
                    x = v(ACC + 12 * mt + 4 * Tp + 2 * hf, 2)
                    if mt == 0 and hf == 0:
                        out.append(f'v_mov_b64 {v(SM + 2 * Tp, 2)}, {x}')
                    else:
                        out.append(f'v_pk_add_f32 {v(SM + 2 * Tp, 2)}, {v(SM + 2 * Tp, 2)}, {x}')
            return out
        for kk in range(5):
            g.wait_vm(hs[kk])
            for half in range(2):
                for hh in range(2):
                    i = (2 * kk + half) * 2 + hh
                    g(f'ds_read_b128 {v(RA + 4 * i, 4)}, {v(vO)} offset:{kk * 3072 + 16 * 96 * half + 48 * hh}')
            for mt in (2 * kk, 2 * kk + 1):
                for hh in range(2):
                    for Tp in range(3):
                        d = v(ACC + 12 * mt + 4 * Tp, 4)
                        g.mfma(d, v(RA + 8 * mt + 4 * hh, 4), v(BF + 8 * Tp + 4 * hh, 4), d if hh else '0')
                        if pend:
                            g(pend.pop(0))
                if mt >= 1:
                    pend += sums(mt - 1)
        for x in pend + sums(9):
            g(x)
        g.stamp(3)
        CS = 24
        for Tp in range(3):
            g(f'v_add_f32 {v(CS + Tp)}, {v(SM + 2 * Tp)}, {v(SM + 2 * Tp + 1)}')
        g(f'v_mov_b32 {v(CS + 3)}, 0')
        g.xg_sum2(CS, CS + 1, vT)
        g.xg_sum2(CS + 2, CS + 3, vT)
        g(f's_lshl_b32 {s(15)}, {s(sW)}, 8')
        g(f'v_lshl_add_u32 {v(vT)}, {v(vI)}, 4, {s(15)}')
        g(f'ds_write_b128 {v(vT)}, {v(CS, 4)}')
        g(f's_cmp_eq_u32 {s(sPart)}, 1')
        g(f's_cselect_b32 {s(sM3)}, 0x44444444, 0')
        g(f's_mov_b32 {s(sM3 + 1)}, {s(sM3)}')
        g(f's_or_b64 {s(sM2, 2)}, {s(sM2, 2)}, {s(sM3, 2)}')
        g(f'v_lshlrev_b32 {v(vT)}, 4, {v(vI)}')
        g.barrier()
        P_ = 28
        for w in range(4):
            g(f'ds_read_b128 {v(P_ + 4 * w, 4)}, {v(vT)} offset:{256 * w}')
        for h2 in range(2):
            g(f'v_pk_add_f32 {v(P_ + 2 * h2, 2)}, {v(P_ + 2 * h2, 2)}, {v(P_ + 4 + 2 * h2, 2)}')
            g(f'v_pk_add_f32 {v(P_ + 8 + 2 * h2, 2)}, {v(P_ + 8 + 2 * h2, 2)}, {v(P_ + 12 + 2 * h2, 2)}')
            g(f'v_pk_add_f32 {v(P_ + 2 * h2, 2)}, {v(P_ + 2 * h2, 2)}, {v(P_ + 8 + 2 * h2, 2)}')
        MN = 44
        for Tp in range(3):
            g(f'v_mul_f32 {v(MN + 2 * Tp)}, 0xbae38e39, {v(P_ + Tp)}')
        g(f'v_cndmask_b32 {v(MN + 4)}, {v(MN + 4)}, 1.0, {s(sM3, 2)}')
        O_ = 52

        def emit_k(kk):
            for Tp in range(3):
                o = O_ + 4 * ((3 * kk + Tp) % 4)
                for half in range(2):
                    b = ACC + 12 * (2 * kk + half) + 4 * Tp
                    for hf in range(2):
                        g(f'v_pk_add_f32 {v(b + 2 * hf, 2)}, {v(b + 2 * hf, 2)}, {v(MN + 2 * Tp, 2)} op_sel_hi:[1,0]')
                    for hf in range(2):
                        g(f'v_cvt_pk_bf16_f32 {v(o + 2 * half + hf)}, {v(b + 2 * hf)}, {v(b + 2 * hf + 1)}')
                g(f's_mov_b64 exec, {s(masks[Tp], 2)}')
                g(f'buffer_store_dwordx4 {v(o, 4)}, {v(7)}, {s(rWS, 4)}, {s(bases[Tp])} offen sc1')
                g.setexec(-1)
                g(f's_add_u32 {s(bases[Tp])}, {s(bases[Tp])}, {s(steps[Tp])}')
        g.stamp(4)
        for kk in range(4):
            emit_k(kk)
        g(f's_cmp_ge_u32 {s(sW)}, 2')
        with g.skip_if('s_cbranch_scc1'):
            emit_k(4)
        g(f's_lshl_b32 {s(T3)}, {s(sU)}, 7')
        g(f's_add_u32 {s(T3)}, {s(T3)}, {L.FW}')
        g.stamp(5)
        g.drain(force=True)
        g.barrier()
        g(f's_cmp_lg_u32 {s(sW)}, 0')
        with g.skip_if('s_cbranch_scc1'):
            g.flag_store(T3)
        g.stamp(6)

    def softmax2(self, X, single_first, C, TMP, outs):
        g = self
        R = range(2)
        sg = [x if single_first else x + 8 for x in X]
        pb = [x + 1 if single_first else x for x in X]
        val = lambda t, f: X[t] + f
        EN = [TMP[t] for t in R]
        SG = [TMP[t] + 8 for t in R]
        MX = [TMP[t] + 10 for t in R]
        SM = [TMP[t] + 12 for t in R]
        for t in R:
            g(f'v_max3_f32 {v(MX[t])}, {v(val(t, 0))}, {v(val(t, 1))}, {v(val(t, 2))}')
            g(f'v_max3_f32 {v(MX[t] + 1)}, -{v(val(t, 0))}, -{v(val(t, 1))}, -{v(val(t, 2))}')
        for k in range(3):
            for t in R:
                g(f'v_max3_f32 {v(MX[t])}, {v(MX[t])}, {v(val(t, 3 + 2 * k))}, {v(val(t, 4 + 2 * k))}')
                g(f'v_max3_f32 {v(MX[t] + 1)}, {v(MX[t] + 1)}, -{v(val(t, 3 + 2 * k))}, -{v(val(t, 4 + 2 * k))}')
        for t in R:
            g(f'v_permlane16_swap_b32 {v(MX[t])}, {v(MX[t] + 1)}')
        for t in R:
            g(f'v_max_f32 {v(MX[t])}, {v(MX[t])}, {v(MX[t] + 1)}')
        for t in R:
            g(f'v_mul_f32 {v(MX[t])}, {v(C[t])}, {v(MX[t])}')
        for t in R:
            g(f'v_mov_b32 {v(MX[t] + 1)}, {v(MX[t])}')
        for t in R:
            g(f'v_permlane16_swap_b32 {v(MX[t])}, {v(MX[t] + 1)}')
        for k in range(4):
            for t in R:
                g(f'v_pk_fma_f32 {v(EN[t] + 2 * k, 2)}, {v(pb[t] + 2 * k, 2)}, {v(C[t], 2)}, {v(MX[t], 2)} op_sel:[0,0,1] op_sel_hi:[1,0,1] neg_lo:[1,0,1] neg_hi:[1,0,1]')
                g(f'v_pk_fma_f32 {v(pb[t] + 2 * k, 2)}, {v(pb[t] + 2 * k, 2)}, {v(C[t], 2)}, {v(MX[t], 2)} op_sel_hi:[1,0,0] neg_lo:[0,0,1] neg_hi:[0,0,1]')
        for t in R:
            g(f'v_fma_f32 {v(SG[t])}, {v(sg[t])}, {v(C[t])}, -{v(MX[t])}')
            g(f'v_fma_f32 {v(SG[t] + 1)}, -{v(sg[t])}, {v(C[t])}, -{v(MX[t] + 1)}')
        for t in R:
            for k in range(8):
                g(f'v_exp_f32 {v(pb[t] + k)}, {v(pb[t] + k)}')
                g(f'v_exp_f32 {v(EN[t] + k)}, {v(EN[t] + k)}')
            g(f'v_exp_f32 {v(SG[t])}, {v(SG[t])}')
            g(f'v_exp_f32 {v(SG[t] + 1)}, {v(SG[t] + 1)}')
        for t in R:
            g(f'v_pk_add_f32 {v(SM[t], 2)}, {v(pb[t], 2)}, {v(pb[t] + 2, 2)}')
            g(f'v_pk_add_f32 {v(SM[t] + 2, 2)}, {v(EN[t], 2)}, {v(EN[t] + 2, 2)}')
        for k in (2, 3):
            for t in R:
                g(f'v_pk_add_f32 {v(SM[t], 2)}, {v(SM[t], 2)}, {v(pb[t] + 2 * k, 2)}')
                g(f'v_pk_add_f32 {v(SM[t] + 2, 2)}, {v(SM[t] + 2, 2)}, {v(EN[t] + 2 * k, 2)}')
        for t in R:
            g(f'v_add_f32 {v(MX[t])}, {v(SM[t])}, {v(SM[t] + 1)}')
            g(f'v_add_f32 {v(MX[t] + 1)}, {v(SM[t] + 2)}, {v(SM[t] + 3)}')
        for t in R:
            g(f'v_pk_add_f32 {v(MX[t], 2)}, {v(MX[t], 2)}, {v(SG[t], 2)}')
        for t in R:
            g(f'v_permlane16_swap_b32 {v(MX[t])}, {v(MX[t] + 1)}')
        for t in R:
            g(f'v_add_f32 {v(MX[t])}, {v(MX[t])}, {v(MX[t] + 1)}')
        for t in R:
            g(f'v_rcp_f32 {v(MX[t])}, {v(MX[t])}')
        for t in R:
            g(f'v_mov_b32 {v(MX[t] + 1)}, {v(MX[t])}')
        for t in R:
            g(f'v_permlane16_swap_b32 {v(MX[t])}, {v(MX[t] + 1)}')
        for k in range(4):
            for t in R:
                g(f'v_pk_mul_f32 {v(pb[t] + 2 * k, 2)}, {v(pb[t] + 2 * k, 2)}, {v(MX[t], 2)} op_sel_hi:[1,0]')
                g(f'v_pk_mul_f32 {v(EN[t] + 2 * k, 2)}, {v(EN[t] + 2 * k, 2)}, {v(MX[t], 2)} op_sel:[0,1] op_sel_hi:[1,1]')
        for t in R:
            g(f'v_pk_mul_f32 {v(SG[t], 2)}, {v(SG[t], 2)}, {v(MX[t], 2)}')
        for t in R:
            if single_first:
                pos = [SG[t]] + [pb[t] + k for k in range(8)]
                neg = [SG[t] + 1] + [EN[t] + k for k in range(8)]
            else:
                pos = [pb[t] + k for k in range(8)] + [SG[t]]
                neg = [EN[t] + k for k in range(8)] + [SG[t] + 1]
            seq = pos + neg
            for d in range(9):
                g(f'v_cvt_pk_bf16_f32 {v(outs[t][d])}, {v(seq[2 * d])}, {v(seq[2 * d + 1])}')

    def consts(self, off):
        g = self
        v0_ = globals()['v']
        v = lambda i, n=1: v0_(i + off if i >= 6 else i, n)
        vT = 6

        def keep(ar, vr):
            g(f'v_accvgpr_write_b32 {a(ar)}, {v(vr)}')

        c3, r3 = 8, 9
        g(f'v_and_b32 {v(c3)}, 3, {v(vLANE)}')
        g(f'v_bfe_u32 {v(r3)}, {v(vLANE)}, 2, 2')
        g(f's_mul_i32 {s(T0)}, {s(sW)}, {32 * 264}')
        g(f's_add_u32 {s(T0)}, {s(T0)}, {L.L_SCR}')
        g(f'v_mul_u32_u24 {v(vT)}, 264, {v(vI)}')
        g(f'v_mad_u32_u24 {v(vT)}, {v(vG)}, 40, {v(vT)}')
        g(f'v_add_u32 {v(vT)}, {s(T0)}, {v(vT)}')
        keep(aSCW, vT)
        g(f'v_and_b32 {v(vT)}, 1, {v(vG)}')
        g(f'v_lshlrev_b32 {v(vT)}, 4, {v(vT)}')
        g(f'v_lshl_add_u32 {v(vT)}, {v(r3)}, 2, {v(vT)}')
        g(f'v_and_b32 {v(vT + 1)}, 2, {v(vG)}')
        g(f'v_add_u32 {v(vT)}, {v(vT)}, {v(vT + 1)}')
        g(f'v_mul_u32_u24 {v(10)}, 264, {v(vT)}')
        g(f'v_add_u32 {v(10)}, {L.L_SCR}, {v(10)}')
        g(f's_lshr_b32 {s(T2)}, {s(sW)}, 1')
        g(f's_mul_i32 {s(T0)}, {s(T2)}, 80')
        g(f'v_lshrrev_b32 {v(vT)}, 1, {v(c3)}')
        g(f'v_mad_u32_u24 {v(11)}, {v(vT)}, 40, {v(10)}')
        g(f'v_add_u32 {v(11)}, {s(T0)}, {v(11)}')
        g(f'v_and_b32 {v(vT)}, 1, {v(c3)}')
        for Tm in range(3):
            g(f'v_mad_u32_u24 {v(vT + 1)}, {v(vT)}, {8 * (min(3 + Tm, 4) - Tm)}, {v(11)}')
            g(f'v_add_u32 {v(vT + 1)}, {8 * Tm}, {v(vT + 1)}')
            keep(aPA0 + Tm, vT + 1)
        g(f's_mul_i32 {s(T0)}, {s(sW)}, 24')
        g(f's_add_u32 {s(T0)}, {s(T0)}, 160')
        g(f'v_min_u32 {v(vT)}, 2, {v(c3)}')
        g(f'v_lshl_add_u32 {v(vT)}, {v(vT)}, 3, {v(10)}')
        g(f'v_add_u32 {v(vT)}, {s(T0)}, {v(vT)}')
        keep(aPB, vT)
        g(f's_mul_i32 {s(T0)}, {s(sW)}, 960')
        g(f'v_lshlrev_b32 {v(vT)}, 6, {v(vI)}')
        g(f'v_lshl_add_u32 {v(vT)}, {v(vG)}, 4, {v(vT)}')
        g(f'v_add_u32 {v(vT)}, {s(T0)}, {v(vT)}')
        keep(aKVS, vT)
        g(f'v_lshrrev_b32 {v(vT)}, 1, {v(vG)}')
        g(f'v_lshl_add_u32 {v(vT)}, {v(vI)}, 1, {v(vT)}')
        g(f'v_lshlrev_b32 {v(vT)}, 4, {v(vT)}')
        g(f's_add_u32 {s(T0)}, {s(T0)}, 640')
        g(f'v_add_u32 {v(vT)}, {s(T0)}, {v(vT)}')
        keep(aKVS2, vT)
        g(f's_mul_i32 {s(T0)}, {s(sR128)}, 15')
        g(f'v_lshrrev_b32 {v(vT)}, 4, {v(vTID)}')
        g(f'v_min_u32 {v(vT + 1)}, 14, {v(vT)}')
        g(f'v_add_u32 {v(vT + 1)}, {s(T0)}, {v(vT + 1)}')
        g(f'v_lshlrev_b32 {v(vT + 1)}, 4, {v(vT + 1)}')
        g(f'v_lshl_add_u32 {v(vT + 1)}, {v(vI)}, 12, {v(vT + 1)}')
        keep(aH1, vT + 1)
        g(f's_lshl_b32 {s(T0)}, {s(sR128)}, 8')
        g(f'v_lshl_add_u32 {v(vT)}, {v(vT)}, 4, {s(T0)}')
        keep(aH2, vT)
        g(f'v_mul_u32_u24 {v(vT)}, 4370, {v(vTID)}')
        g(f'v_lshrrev_b32 {v(vT)}, 16, {v(vT)}')
        g(f'v_add_lshl_u32 {v(vT)}, {v(vT)}, {v(vTID)}, 4')
        keep(aH3, vT)
        g(f's_movk_i32 {s(T2)}, 240')
        g(f'v_cmp_gt_u32 {s(sM1, 2)}, {s(T2)}, {v(vTID)}')
        g(f'v_mul_u32_u24 {v(12)}, 1093, {v(vTID)}')
        g(f'v_lshrrev_b32 {v(12)}, 16, {v(12)}')
        g(f'v_mul_u32_u24 {v(13)}, 60, {v(12)}')
        g(f'v_sub_u32 {v(13)}, {v(vTID)}, {v(13)}')
        g(f'v_cmp_le_u32 vcc, 40, {v(13)}')
        g(f'v_lshrrev_b32 {v(14)}, 2, {v(13)}')
        g(f'v_subrev_u32 {v(15)}, 40, {v(13)}')
        g(f'v_lshrrev_b32 {v(15)}, 1, {v(15)}')
        g(f'v_cndmask_b32 {v(14)}, {v(14)}, {v(15)}, vcc')
        g(f'v_and_b32 {v(15)}, 3, {v(13)}')
        g(f'v_mul_u32_u24 {v(15)}, 24, {v(15)}')
        g(f'v_and_b32 {v(16)}, 1, {v(13)}')
        g(f'v_mad_u32_u24 {v(16)}, {v(16)}, 48, 12')
        g(f'v_cndmask_b32 {v(15)}, {v(15)}, {v(16)}, vcc')
        g(f'v_and_b32 {v(16)}, 1, {v(12)}')
        g(f'v_mad_u32_u24 {v(16)}, {v(16)}, 9, {v(14)}')
        g(f'v_cmp_ne_u32 vcc, 18, {v(16)}')
        g(f's_and_b64 {s(sM2, 2)}, {s(sM1, 2)}, vcc')
        g(f'v_cmp_eq_u32 vcc, 9, {v(14)}')
        g(f'v_mov_b32 {v(17)}, 18')
        g(f'v_cndmask_b32 {v(16)}, {v(16)}, {v(17)}, vcc')
        g(f'v_lshrrev_b32 {v(12)}, 1, {v(12)}')
        g(f'v_mad_u32_u24 {v(16)}, {v(12)}, 19, {v(16)}')
        g(f'v_mul_u32_u24 {v(16)}, 96, {v(16)}')
        g(f'v_add_u32 {v(16)}, {v(16)}, {v(15)}')
        g(f'v_add_u32 {v(16)}, {L.L_KVT}, {v(16)}')
        keep(aKT, 16)
        g(f'v_add_u32 {v(16)}, 12, {v(16)}')
        g(f'v_mul_u32_u24 {v(17)}, 12, {v(vTID)}')
        g(f'v_add_u32 {v(17)}, {L.L_ZERO - 240 * 12}, {v(17)}')
        g(f'v_cndmask_b32 {v(16)}, {v(17)}, {v(16)}, {s(sM1, 2)}')
        keep(aKZ, 16)
        g(f'v_cmp_gt_u32 vcc, 40, {v(13)}')
        g(f's_and_b64 {s(sM0, 2)}, {s(sM2, 2)}, vcc')
        g(f's_mov_b32 vcc_lo, 0xaaaaaaaa')
        g(f's_mov_b32 vcc_hi, 0xaaaaaaaa')
        g(f's_and_b64 {s(sM0, 2)}, {s(sM0, 2)}, vcc')
        g(f's_orn2_b64 {s(sM0, 2)}, {s(sM0, 2)}, {s(sM1, 2)}')
        g(f's_lshr_b32 {s(T0)}, {s(sR128)}, 2')
        g(f's_mul_i32 {s(T0)}, {s(T0)}, 144')
        g(f's_mul_i32 {s(T1)}, {s(sW)}, 36')
        g(f's_add_u32 {s(T0)}, {s(T0)}, {s(T1)}')
        g(f's_lshl_b32 {s(T0)}, {s(T0)}, 7')
        g(f's_add_u32 {s(T0)}, {s(T0)}, {L.FC}')
        g(f's_lshr_b32 {s(T1)}, {s(sCG)}, 1')
        g(f's_lshl_b32 {s(T1)}, {s(T1)}, 11')
        g(f's_lshl_b32 {s(T2)}, {s(sW)}, 9')
        g(f's_add_u32 {s(T1)}, {s(T1)}, {s(T2)}')
        g(f's_add_u32 {s(T1)}, {s(T1)}, {L.FWO - 36 * 128}')
        g(f'v_mov_b32 {v(16)}, {s(T0)}')
        g(f'v_mov_b32 {v(17)}, {s(T1)}')
        g(f'v_cmp_gt_u32 vcc, 36, {v(vLANE)}')
        g(f'v_cndmask_b32 {v(16)}, {v(17)}, {v(16)}, vcc')
        g(f'v_lshl_add_u32 {v(16)}, {v(vLANE)}, 7, {v(16)}')
        keep(aFC, 16)
        g(f'v_lshrrev_b32 {v(12)}, 3, {v(vI)}')
        g(f'v_lshrrev_b32 {v(13)}, 1, {v(vG)}')
        g(f'v_cmp_eq_u32 vcc, {v(12)}, {v(13)}')
        g(f'v_mul_u32_u24 {v(12)}, {19 * 96}, {v(12)}')
        g(f'v_and_b32 {v(13)}, 1, {v(vG)}')
        g(f'v_mad_u32_u24 {v(12)}, {v(13)}, 48, {v(12)}')
        g(f'v_add_u32 {v(12)}, {L.L_KVT}, {v(12)}')
        g(f'v_bfe_u32 {v(13)}, {v(vI)}, 2, 1')
        g(f'v_and_b32 {v(14)}, 3, {v(vI)}')
        g(f'v_lshl_add_u32 {v(13)}, {v(13)}, 3, {v(14)}')
        g(f'v_mov_b32 {v(17)}, {L.L_ZERO}')
        g(f's_movk_i32 {s(T0)}, 96')
        for T in range(3):
            if T < 2:
                g(f'v_add_u32 {v(15)}, {4 * T}, {v(13)}')
            else:
                g(f'v_lshlrev_b32 {v(15)}, 3, {v(14)}')
                g(f'v_lshrrev_b32 {v(15)}, {v(15)}, {v(18)}' if False else f'v_mov_b32 {v(18)}, 0x12111012')
                g(f'v_lshrrev_b32 {v(15)}, {v(15)}, {v(18)}')
                g(f'v_and_b32 {v(15)}, 0xff, {v(15)}')
            g(f'v_mad_u32_u24 {v(15)}, {v(15)}, {s(T0)}, {v(12)}')
            g(f'v_cndmask_b32 {v(15)}, {v(17)}, {v(15)}, vcc')
            keep(aOA0 + T, 15)
        g(f's_mul_i32 {s(T0)}, {s(sRB)}, 36864')
        g(f'v_lshrrev_b32 {v(12)}, 3, {v(vI)}')
        g(f'v_mul_u32_u24 {v(12)}, 18432, {v(12)}')
        g(f'v_and_b32 {v(13)}, 7, {v(vI)}')
        g(f'v_lshl_add_u32 {v(12)}, {v(13)}, 4, {v(12)}')
        g(f'v_add_u32 {v(12)}, {s(T0)}, {v(12)}')
        g(f's_lshl_b32 {s(T0)}, {s(sP)}, 10')
        g(f'v_lshl_add_u32 {v(14)}, {v(vG)}, 8, {v(12)}')
        g(f'v_add_u32 {v(14)}, {s(T0)}, {v(14)}')
        keep(aOS, 14)
        g(f's_lshl_b32 {s(T0)}, {s(sP)}, 7')
        g(f's_add_u32 {s(T0)}, {s(T0)}, {64 * 256}')
        g(f'v_lshlrev_b32 {v(14)}, 3, {v(13)}')
        g(f'v_sub_u32 {v(14)}, {v(12)}, {v(14)}')
        g(f'v_lshrrev_b32 {v(15)}, 1, {v(vG)}')
        g(f'v_lshl_add_u32 {v(14)}, {v(15)}, 6, {v(14)}')
        g(f'v_add_u32 {v(14)}, {s(T0)}, {v(14)}')
        keep(aOE, 14)
        g(f's_and_b32 {s(T3)}, {s(sW)}, 1')
        g(f's_mul_i32 {s(T0)}, {s(sRB2)}, 36864')
        g(f's_mul_i32 {s(T1)}, {s(sCG)}, 4608')
        g(f's_add_u32 {s(T0)}, {s(T0)}, {s(T1)}')
        g(f's_lshl_b32 {s(T1)}, {s(T3)}, 7')
        g(f's_add_u32 {s(T0)}, {s(T0)}, {s(T1)}')
        g(f'v_lshlrev_b32 {v(12)}, 8, {v(vG)}')
        g(f'v_lshl_add_u32 {v(12)}, {v(13)}, 4, {v(12)}')
        g(f'v_add_u32 {v(12)}, {s(T0)}, {v(12)}')
        g(f'v_lshrrev_b32 {v(14)}, 3, {v(vI)}')
        g(f'v_lshl_add_u32 {v(15)}, {v(14)}, 3, {v(12)}')
        keep(aX1, 15)
        g(f'v_lshl_add_u32 {v(15)}, {v(14)}, 10, {v(12)}')
        keep(aX3, 15)
        g(f's_lshl_b32 {s(T0)}, {s(sR64)}, 13')
        g(f's_lshl_b32 {s(T1)}, {s(sW)}, 8')
        g(f's_add_u32 {s(T0)}, {s(T0)}, {s(T1)}')
        g(f's_add_u32 {s(T0)}, {s(T0)}, {L.ST}')
        g(f'v_lshl_add_u32 {v(15)}, {v(vI)}, 4, {s(T0)}')
        g(f'v_lshl_add_u32 {v(16)}, {v(vG)}, 10, {v(15)}')
        keep(aSTG, 16)
        g(f's_lshl_b32 {s(T1)}, {s(sCG)}, 10')
        g(f'v_add_u32 {v(15)}, {s(T1)}, {v(15)}')
        keep(aSTP, 15)
        g(f's_lshl_b32 {s(T0)}, {s(sRB2)}, 5')
        g(f's_lshl_b32 {s(T1)}, {s(T3)}, 3')
        g(f's_add_u32 {s(T0)}, {s(T0)}, {s(T1)}')
        g(f's_mul_i32 {s(T0)}, {s(T0)}, 1152')
        g(f's_mul_i32 {s(T1)}, {s(sCG)}, 144')
        g(f's_add_u32 {s(T0)}, {s(T0)}, {s(T1)}')
        g(f'v_lshl_add_u32 {v(15)}, {v(14)}, 4, {v(13)}')
        g(f'v_mul_u32_u24 {v(15)}, 1152, {v(15)}')
        g(f'v_and_b32 {v(16)}, 1, {v(vG)}')
        g(f'v_lshl_add_u32 {v(15)}, {v(16)}, 5, {v(15)}')
        g(f'v_lshrrev_b32 {v(16)}, 1, {v(vG)}')
        g(f'v_lshl_add_u32 {v(15)}, {v(16)}, 4, {v(15)}')
        g(f'v_add_u32 {v(15)}, {s(T0)}, {v(15)}')
        keep(aOUT, 15)
        g(f'v_lshlrev_b32 {v(15)}, 7, {v(vG)}')
        g(f'v_lshl_add_u32 {v(15)}, {v(13)}, 4, {v(15)}')
        g(f'v_add_u32 {v(15)}, 4096, {v(15)}')
        keep(aW4, 15)
        g.wperm(15 + off, 16 + off)
        keep(aWP, 15)
        g(f's_mov_b32 {s(sLAY)}, 0')
        g(f's_mul_i32 {s(sXP)}, {s(sRB)}, 36864')
        g(f's_add_u32 {s(sXP)}, {s(sXP)}, {L.X1P}')
        g(f's_mov_b32 {s(sOFB)}, {L.OF}')
        g(f's_lshl_b32 {s(sKV1)}, {s(sP)}, 16')
        g(f's_add_u32 {s(sKV1)}, {s(sKV1)}, {L.KV1}')
        g(f's_lshl_b32 {s(sKV2)}, {s(sP)}, 12')
        g(f's_add_u32 {s(sKV2)}, {s(sKV2)}, {L.KV2}')
        g(f's_mov_b32 {s(sFO)}, {L.FO}')

    def clears(self):
        g = self

        def get(vr, ar):
            g(f'v_accvgpr_read_b32 {v(vr)}, {a(ar)}')

        if g.opt.clear:
            Z = 180
            g(f'v_mov_b64 {v(Z, 2)}, 0')
            g(f'v_mov_b64 {v(Z + 2, 2)}, 0')
            g(f's_lshl_b32 {s(T0)}, {s(sRB)}, 4')
            g(f's_add_u32 {s(T0)}, {s(T0)}, {s(sP)}')
            g(f's_lshl_b32 {s(T0)}, {s(T0)}, 7')
            g(f's_add_u32 {s(T0)}, {s(T0)}, {L.FO}')
            g(f's_add_u32 {s(T1)}, {s(T0)}, {1024 * 128}')
            g.fx_off(T2, T3)
            g.setexec(0xff)
            for r in (T0, T1, T2):
                g(f'buffer_store_dwordx4 {v(Z, 4)}, {v(vL16)}, {s(rWS, 4)}, {s(r)} offen sc1')
            g.setexec(-1)
            get(184, aSTP)
            get(185, aH2)
            g(f's_lshl_b32 {s(T0)}, {s(sR128)}, 12')
            g(f's_mul_i32 {s(T1)}, {s(sW)}, 960')
            g(f's_add_u32 {s(T0)}, {s(T0)}, {s(T1)}')
            g(f's_add_u32 {s(T0)}, {s(T0)}, {s(sKV1)}')
            g(f's_add_u32 {s(T1)}, {s(T0)}, {256 * 4096}')
            g(f's_add_u32 {s(T2)}, {s(sKV2)}, {16 * 4096}')
            g.setexec((1 << 60) - 1)
            for r in (T0, T1):
                g(f'buffer_store_dwordx4 {v(Z, 4)}, {v(vL16)}, {s(rWS, 4)}, {s(r)} offen sc1')
            g.setexec(0x0001000100010001)
            for r in (sKV2, T2):
                g(f'buffer_store_dwordx4 {v(Z, 4)}, {v(185)}, {s(rWS, 4)}, {s(r)} offen sc1')
            g.setexec(0xffff)
            g(f'buffer_store_dwordx4 {v(Z, 4)}, {v(184)}, {s(rWS, 4)}, 0 offen sc1')
            g.setexec(-1)
        g.hello()

    def main(self):
        g = self
        vT = 6
        def keep(ar, vr):
            g(f'v_accvgpr_write_b32 {a(ar)}, {v(vr)}')

        def get(vr, ar):
            g(f'v_accvgpr_read_b32 {v(vr)}, {a(ar)}')

        g.stamp(7)
        get(vT, aFC)
        g.poll([(vT + 1, 1, vT, '0', 0)], (1 << 40) - 1, 4)
        g.barrier()
        if g.opt.stop == 'conv':
            g.branch('s_branch', 'L_fin')

        g.label('L_layer')
        g.stamp(8)
        XA = 112
        AC = [48, 76]
        GR = [104, 108]
        def ldX(j):
            if j >= 36 or 'noload1' in g.opt.exp:
                return
            if j and j % 4 == 0:
                g(f's_add_u32 {s(sXP)}, {s(sXP)}, 4096')
            off = f' offset:{(j % 4) * 1024}' if j % 4 else ''
            g(f'buffer_load_dwordx4 {v(XA + 4 * j, 4)}, {v(vL16)}, {s(rWS, 4)}, {s(sXP)} offen{off} sc1')
        NPRE = g.opt.npre
        for j in range(NPRE):
            ldX(j)
        g(f's_cmp_eq_u32 {s(sLAY)}, 0')
        with g.skip_if('s_cbranch_scc1'):
            g('s_barrier')
        vW1, vW2, vW0 = 6, 7, 8
        get(vW0, aWP)
        g(f'v_add_u32 {v(vW1)}, {9 * 5120}, {v(vW0)}')
        g(f'v_add_u32 {v(vW2)}, {L.L_P2}, {v(vW0)}')

        def rdW(k, T):
            if T < 5:
                base, off = (vW0, k * 5120) if k < 9 else (vW1, (k - 9) * 5120)
                g(f'ds_read_b128 {a(20 * (k & 1) + 4 * T, 4)}, {v(base)} offset:{off + 1024 * T}')
            else:
                g(f'ds_read_b128 {a(40 + 8 * (k & 3) + 4 * (T - 5), 4)}, {v(vW2)} offset:{k * 2048 + 1024 * (T - 5)}')
        for T in range(5):
            rdW(0, T)
        g(f'v_swap_b32 {v(XA + 2)}, {v(XA + 4)}')
        g(f'v_swap_b32 {v(XA + 3)}, {v(XA + 5)}')
        C = [8, 10]
        RSV = [12, 14]

        def gram(k):
            for t in range(2):
                xx = v(XA + 8 * k + 4 * t, 4)
                g.mfma(v(GR[t], 4), xx, xx, v(GR[t], 4) if k else '0')
        st1 = []
        for jj in range(4):
            m = sum(1 << (20 * gg + jj) for gg in range(4))
            st1.append(f's_mov_b32 vcc_lo, {hex(m & 0xffffffff)}\ns_mov_b32 vcc_hi, {hex(m >> 32)}')
            for t in range(2):
                st1.append(f'v_cndmask_b32 {v(16 + t)}, {v(16 + t) if jj else 0}, {v(GR[t] + jj)}, vcc')
        st1 += [f'v_nop', f'v_permlane16_swap_b32 {v(16)}, {v(17)}', f'v_add_f32 {v(16)}, {v(16)}, {v(17)}\nv_mov_b32 {v(17)}, {v(16)}',
                f'v_nop', f'v_permlane32_swap_b32 {v(16)}, {v(17)}', f'v_add_f32 {v(16)}, {v(16)}, {v(17)}\nv_mov_b32 {v(17)}, {v(16)}']
        gram(0)
        for k in range(18):
            x = XA + 8 * k
            order = range(5) if k < 17 else (4, 0, 1, 2, 3)
            for n, T in enumerate(order):
                for t in range(2):
                    d = v(AC[t] + 4 * T, 4)
                    if 'nomfma1' not in g.opt.exp or k == 0:
                        g.mfma(d, a(20 * (k & 1) + 4 * T, 4), v(x + 4 * t, 4), d if k else '0')
                    if k < 17:
                        if t == 0:
                            rdW(k + 1, T if k < 16 else (4, 0, 1, 2, 3)[T])
                        if t == 1 and n in (0, 1):
                            ldX(NPRE + 2 * k + n)
                        if t == 1 and n in (2, 3):
                            g(f'v_swap_b32 {v(x + 8 + n)}, {v(x + 10 + n)}')
                    elif n >= 1:
                        for _ in range(2):
                            if st1:
                                g(st1.pop(0))
            if k < 17:
                gram(k + 1)
        for x in st1:
            g(x)
        g(f'v_permlane16_swap_b32 {v(16)}, {v(17)}')
        g.stamp(9)
        for t in range(2):
            g(f'v_mul_f32 {v(AC[t] + 18)}, 0x3ae38e39, {v(AC[t] + 18)}')
            g(f'v_mul_f32 {v(16 + t)}, 0x3ae38e39, {v(16 + t)}')
        for t in range(2):
            g(f'v_fma_f32 {v(16 + t)}, -{v(AC[t] + 18)}, {v(AC[t] + 18)}, {v(16 + t)}')
        for t in range(2):
            g(f'v_max_f32 {v(16 + t)}, 0, {v(16 + t)}')
        for t in range(2):
            g(f'v_add_f32 {v(16 + t)}, 0x3727c5ac, {v(16 + t)}')
        for t in range(2):
            g(f'v_rsq_f32 {v(RSV[t])}, {v(16 + t)}')
        for t in range(2):
            g(f'v_mul_f32 {v(C[t])}, 0x3fb8aa3b, {v(RSV[t])}')
        TM = [16, 32]
        VP = [104, 108]
        vSC = 6
        get(vSC, aSCW)
        g(f'v_lshlrev_b32 {v(16)}, 4, {v(vG)}')
        g(f'v_sub_u32 {v(17)}, {v(vSC)}, {v(16)}')
        for t in range(2):
            b = AC[t]
            g(f'v_mul_f32 {v(b + 9)}, {v(RSV[t])}, {v(b + 9)}')
            for k in range(4):
                g(f'v_pk_mul_f32 {v(b + 10 + 2 * k, 2)}, {v(b + 10 + 2 * k, 2)}, {v(RSV[t], 2)} op_sel_hi:[1,0]')
            for d in range(4):
                g(f'v_cvt_pk_bf16_f32 {v(VP[t] + d)}, {v(b + 9 + 2 * d)}, {v(b + 10 + 2 * d)}')
            g(f'v_cvt_pk_bf16_f32 {v(b + 18)}, {v(b + 17)}, 1.0')
            o = 160 + 16 * 264 * t
            g(f'ds_write_b64 {v(17)}, {v(VP[t], 2)} offset:{o}')
            g(f'ds_write_b64 {v(17)}, {v(VP[t] + 2, 2)} offset:{o + 8}')
            g(f'ds_write_b32 {v(17)}, {v(b + 18)} offset:{o + 16}')
        PK = [[AC[t] + 10 + d for d in range(9)] for t in range(2)]
        g.softmax2([AC[0], AC[1]], False, C, TM, PK)
        for t in range(2):
            o = 16 * 264 * t
            for d in range(4):
                g(f'ds_write_b64 {v(vSC)}, {v(PK[t][2 * d], 2)} offset:{o + 8 * d}')
            g(f'ds_write_b32 {v(vSC)}, {v(PK[t][8])} offset:{o + 32}')
        vPA, vPB = 16, 19
        for Tm in range(3):
            get(vPA + Tm, aPA0 + Tm)
        get(vPB, aPB)
        g.barrier()
        g.stamp(10)
        KD = 20
        for ks in range(4):
            for rho in range(2):
                g(f'ds_read_b64_tr_b16 {a(72 + 16 * ks + 2 * rho, 2)}, {v(vPB)} offset:{(32 * ks + rho) * 264}')
            for Tm in range(3):
                for rho in range(2):
                    g(f'ds_read_b64_tr_b16 {a(72 + 16 * ks + 4 + 4 * Tm + 2 * rho, 2)}, {v(vPA + Tm)} offset:{(32 * ks + rho) * 264}')
            if ks == 1 or ks == 3:
                for k2 in (ks - 1, ks):
                    for Tm in range(3):
                        d = v(KD + 4 * Tm, 4)
                        g.mfma(d, a(72 + 16 * k2 + 4 + 4 * Tm, 4), a(72 + 16 * k2, 4), d if k2 else '0')
        for k in range(3):
            rdW(k, 5)
            rdW(k, 6)
        G1_, G2_ = 32, 36
        get(40, aKVS)
        get(41, aKVS2)
        g(f'v_mov_b32 {v(G1_ + 3)}, {v(vTAG)}')
        g(f'v_mov_b32 {v(G2_ + 3)}, {v(vTAG)}')
        g(f's_lshl_b32 {s(T0)}, {s(sR128)}, 12')
        g(f's_add_u32 {s(T0)}, {s(T0)}, {s(sKV1)}')
        for d in range(3):
            g(f'v_cvt_pk_bf16_f32 {v(G1_ + d)}, {v(KD + 2 * d)}, {v(KD + 2 * d + 1)}')
        for d in range(3):
            g(f'v_cvt_pk_bf16_f32 {v(G2_ + d)}, {v(KD + 6 + 2 * d)}, {v(KD + 7 + 2 * d)}')
        g.setexec(0x03ff03ff03ff03ff)
        g(f'buffer_store_dwordx4 {v(G1_, 4)}, {v(40)}, {s(rWS, 4)}, {s(T0)} offen sc1')
        g.setexec(0x000003ff000003ff)
        g.last_flag = g(f'buffer_store_dwordx4 {v(G2_, 4)}, {v(41)}, {s(rWS, 4)}, {s(T0)} offen sc1')
        g.setexec(-1)
        g.stamp(11)
        g(f's_mul_i32 {s(sBG)}, {s(sCG)}, {L.WOSZ}')
        g(f's_mul_i32 {s(sBL)}, {s(sW)}, {21 * 1024}')
        g(f's_add_u32 {s(sBG)}, {s(sBG)}, {s(sBL)}')
        g(f's_add_u32 {s(sBG)}, {s(sBG)}, {L.WOF}')
        woit = g.dma_items(21)
        NW0 = g.opt.nw0
        g.bg_start(woit[:NW0], 6, 3)
        H1 = 32
        get(41, aH1)
        for k in range(18):
            if k == g.opt.h1at:
                g.bg_flush()
                g(f'buffer_load_dwordx4 {v(H1, 4)}, {v(41)}, {s(rWS, 4)}, {s(sKV1)} offen sc1')
            x = XA + 8 * k
            if k + 3 < 18:
                rdW(k + 3, 5)
            for T in (5, 6):
                for t in range(2):
                    d = v(AC[t] + 4 * T, 4)
                    g.mfma(d, a(40 + 8 * (k & 3) + 4 * (T - 5), 4), v(x + 4 * t, 4), d if k else '0')
                    if T == 5 and t == 1 and k + 3 < 18:
                        rdW(k + 3, 6)
        g.stamp(12)
        g.poll_finish(H1, 41, s(sKV1), -1, 5, n=4)
        U = 116
        for d in range(3):
            g.unpack(U + 2 * d, U + 2 * d + 1, H1 + d)
        for sh in (8, 4, 2, 1):
            for d in range(6):
                g(f'v_add_f32_dpp {v(U + d)}, {v(U + d)}, {v(U + d)} row_ror:{sh} row_mask:0xf bank_mask:0xf')
        get(41, aH2)
        for d in range(3):
            g(f'v_cvt_pk_bf16_f32 {v(H1 + d)}, {v(U + 2 * d)}, {v(U + 2 * d + 1)}')
        g.setexec(0x0001000100010001)
        g.last_flag = g(f'buffer_store_dwordx4 {v(H1, 4)}, {v(41)}, {s(rWS, 4)}, {s(sKV2)} offen sc1')
        g.setexec(-1)
        g.stamp(13)
        g(f's_cmp_lg_u32 {s(sLAY)}, 0')
        with g.skip_if('s_cbranch_scc1'):
            get(42, aX1)
            g(f's_mov_b32 {s(T1)}, {L.X1P}')
            for T in range(5):
                if T == 4:
                    g(f's_add_u32 {s(T1)}, {s(T1)}, 4096')
                g(f'buffer_load_dwordx2 {a(aKEEP + 2 * T, 2)}, {v(42)}, {s(rWS, 4)}, {s(T1)} offen offset:{1024 * (T & 3)} sc1')
            if g.opt.fast:
                g(f's_lshl_b32 {s(T0)}, {s(sRB)}, 4')
                g(f's_add_u32 {s(T0)}, {s(T0)}, {s(sP)}')
                g(f's_lshl_b32 {s(T0)}, {s(T0)}, 7')
                g(f's_add_u32 {s(T0)}, {s(T0)}, {L.FO}')
                g(f's_add_u32 {s(T1)}, {s(T0)}, {1024 * 128}')
                g.fx_off(T2, T3)
                get(42, aSTP)
                for r in (T0, T1, T2):
                    g(f'buffer_load_dword {a(aJUNK)}, off, {s(rWS, 4)}, {s(r)} sc1')
                g(f'buffer_load_dword {a(aJUNK)}, {v(42)}, {s(rWS, 4)}, 0 offen sc1')
                g(f'v_lshlrev_b32 {v(42)}, 7, {v(vI)}')
                g(f's_lshl_b32 {s(T0)}, {s(sR128)}, 11')
                g(f's_add_u32 {s(T0)}, {s(T0)}, {L.FH}')
                g(f'buffer_load_dwordx4 {v(152, 4)}, {v(42)}, {s(rWS, 4)}, {s(T0)} offen sc1')
        PQ = [128, 140]
        for t in range(2):
            g(f'v_mov_b32 {v(PQ[t] + 9)}, 0')
            g(f'v_mov_b64 {v(PQ[t] + 10, 2)}, 0')
        g.softmax2([AC[0] + 19, AC[1] + 19], True, C, TM, [[PQ[t] + d for d in range(9)] for t in range(2)])
        g.stamp(14)
        if g.opt.fast:
            g(f's_cmp_lg_u32 {s(sLAY)}, 0')
            with g.skip_if('s_cbranch_scc1'):
                g(f'v_lshlrev_b32 {v(42)}, 7, {v(vI)}')
                g.poll_finish(152, 42, s(T0), -1, 12, n=4)
                g(f'v_cmp_ne_u32 vcc, {s(sXCC)}, {v(154)}')
                g('s_cmp_eq_u64 vcc, 0')
                g(f's_cselect_b32 {s(sFAST)}, {1 if g.opt.fast == 1 else 0}, 0')
        get(41, aH3)
        get(42, aKT)
        get(43, aKZ)
        g(f'v_mov_b32 {v(44)}, 0')
        g.poll([(H1, 4, 41, s(sKV2), 0)], s(sM1, 2), 6)
        g.setexec(s(sM2, 2))
        g(f'ds_write2_b32 {v(42)}, {v(H1)}, {v(H1 + 1)} offset0:0 offset1:1')
        g(f'ds_write_b32 {v(42)}, {v(H1 + 2)} offset:8')
        g.setexec(s(sM0, 2))
        g(f'ds_write2_b32 {v(43)}, {v(44)}, {v(44)} offset0:0 offset1:1')
        g(f'ds_write_b32 {v(43)}, {v(44)} offset:8')
        g.setexec(-1)
        for T in range(3):
            get(16 + T, aOA0 + T)
        g.barrier()
        g.stamp(15)
        for T in range(3):
            for kk in range(3):
                g(f'ds_read_b128 {a(72 + 12 * T + 4 * kk, 4)}, {v(16 + T)} offset:{16 * kk}')
        OD = [48, 60]
        for T in (2, 0, 1):
            for kk in range(3):
                for t in range(2):
                    d = v(OD[t] + 4 * T, 4)
                    g.mfma(d, a(72 + 12 * T + 4 * kk, 4), v(PQ[t] + 4 * kk, 4), d if kk else '0')
        get(20, aOS)
        get(21, aOE)
        RC = [22, 24]
        OP = [28, 32]
        OX = 36
        for t in range(2):
            g(f'v_add_f32 {v(RC[t])}, 0x358637bd, {v(OD[t] + 8)}')
        for t in range(2):
            g(f'v_rcp_f32 {v(RC[t])}, {v(RC[t])}')
        for t in range(2):
            g(f'v_mul_f32 {v(OD[t] + 9)}, {v(RC[t])}, {v(OD[t] + 9)}')
            g(f'v_mul_f32 {v(OD[t] + 10)}, {v(RC[t])}, {v(OD[t] + 10)}')
            g(f'v_cvt_pk_bf16_f32 {v(OX + t)}, {v(OD[t] + 9)}, {v(OD[t] + 10)}')
        for t in range(2):
            for k in range(4):
                g(f'v_pk_mul_f32 {v(OD[t] + 2 * k, 2)}, {v(OD[t] + 2 * k, 2)}, {v(RC[t], 2)} op_sel_hi:[1,0]')
            for k in range(4):
                g(f'v_cvt_pk_bf16_f32 {v(OP[t] + k)}, {v(OD[t] + 2 * k)}, {v(OD[t] + 2 * k + 1)}')
            g(f'buffer_store_dwordx4 {v(OP[t], 4)}, {v(20)}, {s(rWS, 4)}, {s(sOFB)} offen offset:{128 * t} sc1')
        g(f'v_permlane32_swap_b32 {v(OX)}, {v(OX + 1)}')
        g.setexec(0x0000ffff0000ffff)
        ho = g(f'buffer_store_dwordx2 {v(OX, 2)}, {v(21)}, {s(rWS, 4)}, {s(sOFB)} offen sc1')
        g.setexec(-1)
        g.stamp(23)
        NW1 = NW0 + g.opt.nw1
        for it in woit[NW0:NW1]:
            it()
        g(f's_lshl_b32 {s(T0)}, {s(sRB)}, 4')
        g(f's_add_u32 {s(T0)}, {s(T0)}, {s(sP)}')
        g(f's_lshl_b32 {s(T0)}, {s(T0)}, 7')
        g(f's_add_u32 {s(T0)}, {s(T0)}, {s(sFO)}')
        A2 = 48
        for k in range(10):
            get(68 + (k & 1), aKEEP + k)
            g.unpack(A2 + 2 * k, A2 + 2 * k + 1, 68 + (k & 1))
        g.stamp(24)
        g.wait_vm(ho)
        g.flag_local(T0)
        g.stamp(16)
        for it in woit[NW1:]:
            it()
        if g.opt.stop == 'o1':
            g.branch('s_branch', 'L_fin')
        YY = 78
        vWo1, vWo4, vWo5 = 6, 7, 8
        g(f'v_add_u32 {v(vWo1)}, {9 * 4608}, {v(vL16)}')
        get(vWo4, aW4)
        g(f'v_add_u32 {v(vWo5)}, {9 * 4608}, {v(vWo4)}')
        g(f'v_lshlrev_b32 {v(9)}, 8, {v(vG)}')
        g(f'v_lshl_add_u32 {v(9)}, {v(vI)}, 3, {v(9)}')

        def rdO(k, T):
            hi = k >= 9
            base = ((vL16, vWo1) if T < 4 else (vWo4, vWo5))[hi]
            off = (k - 9 * hi) * 4608 + (1024 * T if T < 4 else 0)
            g(f'ds_read_b128 {a(20 * (k % 3) + 4 * T, 4)}, {v(base)} offset:{off}')
        g(f'v_lshlrev_b32 {v(17)}, 7, {v(vI)}')
        g(f's_lshl_b32 {s(T0)}, {s(sRB2)}, 11')
        g(f's_add_u32 {s(T0)}, {s(T0)}, {s(sFO)}')
        g.poll([(18, 1, 17, s(T0), 0)], 0xffff, 7)
        g.stamp(17)
        OA = 112
        g(f's_lshl_b32 {s(T0)}, {s(sR64)}, 2')
        g(f's_add_u32 {s(T0)}, {s(T0)}, {s(sW)}')
        g(f's_mul_i32 {s(T0)}, {s(T0)}, 18432')
        g(f's_add_u32 {s(T0)}, {s(T0)}, {s(sOFB)}')
        def ldO(k):
            if k >= 18 or 'noload2' in g.opt.exp:
                return
            if k and k % 4 == 0:
                g(f's_add_u32 {s(T0)}, {s(T0)}, 4096')
            off = f' offset:{(k % 4) * 1024}' if k % 4 else ''
            if k < 16:
                g(f'buffer_load_dwordx4 {v(OA + 4 * k, 4)}, {v(vL16)}, {s(rWS, 4)}, {s(T0)} offen{off} sc1')
            else:
                for hf in range(2):
                    g(f'buffer_load_dwordx2 {v(OA + 4 * k + 2 * hf, 2)}, {v(9)}, {s(rWS, 4)}, {s(T0)} offen offset:{(k % 4) * 1024 + 128 * hf} sc1')
        NP2 = g.opt.np2
        for k in range(NP2):
            ldO(k)
        g.barrier()
        for k in range(2):
            for T in range(5):
                rdO(k, T)
        get(16, aX1)
        g(f's_mov_b32 {s(T2)}, {L.YP}')
        g(f's_mov_b32 {s(T3)}, {L.YP + 4096}')
        for k in range(18):
            for T in range(5):
                d = v(A2 + 4 * T, 4)
                g.mfma(d, a(20 * (k % 3) + 4 * T, 4), v(OA + 4 * k, 4), d)
                if k + 2 < 18:
                    rdO(k + 2, T)
                if T == 0:
                    ldO(NP2 + k)
                    if 12 <= k < 17:
                        Ty = k - 12
                        g(f'buffer_load_dwordx2 {v(YY + 2 * Ty, 2)}, {v(16)}, {s(rWS, 4)}, {s(T2 if Ty < 4 else T3)} offen offset:{1024 * (Ty & 3)} sc1')
        g.stamp(18)
        g(f's_cmp_lg_u32 {s(sLAY)}, 0')
        g.branch('s_cbranch_scc1', 'L_last')
        sDL, sDG = T4, T5
        UX = 112
        g.setexec(0xffffffff00000000)
        g(f'v_mov_b64 {v(A2 + 16, 2)}, 0')
        g(f'v_mov_b64 {v(A2 + 18, 2)}, 0')
        g.setexec(-1)
        SS, SQ = 8, 10
        g(f'v_pk_add_f32 {v(SS, 2)}, {v(A2, 2)}, {v(A2 + 2, 2)}')
        g(f'v_pk_mul_f32 {v(SQ, 2)}, {v(A2, 2)}, {v(A2, 2)}')
        g(f'v_pk_fma_f32 {v(SQ, 2)}, {v(A2 + 2, 2)}, {v(A2 + 2, 2)}, {v(SQ, 2)}')
        for k in range(2, 10):
            g(f'v_pk_add_f32 {v(SS, 2)}, {v(SS, 2)}, {v(A2 + 2 * k, 2)}')
            g(f'v_pk_fma_f32 {v(SQ, 2)}, {v(A2 + 2 * k, 2)}, {v(A2 + 2 * k, 2)}, {v(SQ, 2)}')
        SP = 12
        g(f'v_add_f32 {v(SP)}, {v(SS)}, {v(SS + 1)}')
        g(f'v_add_f32 {v(SP + 1)}, {v(SQ)}, {v(SQ + 1)}')
        get(16, aSTP)
        g(f'v_mov_b32 {v(SP + 3)}, {v(vTAG)}')
        g(f'v_mov_b32 {v(SP + 2)}, 0')
        g.xg_sum2(SP, SP + 1, 17)
        g.setexec(0xffff)
        hs = g.store_local(f'buffer_store_dwordx4 {v(SP, 4)}, {v(16)}, {s(rWS, 4)}, 0 offen')
        g.setexec(-1)
        g(f's_mul_i32 {s(sDL)}, {s(sW)}, {23 * 1024}')
        g(f's_mul_i32 {s(sDG)}, {s(sP)}, {L.WPSZ}')
        g(f's_add_u32 {s(sDG)}, {s(sDG)}, {s(sDL)}')
        g(f's_add_u32 {s(sDG)}, {s(sDG)}, {L.WP}')
        g.barrier()
        g.dma(sDL, sDG, 8)
        UY = 132
        for T in range(5):
            for d in range(2):
                g.unpack(UY + 4 * T + 2 * d, UY + 4 * T + 2 * d + 1, YY + 2 * T + d)
        get(16, aSTG)
        g(f's_movk_i32 {s(T0)}, 4096')
        g.wait_vm(hs)
        g.stamp(19)
        SA, SB = 20, 24
        g.poll([(SA, 4, 16, '0', 0), (SB, 4, 16, s(T0), 0)], -1, 8)
        g.stamp(20)
        g(f'v_pk_add_f32 {v(SA, 2)}, {v(SA, 2)}, {v(SB, 2)}')
        g.xg_sum2(SA, SA + 1, 17)
        g.ln_coef(SA, SA + 1, 8, 10)
        for k in range(10):
            g(f'v_pk_fma_f32 {v(UX + 2 * k, 2)}, {v(A2 + 2 * k, 2)}, {v(8, 2)}, {v(10, 2)} op_sel_hi:[1,0,0]')
        X3 = 28
        for k in range(10):
            g(f'v_pk_fma_f32 {v(UX + 2 * k, 2)}, {v(UX + 2 * k, 2)}, {v(UY + 2 * k, 2)}, {v(A2 + 2 * k, 2)}')
        for k in range(10):
            g(f'v_cvt_pk_bf16_f32 {v(X3 + k)}, {v(UX + 2 * k)}, {v(UX + 2 * k + 1)}')
        for k in range(5):
            g(f'v_mov_b64 {v(UY + 2 * k, 2)}, {v(X3 + 2 * k, 2)}')
        get(16, aX3)
        g(f's_mov_b32 {s(T0)}, {L.X3P}')
        g(f's_mov_b32 {s(T1)}, {L.X3P + 4096}')
        for pr in range(3):
            b = X3 + 4 * pr
            if pr < 2:
                g(f'v_mov_b64 {v(18, 2)}, {v(b, 2)}')
                for d in range(2):
                    g(f'v_mov_b32_dpp {v(b + d)}, {v(b + 2 + d)} row_ror:8 row_mask:0xf bank_mask:0xc')
                for d in range(2):
                    g(f'v_mov_b32_dpp {v(b + 2 + d)}, {v(18 + d)} row_ror:8 row_mask:0xf bank_mask:0x3')
                hx = g(f'buffer_store_dwordx4 {v(b, 4)}, {v(16)}, {s(rWS, 4)}, {s(T0)} offen offset:{2048 * pr} sc1')
            else:
                g(f'v_mov_b64 {v(b + 2, 2)}, 0')
                for d in range(2):
                    g(f'v_mov_b32_dpp {v(b + 2 + d)}, {v(b + d)} row_ror:8 row_mask:0xf bank_mask:0x3')
                g.setexec(0x00ff00ff)
                hx = g(f'buffer_store_dwordx4 {v(b, 4)}, {v(16)}, {s(rWS, 4)}, {s(T1)} offen sc1')
                g.setexec(-1)
        g(f's_add_u32 {s(sDL)}, {s(sDL)}, 4096')
        g(f's_add_u32 {s(sDG)}, {s(sDG)}, 4096')
        g.dma(sDL, sDG, 8)
        g.fx_off(T0, T1)
        for k in range(10):
            keep(aKEEP + k, UY + k)
        g.wait_vm(hx)
        g.flag_local(T0)
        g.stamp(21)
        g(f's_add_u32 {s(sDL)}, {s(sDL)}, 4096')
        g(f's_add_u32 {s(sDG)}, {s(sDG)}, 4096')
        g.dma(sDL, sDG, 7)
        if g.opt.stop == 'x3':
            g.branch('s_branch', 'L_fin')
        g(f's_mov_b32 {s(sLAY)}, 1')
        g(f's_mul_i32 {s(sXP)}, {s(sRB)}, 36864')
        g(f's_add_u32 {s(sXP)}, {s(sXP)}, {L.X3P}')
        g(f's_add_u32 {s(sOFB)}, {s(sOFB)}, {L.ARR}')
        g(f's_add_u32 {s(sKV1)}, {s(sKV1)}, {256 * 4096}')
        g(f's_add_u32 {s(sKV2)}, {s(sKV2)}, {16 * 4096}')
        g(f's_add_u32 {s(sFO)}, {s(sFO)}, {1024 * 128}')
        g(f'v_lshlrev_b32 {v(17)}, 7, {v(vI)}')
        g(f's_lshl_b32 {s(T0)}, {s(sRB)}, 11')
        g(f's_add_u32 {s(T0)}, {s(T0)}, {L.FX}')
        g.poll([(18, 1, 17, s(T0), 0)], 0xffff, 9)
        if g.opt.stamps:
            g(f'v_accvgpr_read_b32 v47, a255')
            g(f'v_accvgpr_write_b32 a254, v47')
        assert not g.vm and not g.lg
        g.branch('s_branch', 'L_layer')
        g.label('L_last')
        g.vm, g.lg = [], []
        get(16, aOUT)
        for k in range(10):
            g(f'v_cvt_pk_bf16_f32 {v(X3 + k)}, {v(A2 + 2 * k)}, {v(A2 + 2 * k + 1)}')
        g(f'v_mov_b64 {v(X3 + 10, 2)}, 0')
        for pr in range(3):
            b = X3 + 4 * pr
            g(f'v_permlane16_swap_b32 {v(b)}, {v(b + 2)}')
            g(f'v_permlane16_swap_b32 {v(b + 1)}, {v(b + 3)}')
            if pr == 2:
                g.setexec(0xffff)
            g(f'buffer_store_dwordx4 {v(b, 4)}, {v(16)}, {s(rOUT, 4)}, 0 offen offset:{64 * pr}{" sc1" if g.opt.outsc1 else ""}')
        g.setexec(-1)
        g.stamp(22)
        g.stamp(31, True)

    def finish(self):
        g = self
        g.label('L_fin')
        g.vm, g.lg = [], []
        if g.opt.stamps:
            g(f's_lshl_b32 {s(T0)}, {s(sWG)}, 2')
            g(f's_add_u32 {s(T0)}, {s(T0)}, {s(sW)}')
            g(f's_lshl_b32 {s(T0)}, {s(T0)}, 8')
            g(f's_add_u32 {s(T0)}, {s(T0)}, {L.STAMP}')
            g('v_accvgpr_read_b32 v6, a255')
            g('v_accvgpr_read_b32 v7, a254')
            g(f'v_lshlrev_b32 v8, 2, {v(vLANE)}')
            g.setexec(0xffffffff)
            g(f'buffer_store_dword v6, v8, {s(rWS, 4)}, {s(T0)} offen offset:128')
            g(f'buffer_store_dword v7, v8, {s(rWS, 4)}, {s(T0)} offen')
            g.setexec(-1)
        g(f's_or_b32 {s(T0)}, {s(sWG)}, {s(sW)}')
        g(f's_cmp_lg_u32 {s(T0)}, 0')
        with g.skip_if('s_cbranch_scc1'):
            g(f's_mov_b32 {s(T0)}, {L.E}')
            g.flag_store(T0)
        g.label('L_end')
        g('s_endpgm')

    def build(self):
        g = self
        g.prologue()
        st = g.state()
        g(f's_cmp_ge_u32 {s(sWG)}, 208')
        g.branch('s_cbranch_scc1', 'L_role_w')
        g(f's_cmp_ge_u32 {s(sWG)}, 144')
        g.branch('s_cbranch_scc1', 'L_role_q')
        g.vtmp_stamp = 250
        g.role_conv()
        g.vtmp_stamp = 47
        stc, lf = g.state(), g.last_flag
        with g.skip_if('s_cbranch_scc0'):
            g.w_wait()
        g.w_rest()
        stc = g.state()
        g.branch('s_branch', 'L_main')
        g.label('L_role_q')
        g.set_state(st)
        g.role_q()
        g.branch('s_branch', 'L_main_nc')
        g.label('L_role_w')
        g.set_state(st)
        g.role_w()
        g.vtmp_stamp = 47
        g.label('L_main_nc')
        g.vm, g.lg = [], []
        g.consts(0)
        g.clears()
        g.w_dma_setup()
        g.w_wait()
        g.w_rest()
        if 'dirty' in g.opt.exp:
            g(f's_lshl_b32 {s(T0)}, {s(sWG)}, 2')
            g(f's_add_u32 {s(T0)}, {s(T0)}, {s(sW)}')
            g(f's_lshl_b32 {s(T0)}, {s(T0)}, 14')
            g(f's_add_u32 {s(T0)}, {s(T0)}, {L.WSSZ - 144 * 65536}')
            g(f's_mov_b32 {s(rWS + 2)}, {L.WSSZ + 112 * 65536}')
            for i in range(16):
                g(f'buffer_store_dwordx4 {v(2, 4)}, {v(vL16)}, {s(rWS, 4)}, {s(T0)} offen{" sc1" if "dirtysc" in g.opt.exp else ""}')
                g(f's_add_u32 {s(T0)}, {s(T0)}, 1024')
        g.sentinel_wait()
        g.label('L_main')
        g.set_state(stc)
        g.last_flag = lf if g.opt.fcwait else None
        g.main()
        g.finish()


HEADER = '''; Persistent single-launch kernel: H3 long-conv (MFMA Hankel form) + two Hedgehog linear-attention layers.
; @launch grid=(256,1,1) block=(256,1,1) lds={lds}
.amdgcn_target "amdgcn-amd-amdhsa--gfx950"
.text
.globl {name}_kernel
.p2align 8
.type {name}_kernel,@function
{name}_kernel:
'''
FOOTER = '''.section .rodata,"a"
.p2align 6
.amdhsa_kernel {name}_kernel
  .amdhsa_next_free_vgpr 512
  .amdhsa_next_free_sgpr 102
  .amdhsa_accum_offset 256
  .amdhsa_group_segment_fixed_size 0
  .amdhsa_kernarg_size 104
  .amdhsa_user_sgpr_count 2
  .amdhsa_user_sgpr_kernarg_segment_ptr 1
  .amdhsa_system_sgpr_workgroup_id_x 1
  .amdhsa_float_denorm_mode_32 3
.end_amdhsa_kernel
'''


def generate(opt):
    k = K(opt)
    k.build()
    sys.stderr.write(f'instructions {k.stats["n"]} nop-states {k.stats["nop"]} maxv {k.maxv} maxa {k.maxa} maxs {k.maxs}\n')
    return HEADER.format(name=NAME, lds=L.LDS_SIZE) + k.text() + FOOTER.format(name=NAME)


if __name__ == '__main__':
    ap = argparse.ArgumentParser()
    ap.add_argument('-o', default=f'cdna_kernels/{NAME}.s')
    ap.add_argument('--stamps', action='store_true')
    ap.add_argument('--dbg', action='store_true')
    ap.add_argument('--stop', default='')
    ap.add_argument('--prewait', type=int, default=1)
    ap.add_argument('--sleep', type=int, default=0)
    ap.add_argument('--exp', default='')
    ap.add_argument('--outsc1', type=int, default=0)
    ap.add_argument('--h1at', type=int, default=11)
    ap.add_argument('--nw0', type=int, default=5)
    ap.add_argument('--nw1', type=int, default=8)
    ap.add_argument('--clear', type=int, default=1)
    ap.add_argument('--dmask', type=int, default=1)
    ap.add_argument('--dwho', default='qw')
    ap.add_argument('--sentinel', type=int, default=1)
    ap.add_argument('--wcnt', type=lambda x: [int(c) for c in x], default='344556')
    ap.add_argument('--fcwait', type=int, default=0)
    ap.add_argument('--fast', type=int, default=1)
    ap.add_argument('--npre', type=int, default=8)
    ap.add_argument('--np2', type=int, default=8)
    ap.add_argument('--wo_every', type=int, default=13)
    opt = ap.parse_args()
    open(opt.o, 'w').write(generate(opt))
```

```python
import sys
import argparse
from asmgen import Gen, v, a, s
import layout as L

NAME = 'interleave_layers__ssm_conv_h3__linear_kernel_hedgehog__prompt'

sWG, sW, sTAG = 2, 3, 4
T0, T1, T2, T3, T4, T5, T6, T7 = 5, 6, 7, 8, 9, 10, 11, 12
pQ, pK, pV, pSH, pSK, pSD, pBX, pWQ = 16, 18, 20, 22, 24, 26, 28, 30
pPH, pWO, pOUT, pDBG, pWS = 32, 34, 36, 38, 40
sCNT, sLAY = 42, 43
rWS, rA, rB, rC, rD, rOUT = 44, 48, 52, 56, 60, 64
sR128, sP, sR64, sCG, sRB, sRB2 = 68, 69, 70, 71, 72, 73
sM0, sM1, sM2, sM3 = 74, 76, 78, 80
sMA, sMB = 82, 84
sXP, sOFB, sKV1, sKV2, sFO = 86, 87, 88, 89, 90
sBL, sBG = 91, 92
sINC, sOB, sWB = 95, 96, 97
sFAST, sXCC = 13, 14
sSTP = 98
vTID, vLANE, vI, vG, vL16, vTAG = 0, 1, 2, 3, 4, 5
aSCW, aPA0, aPB, aKVS, aH1, aH2, aKT, aOA0, aOS, aOE = 200, 201, 204, 205, 206, 207, 208, 209, 212, 213
aX1, aSTP, aSTG, aX3, aOUT, aW4 = 214, 215, 216, 217, 218, 219
aKVS2, aH3, aWP, aKZ, aFC = 220, 221, 222, 223, 224
aKEEP = 240
aJUNK = 230
POLL_LIMIT = 40000
MASKHI = '0xffff0000'


class K(Gen):
    def __init__(self, opt):
        super().__init__()
        self.opt = opt
        self.nstamp = 0
        self.last_flag = None

    def srd(self, r, ptr, size):
        self(f's_mov_b64 {s(r, 2)}, {s(ptr, 2)}')
        self(f's_mov_b32 {s(r + 2)}, {size}')
        self(f's_mov_b32 {s(r + 3)}, 0x20000')

    def stamp(self, k, cyc=False):
        if not self.opt.stamps:
            return
        self(f's_memtime {s(sSTP, 2)}' if cyc else f's_memrealtime {s(sSTP, 2)}')
        self.drain(vm=False)
        self(f'v_accvgpr_read_b32 v{self.vtmp_stamp}, a255')
        self(f'v_writelane_b32 v{self.vtmp_stamp}, {s(sSTP)}, {k}')
        self(f'v_accvgpr_write_b32 a255, v{self.vtmp_stamp}')

    vtmp_stamp = 47

    def unpack(self, dlo, dhi, src):
        self(f'v_lshlrev_b32 {v(dlo)}, 16, {v(src)}')
        self(f'v_and_b32 {v(dhi)}, {MASKHI}, {v(src)}')

    def make_tag(self):
        self(f'v_readfirstlane_b32 {s(sTAG)}, {v(vTAG)}')
        self(f's_mul_i32 {s(sTAG)}, {s(sTAG)}, {hex(L.TAGA)}')
        self(f's_add_u32 {s(sTAG)}, {s(sTAG)}, {hex(L.TAGC)}')
        self(f's_or_b32 {s(sTAG)}, {s(sTAG)}, 1')
        self(f'v_mov_b32 {v(vTAG)}, {s(sTAG)}')

    def setexec(self, m):
        if isinstance(m, int):
            m &= (1 << 64) - 1
            lo, hi = m & 0xffffffff, m >> 32
            if m == (1 << 64) - 1:
                self('s_mov_b64 exec, -1')
            elif hi == 0 and lo <= 64:
                self(f's_mov_b64 exec, {lo}')
            else:
                self(f's_mov_b32 exec_lo, {hex(lo)}')
                self(f's_mov_b32 exec_hi, {hex(hi)}')
        else:
            self(f's_mov_b64 exec, {m}')

    def flag_store(self, soff):
        self.setexec(0xff)
        h = self(f'buffer_store_dwordx4 {v(vTAG - 3, 4)}, {v(vL16)}, {s(rWS, 4)}, {s(soff)} offen sc1')
        self.setexec(-1)
        self.last_flag = h
        return h

    def store_local(self, text):
        if not self.opt.fast:
            return self(text + ' sc1')
        l1, l2 = self.newlabel('far'), self.newlabel('join')
        self(f's_cmp_eq_u32 {s(sFAST)}, 0')
        self.branch('s_cbranch_scc1', l1)
        st = self.state()
        self(text)
        self.branch('s_branch', l2)
        self.label(l1)
        self.set_state(st)
        h = self(text + ' sc1')
        self.label(l2)
        return h

    def flag_local(self, soff):
        self.setexec(0xff)
        h = self.store_local(f'buffer_store_dwordx4 {v(vTAG - 3, 4)}, {v(vL16)}, {s(rWS, 4)}, {s(soff)} offen')
        self.setexec(-1)
        self.last_flag = h
        return h

    def hello(self):
        g = self
        if not g.opt.fast:
            return
        g(f's_getreg_b32 {s(sXCC)}, hwreg(HW_REG_XCC_ID, 0, 4)')
        g(f's_cmp_lg_u32 {s(sW)}, 0')
        with g.skip_if('s_cbranch_scc1'):
            g(f's_lshl_b32 {s(T0)}, {s(sR128)}, 4')
            g(f's_add_u32 {s(T0)}, {s(T0)}, {s(sP)}')
            g(f's_lshl_b32 {s(T0)}, {s(T0)}, 7')
            g(f's_add_u32 {s(T0)}, {s(T0)}, {L.FH}')
            g(f'v_mov_b32 {v(186)}, {s(sXCC)}')
            g(f'v_mov_b32 {v(187)}, {v(vTAG)}')
            g.setexec(0xff)
            g(f'buffer_store_dwordx4 {v(184, 4)}, {v(vL16)}, {s(rWS, 4)}, {s(T0)} offen sc1')
            g.setexec(-1)

    def poll(self, loads, mask, code):
        lp, done = self.newlabel('poll'), self.newlabel('polld')
        if self.opt.prewait:
            self.wait_vm(self.last_flag)
        self.setexec(mask)
        self(f's_mov_b32 {s(sCNT)}, {POLL_LIMIT}')
        self.label(lp)
        for dst, n, voff, soff, imm in loads:
            op = {1: 'buffer_load_dword', 4: 'buffer_load_dwordx4'}[n]
            imm += 12 if n == 1 else 0
            off = f' offset:{imm}' if imm else ''
            self(f'{op} {v(dst, n)}, {v(voff)}, {s(rWS, 4)}, {soff} offen{off} sc1')
        self.drain(lg=False)
        dst, n = loads[0][:2]
        self(f'v_cmp_ne_u32 vcc, {s(sTAG)}, {v(dst + n - 1)}')
        for dst, n, *_ in loads[1:]:
            self(f'v_cmp_ne_u32 {s(sMA, 2)}, {s(sTAG)}, {v(dst + n - 1)}')
            self(f's_or_b64 vcc, vcc, {s(sMA, 2)}')
        self.branch('s_cbranch_vccz', done)
        self('s_mov_b64 exec, vcc')
        if self.opt.sleep:
            self(f's_sleep {self.opt.sleep}')
        self(f's_sub_u32 {s(sCNT)}, {s(sCNT)}, 1')
        self.branch('s_cbranch_scc0', lp)
        if self.opt.dbg:
            self.srd(rD, pDBG, 256)
            self(f'v_mov_b32 v{self.vtmp_stamp}, {code + 1}')
            self(f'buffer_store_dword v{self.vtmp_stamp}, off, {s(rD, 4)}, 0 offset:{4 * code}')
            self.drain(lg=False)
        self.label(done)
        self.setexec(-1)

    def dma(self, lds_base_s, soff_s, n, voff=vL16, srd=rWS, sc1=True):
        h = None
        for i in range(n):
            if i % 4 == 0:
                if i:
                    self(f's_add_u32 {s(lds_base_s)}, {s(lds_base_s)}, 4096')
                    self(f's_add_u32 {s(soff_s)}, {s(soff_s)}, 4096')
                self(f's_mov_b32 m0, {s(lds_base_s)}')
            off = f' offset:{(i % 4) * 1024}' if i % 4 else ''
            h = self(f'buffer_load_dwordx4 {v(voff)}, {s(srd, 4)}, {s(soff_s)} offen{off}{" sc1" if sc1 else ""} lds')
        return h

    def dma_items(self, n, voff=vL16, srd=rWS, sc1=True, stride=4096, gate=None):
        def item(i):
            def f():
                if i % 4 == 0:
                    self(f's_mov_b32 m0, {s(sBL)}')
                off = f' offset:{(i % 4) * 1024}' if i % 4 else ''
                if gate is not None:
                    self.setexec(s(gate, 2))
                    self.cond_depth += 1
                self.last_dma = self(f'buffer_load_dwordx4 {v(voff)}, {s(srd, 4)}, {s(sBG)} offen{off}{" sc1" if sc1 else ""} lds')
                if gate is not None:
                    self.cond_depth -= 1
                    self.setexec(-1)
                if i % 4 == 3:
                    self(f's_add_u32 {s(sBL)}, {s(sBL)}, {stride}')
                    self(f's_add_u32 {s(sBG)}, {s(sBG)}, {stride}')
            return f
        return [item(i) for i in range(n)]

    def poll_issue(self, dst, voff, soff, mask):
        self.setexec(mask)
        self(f'buffer_load_dword {v(dst)}, {v(voff)}, {s(rWS, 4)}, {soff} offen offset:12 sc1')
        self.setexec(-1)

    def poll_finish(self, dst, voff, soff, mask, code, n=1):
        if mask != -1:
            self.setexec(mask)
        self(f'v_cmp_ne_u32 vcc, {s(sTAG)}, {v(dst + n - 1)}')
        if mask != -1:
            self.setexec(-1)
        with self.skip_if('s_cbranch_vccz'):
            self.poll([(dst, n, voff, soff, 0)], 'vcc', code)

    def xg_sum2(self, x, y, t):
        self(f'v_permlane16_swap_b32 {v(x)}, {v(y)}')
        self(f'v_add_f32 {v(x)}, {v(x)}, {v(y)}')
        self(f'v_mov_b32 {v(y)}, {v(x)}')
        self(f'v_permlane32_swap_b32 {v(x)}, {v(y)}')
        self(f'v_add_f32 {v(x)}, {v(x)}, {v(y)}')
        self(f'v_mov_b32 {v(y)}, {v(x)}')
        self(f'v_permlane16_swap_b32 {v(x)}, {v(y)}')

    def mfma(self, d, A, B, c):
        self(f'v_mfma_f32_16x16x32_bf16 {d}, {A}, {B}, {c}')

    def prologue(self):
        g = self
        g(f's_cmp_ge_u32 {s(sWG)}, 256')
        g.branch('s_cbranch_scc1', 'L_end')
        g(f's_load_dwordx16 {s(16, 16)}, s[0:1], 0')
        g(f's_load_dwordx8 {s(32, 8)}, s[0:1], 64')
        g(f's_load_dwordx2 {s(40, 2)}, s[0:1], 96')
        g(f'v_lshrrev_b32 v6, 6, {v(vTID)}')
        g(f'v_and_b32 {v(vLANE)}, 63, {v(vTID)}')
        g(f'v_readfirstlane_b32 {s(sW)}, v6')
        g(f'v_and_b32 {v(vI)}, 15, {v(vTID)}')
        g(f'v_lshrrev_b32 {v(vG)}, 4, {v(vLANE)}')
        g(f'v_lshlrev_b32 {v(vL16)}, 4, {v(vLANE)}')
        if g.opt.stamps:
            g('v_accvgpr_write_b32 a255, 0')
        g.srd(rWS, pWS, L.WSSZ)
        g(f'buffer_load_dword {v(vTAG)}, off, {s(rWS, 4)}, 0 offset:12 sc1')
        g.stamp(0)
        g.stamp(30, True)
        g(f's_and_b32 {s(T0)}, {s(sWG)}, 7')
        g(f's_lshr_b32 {s(T1)}, {s(sWG)}, 7')
        g(f's_lshl_b32 {s(T0)}, {s(T0)}, 1')
        g(f's_add_u32 {s(sR128)}, {s(T0)}, {s(T1)}')
        g(f's_bfe_u32 {s(sP)}, {s(sWG)}, 0x40003')
        g(f's_lshr_b32 {s(T0)}, {s(sP)}, 3')
        g(f's_lshl_b32 {s(sR64)}, {s(sR128)}, 1')
        g(f's_add_u32 {s(sR64)}, {s(sR64)}, {s(T0)}')
        g(f's_and_b32 {s(sCG)}, {s(sP)}, 7')
        g(f's_lshl_b32 {s(sRB)}, {s(sR128)}, 2')
        g(f's_add_u32 {s(sRB)}, {s(sRB)}, {s(sW)}')
        g(f's_lshr_b32 {s(T0)}, {s(sW)}, 1')
        g(f's_lshl_b32 {s(sRB2)}, {s(sR64)}, 1')
        g(f's_add_u32 {s(sRB2)}, {s(sRB2)}, {s(T0)}')
        g.srd(rOUT, pOUT, L.ARR)

    def role_conv(self):
        g = self
        vOK, vOA, vO2 = 6, 7, 48
        RK, RV, RW = 8, 30, 50
        UK, UW, UV, KS, OUT = 58, 102, 118, 150, 156
        sGam, sMu, sCh, sLB = T4, T5, T6, T7
        g.srd(rA, pK, L.ARR)
        g.srd(rB, pV, L.ARR)
        g.srd(rD, pSH, 576 * 8)
        g(f's_lshr_b32 {s(sGam)}, {s(sWG)}, 4')
        g(f's_and_b32 {s(sMu)}, {s(sWG)}, 15')
        g(f's_lshl_b32 {s(T0)}, {s(sMu)}, 7')
        g(f's_lshl_b32 {s(T1)}, {s(sW)}, 5')
        g(f's_add_u32 {s(T0)}, {s(T0)}, {s(T1)}')
        g(f's_mul_i32 {s(T1)}, {s(T0)}, 1152')
        g(f's_lshl_b32 {s(T2)}, {s(sGam)}, 7')
        g(f's_add_u32 {s(T1)}, {s(T1)}, {s(T2)}')
        g(f'v_mul_u32_u24 {v(vOK)}, 9216, {v(vG)}')
        g(f'v_lshl_add_u32 {v(vOK)}, {v(vI)}, 3, {v(vOK)}')
        g(f'v_add_u32 {v(vOK)}, {s(T1)}, {v(vOK)}')
        g(f'v_subrev_u32 {v(vOA)}, 3456, {v(vOK)}')
        g(f's_lshl_b32 {s(T2)}, {s(sGam)}, 9')
        g(f'v_lshlrev_b32 {v(vO2)}, 5, {v(vI)}')
        g(f's_movk_i32 {s(T3)}, 4608')
        g(f'buffer_load_dwordx4 {v(RW, 4)}, {v(vO2)}, {s(rD, 4)}, {s(T2)} offen')
        g(f'buffer_load_dwordx4 {v(RW + 4, 4)}, {v(vO2)}, {s(rD, 4)}, {s(T2)} offen offset:16')
        for j in range(11):
            if j < 3:
                g(f'buffer_load_dwordx2 {v(RK + 2 * j, 2)}, {v(vOA)}, {s(rA, 4)}, 0 offen offset:{1152 * j}')
            else:
                jj = j - 3
                so = '0' if jj < 4 else s(T3)
                g(f'buffer_load_dwordx2 {v(RK + 2 * j, 2)}, {v(vOK)}, {s(rA, 4)}, {so} offen offset:{1152 * (jj % 4)}')
        for j in range(8):
            so = '0' if j < 4 else s(T3)
            g(f'buffer_load_dwordx2 {v(RV + 2 * j, 2)}, {v(vOK)}, {s(rB, 4)}, {so} offen offset:{1152 * (j % 4)}')
        vK0, vDv, vS2 = 46, 172, 49
        g.srd(rC, pSK, L.ARR)
        g(f's_lshl_b32 {s(sCh)}, {s(sWG)}, 2')
        g(f's_add_u32 {s(sCh)}, {s(sCh)}, {s(sW)}')
        g(f's_mul_i32 {s(sLB)}, {s(sW)}, {L.CONVW}')
        g(f's_add_u32 {s(sLB)}, {s(sLB)}, {L.L_CONV}')
        g(f's_lshl_b32 {s(T2)}, {s(sCh)}, 12')
        g(f'v_lshlrev_b32 {v(vS2)}, 6, {v(vLANE)}')
        g(f'buffer_load_ushort {v(vK0)}, {v(vS2)}, {s(rC, 4)}, {s(T2)} offen')
        g.srd(rD, pSD, 1152)
        g(f's_lshl_b32 {s(T2)}, {s(sCh)}, 1')
        g(f'buffer_load_ushort {v(vDv)}, off, {s(rD, 4)}, {s(T2)}')
        g(f's_lshl_b32 {s(T2)}, {s(sCh)}, 7')
        g(f's_add_u32 {s(T2)}, {s(T2)}, {L.FT}')
        g.clear_line(T2)
        vOU = vOA
        g(f's_lshl_b32 {s(T2)}, {s(sGam)}, 18')
        g(f's_lshl_b32 {s(T0)}, {s(T0)}, 1')
        g(f's_sub_u32 {s(T2)}, {s(T2)}, {s(T0)}')
        g(f's_add_u32 {s(T2)}, {s(T2)}, {L.UR + 4080}')
        g(f'v_lshlrev_b32 {v(vOU)}, 14, {v(vI)}')
        g(f'v_lshlrev_b32 {v(vO2)}, 4, {v(vG)}')
        g(f'v_sub_u32 {v(vOU)}, {v(vOU)}, {v(vO2)}')
        g(f'v_add_u32 {v(vOU)}, {s(T2)}, {v(vOU)}')
        g.touch_pages()
        g.consts(180)
        for cc in range(4):
            for dd in range(2):
                b = UW + 8 * (cc >> 1) + (cc & 1)
                g.unpack(b + 4 * dd, b + 4 * dd + 2, RW + 2 * cc + dd)
        g.stamp(1)
        for j in range(11):
            for P in range(2):
                g.unpack(UK + 4 * j + 2 * P, UK + 4 * j + 2 * P + 1, RK + 2 * j + P)
        for j in range(8):
            for P in range(2):
                g.unpack(UV + 4 * j + 2 * P, UV + 4 * j + 2 * P + 1, RV + 2 * j + P)
            for P in range(2):
                g(f'v_pk_mul_f32 {v(KS + 2 * P, 2)}, {v(UK + 4 * (j + 3) + 2 * P, 2)}, {v(UW + 8 * P, 2)}')
            for aa in range(1, 4):
                for P in range(2):
                    g(f'v_pk_fma_f32 {v(KS + 2 * P, 2)}, {v(UK + 4 * (j + 3 - aa) + 2 * P, 2)}, {v(UW + 8 * P + 2 * aa, 2)}, {v(KS + 2 * P, 2)}')
            for P in range(2):
                g(f'v_pk_mul_f32 {v(UV + 4 * j + 2 * P, 2)}, {v(UV + 4 * j + 2 * P, 2)}, {v(KS + 2 * P, 2)}')
        for cc in range(4):
            for d in range(4):
                g(f'v_cvt_pk_bf16_f32 {v(OUT + 4 * cc + d)}, {v(UV + 4 * (7 - 2 * d) + cc)}, {v(UV + 4 * (6 - 2 * d) + cc)}')
            g(f's_movk_i32 {s(T2)}, {4096 * cc}')
            g(f'buffer_store_dwordx4 {v(OUT + 4 * cc, 4)}, {v(vOU)}, {s(rWS, 4)}, {s(T2)} offen sc1')
        g.make_tag()
        g(f's_lshl_b32 {s(T3)}, {s(sCh)}, 7')
        g(f's_add_u32 {s(T3)}, {s(T3)}, {L.FT}')
        g(f'v_add_u32 {v(vS2)}, 2, {v(vL16)}')
        g(f'v_readfirstlane_b32 {s(T1)}, {v(vK0)}')
        g.drain(lg=False)
        g.flag_store(T3)
        g.stamp(2)
        g(f's_lshl_b32 {s(T2)}, {s(sCh)}, 12')
        g(f's_add_u32 {s(T3)}, {s(sLB)}, {4608 + 32}')
        g.dma(T3, T2, 4, srd=rC, sc1=False)
        g(f's_add_u32 {s(T3)}, {s(sLB)}, {4608 + 4160 + 32}')
        hK = g.dma(T3, T2, 4, voff=vS2, srd=rC, sc1=False)
        g(f'v_mov_b32 {v(vK0)}, {s(T1)}')
        if g.opt.clear:
            g(f'v_mov_b64 {v(176, 2)}, 0')
            g(f'v_mov_b64 {v(178, 2)}, 0')
            g(f's_mul_i32 {s(T3)}, {s(sW)}, 144')
            g(f's_add_u32 {s(T3)}, {s(T3)}, {s(sWG)}')
            g(f's_lshl_b32 {s(T3)}, {s(T3)}, 7')
            g(f's_add_u32 {s(T3)}, {s(T3)}, {L.FC}')
            g.setexec(0xff)
            g(f'buffer_store_dwordx4 {v(176, 4)}, {v(vL16)}, {s(rWS, 4)}, {s(T3)} offen sc1')
            g.setexec(-1)
        g.clears()
        vT, vZ, vUB, vKA = 6, 8, 10, 12
        g(f'v_mov_b64 {v(vZ, 2)}, 0')
        g(f'v_lshl_add_u32 {v(vT)}, {v(vLANE)}, 3, {s(sLB)}')
        g(f'ds_write_b64 {v(vT)}, {v(vZ, 2)} offset:4096')
        g(f'v_and_b32 {v(vT)}, 7, {v(vLANE)}')
        g(f'v_lshrrev_b32 {v(vT + 1)}, 3, {v(vLANE)}')
        g(f'v_mul_u32_u24 {v(vT + 1)}, 4160, {v(vT + 1)}')
        g(f'v_lshl_add_u32 {v(vT)}, {v(vT)}, 2, {v(vT + 1)}')
        g(f'v_add_u32 {v(vT)}, {s(sLB)}, {v(vT)}')
        g(f'v_lshlrev_b32 {v(vK0)}, 16, {v(vK0)}')
        g(f'v_cmp_eq_u32 vcc, 15, {v(vLANE)}')
        g(f'v_cndmask_b32 {v(vK0)}, 0, {v(vK0)}, vcc')
        g.setexec(0xffff)
        g(f'ds_write_b32 {v(vT)}, {v(vK0)} offset:4608')
        g.setexec(-1)
        g(f'v_lshlrev_b32 {v(vT)}, 5, {v(vI)}')
        g(f'v_lshlrev_b32 {v(vT + 1)}, 4, {v(vG)}')
        g(f'v_sub_u32 {v(vUB)}, {v(vT + 1)}, {v(vT)}')
        g(f's_add_u32 {s(T2)}, {s(sLB)}, 480')
        g(f'v_add_u32 {v(vUB)}, {s(T2)}, {v(vUB)}')
        g(f'v_and_b32 {v(vT)}, 1, {v(vI)}')
        g(f'v_cmp_eq_u32 vcc, 1, {v(vT)}')
        g(f'v_mov_b32 {v(vKA + 1)}, 4160')
        g(f'v_cndmask_b32 {v(vKA)}, {v(vKA + 1)}, 2, vcc' if False else f'v_mov_b32 {v(vKA + 2)}, 2')
        g(f'v_cndmask_b32 {v(vKA)}, {v(vKA + 1)}, {v(vKA + 2)}, vcc')
        g(f'v_lshl_add_u32 {v(vKA)}, {v(vI)}, 1, {v(vKA)}')
        g(f'v_add_u32 {v(vKA)}, {v(vT + 1)}, {v(vKA)}')
        g(f's_add_u32 {s(T2)}, {s(sLB)}, 4608')
        g(f'v_add_u32 {v(vKA)}, {s(T2)}, {v(vKA)}')
        for b in range(1, 4):
            g(f'v_add_u32 {v(vKA + b)}, {1024 * b}, {v(vKA)}')

        def rdA(e, dst):
            b, ee = e >> 4, e & 15
            g(f'ds_read2_b32 {a(dst, 2)}, {v(vKA + b)} offset0:{16 * ee} offset1:{16 * ee + 1}')
            g(f'ds_read2_b32 {a(dst + 2, 2)}, {v(vKA + b)} offset0:{16 * ee + 2} offset1:{16 * ee + 3}')

        def rdB(m, rho, dst):
            g(f'ds_read_b128 {a(dst, 4)}, {v(vUB)} offset:{3584 - 512 * m + 64 * rho}')

        AS = lambda rho, aa: 64 * (rho & 1) + 4 * aa
        BS = lambda rho, m: 64 * (rho & 1) + 32 + 4 * m
        vAD = 16
        g(f'v_lshlrev_b32 {v(vT)}, 3, {v(vG)}')
        g(f'v_add_u32 {v(vT)}, {v(vT)}, {v(vI)}')
        g(f'v_sub_u32 {v(vT)}, 15, {v(vT)}')
        g(f'v_lshlrev_b32 {v(vT + 1)}, 16, {v(vDv)}')
        for d in range(4):
            g(f'v_cmp_eq_u32 vcc, {2 * d}, {v(vT)}')
            g(f'v_cndmask_b32 {v(vAD + d)}, 0, {v(vDv)}, vcc')
            g(f'v_cmp_eq_u32 vcc, {2 * d + 1}, {v(vT)}')
            g(f'v_cndmask_b32 {v(vAD + d)}, {v(vAD + d)}, {v(vT + 1)}, vcc')
        vF, vFO = 20, 21
        g(f'v_lshlrev_b32 {v(vFO)}, 7, {v(vLANE)}')
        g(f's_lshl_b32 {s(T2)}, {s(sGam)}, 13')
        g(f's_add_u32 {s(T2)}, {s(T2)}, {L.FT}')
        g.poll([(vF, 1, vFO, s(T2), 0)], -1, 0)
        g.stamp(3)
        g(f's_lshl_b32 {s(T2)}, {s(sCh)}, 12')
        g(f's_add_u32 {s(T2)}, {s(T2)}, {L.UR}')
        g(f's_mov_b32 {s(T3)}, {s(sLB)}')
        g.dma(T3, T2, 4)
        for aa in range(8):
            rdA(8 * aa, AS(0, aa))
        vPO, vYW, vYR = 22, 23, 24
        g(f's_mul_i32 {s(T2)}, {s(sW)}, {16 * 36864}')
        g(f's_lshl_b32 {s(T3)}, {s(sWG)}, 8')
        g(f's_add_u32 {s(T2)}, {s(T2)}, {s(T3)}')
        g(f'v_mul_u32_u24 {v(vPO)}, {2 * 36864}, {v(vG)}')
        g(f'v_lshl_add_u32 {v(vPO)}, {v(vI)}, 4, {v(vPO)}')
        g(f'v_add_u32 {v(vPO)}, {s(T2)}, {v(vPO)}')
        g(f'v_lshlrev_b32 {v(vYW)}, 5, {v(vI)}')
        g(f'v_lshl_add_u32 {v(vYW)}, {v(vG)}, 3, {v(vYW)}')
        g(f'v_add_u32 {v(vYW)}, {s(sLB)}, {v(vYW)}')
        g(f'v_bfe_u32 {v(vT)}, {v(vLANE)}, 2, 2')
        g(f'v_mul_u32_u24 {v(vYR)}, {L.CONVW}, {v(vT)}')
        g(f'v_and_b32 {v(vT)}, 3, {v(vLANE)}')
        g(f'v_lshl_add_u32 {v(vYR)}, {v(vT)}, 3, {v(vYR)}')
        g(f'v_lshl_add_u32 {v(vYR)}, {v(vG)}, 7, {v(vYR)}')
        g(f's_lshl_b32 {s(T2)}, {s(sW)}, 10')
        g(f's_add_u32 {s(T2)}, {s(T2)}, {L.L_CONV}')
        g(f'v_add_u32 {v(vYR)}, {s(T2)}, {v(vYR)}')
        g(f'v_lshlrev_b32 {v(vFO)}, 7, {v(vI)}')
        g(f's_lshl_b32 {s(T0)}, {s(sW)}, 11')
        g(f's_add_u32 {s(T0)}, {s(T0)}, {L.FQ}')
        vFW, vSO, vF2 = 25, 26, 27
        g(f's_lshl_b32 {s(T2)}, {s(sW)}, 12')
        g(f'v_lshlrev_b32 {v(vSO)}, 9, {v(vG)}')
        g(f'v_lshl_add_u32 {v(vSO)}, {v(vI)}, 4, {v(vSO)}')
        g(f'v_add_u32 {v(vSO)}, {s(T2)}, {v(vSO)}')
        g(f'v_min_u32 {v(vFW)}, 2, {v(vLANE)}')
        g(f'v_lshlrev_b32 {v(vFW)}, 11, {v(vFW)}')
        g(f's_lshl_b32 {s(T1)}, {s(sP)}, 7')
        g(f's_add_u32 {s(T1)}, {s(T1)}, {L.FW}')
        g.w_dma_setup()
        g.drain(lg=False)
        g.stamp(4)
        ACC = 32
        X0, N0 = 64, 80
        for m in range(8):
            rdB(m, 0, BS(0, m))
        for q in range(8):
            g.mfma(v(ACC + 4 * q, 4), v(vAD, 4), a(BS(0, q), 4), '0')
        for rho in range(8):
            nxt = []
            if rho < 7:
                for i in range(8):
                    nxt.append(lambda i=i: rdB(i, rho + 1, BS(rho + 1, i)))
                    nxt.append(lambda i=i: rdA(rho + 1 + 8 * i, AS(rho + 1, i)))
            if rho == 3:
                g.poll_issue(vF, vFO, s(T0), 0xffff)
            ext = []
            if rho >= 2:
                ext += [f'v_cmp_ne_u32 vcc, {s(sTAG)}, {v(vF2)}', 's_nop 0', 's_cmp_eq_u64 vcc, 0',
                        f's_cselect_b32 {s(sINC)}, 4096, 0\ns_cselect_b32 {s(sOB)}, {s(sWB)}, 0x7f000000']
            if 1 <= rho < 7:
                ext.append(f'buffer_load_dword {v(vF2)}, {v(vFW)}, {s(rWS, 4)}, {s(T1)} offen offset:12 sc1')
            if rho >= 2:
                for _ in range(g.opt.wcnt[rho - 2]):
                    ext += [f's_add_u32 {s(sBG)}, {s(sOB)}, {s(sBL)}', f's_mov_b32 m0, {s(sBL)}',
                            f's_add_u32 {s(sBL)}, {s(sBL)}, {s(sINC)}',
                            f'buffer_load_dwordx4 {v(vL16)}, {s(rWS, 4)}, {s(sBG)} offen sc1 lds']
            if rho == 5:
                g.poll_finish(vF, vFO, s(T0), 0xffff, 1)
                for j in range(4):
                    o = (8 * (j >> 1) + (j & 1)) * 36864
                    g(f's_mov_b32 {s(T2)}, {L.X0P + o}')
                    g(f'buffer_load_dwordx4 {v(X0 + 4 * j, 4)}, {v(vPO)}, {s(rWS, 4)}, {s(T2)} offen sc1')
                    g(f's_mov_b32 {s(T2)}, {L.N0P + o // 144}')
                    g(f'buffer_load_dwordx4 {v(N0 + 4 * j, 4)}, {v(vSO)}, {s(rWS, 4)}, {s(T2)} offen sc1')
            n = 0
            for aa in range(8):
                for q in range(aa, 8):
                    g.mfma(v(ACC + 4 * q, 4), a(AS(rho, aa), 4), a(BS(rho, q - aa), 4), v(ACC + 4 * q, 4))
                    if n % 2 == 0 and nxt:
                        nxt.pop(0)()
                    else:
                        for _ in range(2):
                            if ext:
                                g(ext.pop(0))
                    n += 1
            assert not nxt and not ext
        g.stamp(5)
        YP_, YG, TMP, XO = 96, 112, 128, 152
        for q in range(8):
            g(f'v_cvt_pk_bf16_f32 {v(YP_ + 2 * q)}, {v(ACC + 4 * q)}, {v(ACC + 4 * q + 1)}')
            g(f'v_cvt_pk_bf16_f32 {v(YP_ + 2 * q + 1)}, {v(ACC + 4 * q + 2)}, {v(ACC + 4 * q + 3)}')
            g(f'ds_write_b64 {v(vYW)}, {v(YP_ + 2 * q, 2)} offset:{512 * q}')
        U2 = 176

        def prep(j):
            for d in range(4):
                t = U2 + 16 * j + 4 * d
                g.unpack(t + 2, t + 3, X0 + 4 * j + d)
            for d in range(4):
                t = U2 + 16 * j + 4 * d
                c = N0 + 4 * j + 2 * (d >> 1)
                g(f'v_pk_fma_f32 {v(t, 2)}, {v(t + 2, 2)}, {v(c, 2)}, {v(c, 2)} op_sel:[0,0,1] op_sel_hi:[1,0,1]')
        prep(0)
        prep(1)
        g.barrier()
        for j in range(4):
            o = (8 * (j >> 1) + (j & 1)) * 64
            g(f'ds_read_b64_tr_b16 {v(YG + 4 * j, 2)}, {v(vYR)} offset:{o}')
            g(f'ds_read_b64_tr_b16 {v(YG + 4 * j + 2, 2)}, {v(vYR)} offset:{o + 32}')
        prep(2)
        prep(3)
        for j in range(4):
            o = (8 * (j >> 1) + (j & 1)) * 36864
            for d in range(4):
                g.unpack(TMP + 2 * d, TMP + 2 * d + 1, YG + 4 * j + d)
            for d in range(4):
                t = U2 + 16 * j + 4 * d
                g(f'v_pk_fma_f32 {v(t, 2)}, {v(TMP + 2 * d, 2)}, {v(t, 2)}, {v(t + 2, 2)}')
            for d in range(4):
                t = U2 + 16 * j + 4 * d
                g(f'v_cvt_pk_bf16_f32 {v(XO + 4 * j + d)}, {v(t)}, {v(t + 1)}')
            g(f's_mov_b32 {s(T2)}, {L.X1P + o}')
            hx = g(f'buffer_store_dwordx4 {v(XO + 4 * j, 4)}, {v(vPO)}, {s(rWS, 4)}, {s(T2)} offen sc1')
        g(f's_mul_i32 {s(T3)}, {s(sW)}, 144')
        g(f's_add_u32 {s(T3)}, {s(T3)}, {s(sWG)}')
        g(f's_lshl_b32 {s(T3)}, {s(T3)}, 7')
        g(f's_add_u32 {s(T3)}, {s(T3)}, {L.FC}')
        g.wait_vm(hx)
        g.flag_store(T3)
        g.stamp(6)
        lf = g.last_flag
        if g.opt.sentinel:
            g(f's_lshl_b32 {s(T3)}, {s(sWG)}, 2')
            g(f's_add_u32 {s(T3)}, {s(T3)}, {s(sW)}')
            g(f's_and_b32 {s(T2)}, {s(T3)}, 0xffffffe3')
            g(f's_cmp_lg_u32 {s(T2)}, 0')
            with g.skip_if('s_cbranch_scc1'):
                g(f's_lshl_b32 {s(T3)}, {s(sWG)}, 7')
                g(f's_add_u32 {s(T3)}, {s(T3)}, {L.FS_}')
                g.flag_store(T3)
        g.last_flag = lf
        for j in range(4):
            o = (8 * (j >> 1) + (j & 1)) * 36864
            g(f's_mov_b32 {s(T2)}, {L.YP + o}')
            g(f'buffer_store_dwordx4 {v(YG + 4 * j, 4)}, {v(vPO)}, {s(rWS, 4)}, {s(T2)} offen sc1')
        g.barrier()
        g(f's_cmp_eq_u32 {s(sINC)}, 0')

    def wperm(self, d, t):
        g = self
        g(f'v_and_b32 {v(t)}, 3, {v(vI)}')
        g(f'v_lshlrev_b32 {v(d)}, 8, {v(vG)}')
        g(f'v_lshl_add_u32 {v(d)}, {v(t)}, 6, {v(d)}')
        g(f'v_lshrrev_b32 {v(t)}, 2, {v(vI)}')
        g(f'v_lshl_add_u32 {v(d)}, {v(t)}, 4, {v(d)}')

    def fx_off(self, d, t):
        g = self
        g(f's_lshl_b32 {s(d)}, {s(sRB2)}, 4')
        g(f's_lshl_b32 {s(t)}, {s(sCG)}, 1')
        g(f's_add_u32 {s(d)}, {s(d)}, {s(t)}')
        g(f's_and_b32 {s(t)}, {s(sW)}, 1')
        g(f's_add_u32 {s(d)}, {s(d)}, {s(t)}')
        g(f's_lshl_b32 {s(d)}, {s(d)}, 7')
        g(f's_add_u32 {s(d)}, {s(d)}, {L.FX}')

    def clear_line(self, soff, z=None):
        g = self
        if not g.opt.clear:
            return
        z = 248 if z is None else z
        g(f'v_mov_b64 {v(z, 2)}, 0')
        g(f'v_mov_b64 {v(z + 2, 2)}, 0')
        g.setexec(0xff)
        g(f'buffer_store_dwordx4 {v(z, 4)}, {v(vL16)}, {s(rWS, 4)}, {s(soff)} offen sc1')
        g.setexec(-1)

    def touch_pages(self):
        g = self
        if 'tlb' in g.opt.exp:
            sh = 16 if 'tlb64' in g.opt.exp else 21
            n = (L.WSSZ >> sh) + 1
            for i in range(0, n, 64):
                g(f'v_add_u32 {v(247)}, {i}, {v(vLANE)}')
                g(f'v_lshlrev_b32 {v(247)}, {sh}, {v(247)}')
                g(f'v_or_b32 {v(247)}, 0x800, {v(247)}')
                g(f'buffer_load_dword {a(aJUNK)}, {v(247)}, {s(rWS, 4)}, 0 offen')
            g(f'v_lshlrev_b32 {v(247)}, {sh}, {v(vLANE)}')
            g(f'buffer_load_dword {a(aJUNK)}, {v(247)}, {s(rOUT, 4)}, 0 offen')
        if 'code' in g.opt.exp:
            g(f's_getpc_b64 {s(rD, 2)}')
            g(f's_and_b32 {s(rD)}, {s(rD)}, 0xffffff00')
            g(f's_mov_b32 {s(rD + 2)}, 40000')
            g(f's_mov_b32 {s(rD + 3)}, 0x20000')
            g(f's_lshr_b32 {s(T0)}, {s(sWG)}, 3')
            g(f's_and_b32 {s(T0)}, {s(T0)}, 7')
            g(f's_lshl_b32 {s(T0)}, {s(T0)}, 13')
            g(f'v_lshlrev_b32 {v(247)}, 7, {v(vLANE)}')
            g(f'buffer_load_dword {a(aJUNK)}, {v(247)}, {s(rD, 4)}, {s(T0)} offen')

    def delay_start(self):
        g = self
        if 'delay' in g.opt.exp:
            g.make_tag()
            g(f'v_lshlrev_b32 {v(6)}, 7, {v(vLANE)}')
            g(f's_and_b32 {s(T0)}, {s(sWG)}, 7')
            g(f's_lshl_b32 {s(T0)}, {s(T0)}, 13')
            g(f's_add_u32 {s(T0)}, {s(T0)}, {L.FT}')
            g.poll([(7, 1, 6, s(T0), 0)], g.opt.dmask, 10)
            g.make_tag = lambda: None

    def w_dma_setup(self):
        g = self
        g(f's_lshl_b32 {s(sBL)}, {s(sW)}, 10')
        g(f's_mul_i32 {s(sWB)}, {s(sP)}, {L.WPSZ}')
        g(f's_add_u32 {s(sWB)}, {s(sWB)}, {L.WP}')

    def w_wait(self):
        g = self
        vT = 6
        g(f'v_lshlrev_b32 {v(vT)}, 11, {v(vLANE)}')
        g(f's_lshl_b32 {s(T0)}, {s(sP)}, 7')
        g(f's_add_u32 {s(T0)}, {s(T0)}, {L.FW}')
        g.poll([(vT + 1, 1, vT, s(T0), 0)], 7, 2)

    def w_rest(self):
        g = self
        lp = g.newlabel('wrest')
        g.label(lp)
        g.cond_depth += 1
        g(f's_add_u32 {s(sBG)}, {s(sWB)}, {s(sBL)}')
        g(f's_mov_b32 m0, {s(sBL)}')
        g(f's_add_u32 {s(sBL)}, {s(sBL)}, 4096')
        g(f'buffer_load_dwordx4 {v(vL16)}, {s(rWS, 4)}, {s(sBG)} offen sc1 lds')
        g.cond_depth -= 1
        g(f's_cmp_lt_u32 {s(sBL)}, 0x20000')
        g.branch('s_cbranch_scc1', lp)

    def sentinel_wait(self):
        g = self
        if g.opt.sentinel:
            g(f's_and_b32 {s(T0)}, {s(sWG)}, 7')
            g(f's_lshl_b32 {s(T0)}, {s(T0)}, 7')
            g(f's_add_u32 {s(T0)}, {s(T0)}, {L.FS_}')
            g(f'v_mov_b32 {v(6)}, 0')
            g.poll([(7, 1, 6, s(T0), 0)], 1, 11)

    def role_q(self):
        g = self
        sJ = T7
        vO, vT = 6, 8
        R = 16
        g.srd(rA, pQ, L.ARR)
        g.srd(rB, pWO, 576 * 1152)
        g(f's_sub_u32 {s(sJ)}, {s(sWG)}, 144')
        g(f's_lshl_b32 {s(T0)}, {s(sJ)}, 7')
        g(f's_add_u32 {s(T1)}, {s(T0)}, {L.FWO}')
        g(f's_add_u32 {s(T0)}, {s(T0)}, {L.FQ}')
        g(f's_cmp_eq_u32 {s(sW)}, 0')
        g(f's_cselect_b32 {s(T0)}, {s(T0)}, {s(T1)}')
        g(f's_cmp_ge_u32 {s(sW)}, 2')
        with g.skip_if('s_cbranch_scc1'):
            g.clear_line(T0)
        mt = g.make_tag
        g.delay_start()
        LQ = 16384
        g(f's_mul_i32 {s(T0)}, {s(sJ)}, {32 * 1152}')
        g(f's_mul_i32 {s(T1)}, {s(sW)}, 640')
        for i in range(10):
            g(f'v_add_u32 {v(vT)}, {s(T1)}, {v(vLANE)}')
            g(f'v_mul_u32_u24 {v(vT + 1)}, 3592, {v(vT)}')
            g(f'v_lshrrev_b32 {v(vT + 1)}, 18, {v(vT + 1)}')
            g(f'v_sub_u32 {v(vT)}, {v(vT)}, {v(vT + 1)}')
            g(f'v_lshlrev_b32 {v(vT)}, 4, {v(vT)}')
            g(f's_lshl_b32 {s(T2)}, {s(T1)}, 4')
            g(f's_add_u32 {s(T2)}, {s(T2)}, {LQ}')
            g(f's_mov_b32 m0, {s(T2)}')
            g(f's_add_u32 {s(T1)}, {s(T1)}, 64')
            hq = g(f'buffer_load_dwordx4 {v(vT)}, {s(rA, 4)}, {s(T0)} offen lds')
        sPp, sCq = T5, T6
        g(f's_and_b32 {s(sPp)}, {s(sJ)}, 15')
        g(f's_lshr_b32 {s(sCq)}, {s(sJ)}, 4')
        g(f's_mul_i32 {s(T0)}, {s(sPp)}, {36 * 1152}')
        g(f's_mul_i32 {s(T1)}, {s(sCq)}, 288')
        g(f's_add_u32 {s(T0)}, {s(T0)}, {s(T1)}')
        g(f's_mul_i32 {s(T1)}, {s(sW)}, 192')
        for i in range(3):
            g(f'v_add_u32 {v(vT)}, {s(T1)}, {v(vLANE)}')
            if i:
                g(f'v_add_u32 {v(vT)}, {64 * i}, {v(vT)}')
            g(f'v_mul_u32_u24 {v(vT + 1)}, 3641, {v(vT)}')
            g(f'v_lshrrev_b32 {v(vT + 1)}, 16, {v(vT + 1)}')
            g(f'v_mul_u32_u24 {v(vT + 1)}, {1152 - 288}, {v(vT + 1)}')
            g(f'v_lshl_add_u32 {v(vT)}, {v(vT)}, 4, {v(vT + 1)}')
            g(f's_lshl_b32 {s(T2)}, {s(T1)}, 4')
            g(f's_add_u32 {s(T2)}, {s(T2)}, {1024 * i}')
            g(f's_mov_b32 m0, {s(T2)}')
            g(f'buffer_load_dwordx4 {v(vT)}, {s(rB, 4)}, {s(T0)} offen lds')
        g(f's_mul_i32 {s(T0)}, {s(sJ)}, 36864')
        g(f's_lshl_b32 {s(T1)}, {s(sW)}, 11')
        g(f's_add_u32 {s(T0)}, {s(T0)}, {s(T1)}')
        g(f'v_lshlrev_b32 {v(vO)}, 9, {v(vG)}')
        g(f'v_lshl_add_u32 {v(vO)}, {v(vI)}, 4, {v(vO)}')
        g(f'v_add_u32 {v(vO)}, {s(T0)}, {v(vO)}')
        g(f's_cmp_lt_u32 {s(sW)}, 2')
        g(f's_cselect_b32 {s(T2)}, 0, 0x40000000')
        g(f's_cselect_b32 {s(T4)}, -1, 0')
        g(f'v_add_u32 {v(vO + 1)}, {s(T2)}, {v(vO)}')
        g(f's_lshl_b32 {s(T1)}, {s(sW)}, 6')
        g(f's_add_u32 {s(T1)}, {s(T1)}, {LQ}')
        g(f'v_mul_u32_u24 {v(vT)}, 1168, {v(vI)}')
        g(f'v_lshl_add_u32 {v(vT)}, {v(vG)}, 4, {v(vT)}')
        g(f'v_add_u32 {v(vT)}, {s(T1)}, {v(vT)}')
        S_ = 56
        g(f'v_mov_b64 {v(S_, 2)}, 0')
        g(f'v_mov_b64 {v(S_ + 2, 2)}, 0')
        g.make_tag()
        g.wait_vm(hq)
        g.barrier()
        for aa in range(5):
            for hh in range(2):
                g(f'ds_read_b128 {v(R + 8 * aa + 4 * hh, 4)}, {v(vT)} offset:{256 * aa + 16 * 1168 * hh}')
        g(f's_mov_b32 {s(T2)}, 0x3f803f80')
        for aa in range(5):
            r = R + 8 * aa
            if aa == 4:
                for d in range(8):
                    g(f'v_and_b32 {v(r + d)}, {s(T4)}, {v(r + d)}')
            g(f'v_swap_b32 {v(r + 2)}, {v(r + 4)}')
            g(f'v_swap_b32 {v(r + 3)}, {v(r + 5)}')
            g(f's_mov_b32 {s(T3)}, {L.X0P + 8192 * aa}')
            for qq in range(2):
                g(f'buffer_store_dwordx4 {v(r + 4 * qq, 4)}, {v(vO + (aa == 4))}, {s(rWS, 4)}, {s(T3)} offen offset:{256 * qq} sc1')
            for d in range(8):
                hh = (d >> 1) & 1
                g(f'v_dot2c_f32_bf16 {v(S_ + 2 * hh)}, {s(T2)}, {v(r + d)}')
                g(f'v_dot2c_f32_bf16 {v(S_ + 2 * hh + 1)}, {v(r + d)}, {v(r + d)}')
        g('s_nop 2')
        g.xg_sum2(S_, S_ + 1, vT)
        g.xg_sum2(S_ + 2, S_ + 3, vT)
        LS = 13312
        g(f's_lshl_b32 {s(T2)}, {s(sW)}, 8')
        g(f'v_lshl_add_u32 {v(vT)}, {v(vI)}, 4, {s(T2)}')
        g(f'ds_write_b128 {v(vT)}, {v(S_, 4)} offset:{LS}')
        g.barrier()
        g(f's_cmp_lg_u32 {s(sW)}, 0')
        with g.skip_if('s_cbranch_scc1'):
            g(f'v_lshlrev_b32 {v(vT)}, 4, {v(vI)}')
            P_ = 60
            for w in range(4):
                g(f'ds_read_b128 {v(P_ + 4 * w, 4)}, {v(vT)} offset:{LS + 256 * w}')
            for h2 in range(2):
                g(f'v_pk_add_f32 {v(P_ + 2 * h2, 2)}, {v(P_ + 2 * h2, 2)}, {v(P_ + 4 + 2 * h2, 2)}')
                g(f'v_pk_add_f32 {v(P_ + 8 + 2 * h2, 2)}, {v(P_ + 8 + 2 * h2, 2)}, {v(P_ + 12 + 2 * h2, 2)}')
                g(f'v_pk_add_f32 {v(P_ + 2 * h2, 2)}, {v(P_ + 2 * h2, 2)}, {v(P_ + 8 + 2 * h2, 2)}')
            RS = 76
            for hh in range(2):
                self.ln_coef(P_ + 2 * hh, P_ + 2 * hh + 1, RS + 2 * hh, RS + 2 * hh + 1)
            g(f's_lshl_b32 {s(T2)}, {s(sJ)}, 8')
            g(f's_add_u32 {s(T2)}, {s(T2)}, {L.N0P}')
            g.setexec(0xffff)
            g(f'buffer_store_dwordx4 {v(RS, 4)}, {v(vL16)}, {s(rWS, 4)}, {s(T2)} offen sc1')
            g.setexec(-1)
        g(f's_lshl_b32 {s(T3)}, {s(sJ)}, 7')
        g(f's_add_u32 {s(T3)}, {s(T3)}, {L.FQ}')
        g.drain(force=True)
        g.barrier()
        g(f's_cmp_lg_u32 {s(sW)}, 0')
        with g.skip_if('s_cbranch_scc1'):
            g.flag_store(T3)
        g.stamp(2)
        vA, vA2, vD_ = 8, 9, 10
        g(f'v_lshrrev_b32 {v(vT + 4)}, 1, {v(vG)}')
        g(f'v_mul_u32_u24 {v(vT + 4)}, 2, {v(vT + 4)}')
        g(f'v_lshl_add_u32 {v(vT + 4)}, {v(vG)}, 3, {v(vT + 4)}')
        g(f'v_bfe_u32 {v(vT + 5)}, {v(vLANE)}, 2, 2')
        g(f'v_add_u32 {v(vT + 4)}, {v(vT + 4)}, {v(vT + 5)}')
        g(f'v_mul_u32_u24 {v(vT + 4)}, 288, {v(vT + 4)}')
        g(f'v_and_b32 {v(vT + 6)}, 3, {v(vLANE)}')
        g(f'v_lshl_add_u32 {v(vT + 4)}, {v(vT + 6)}, 3, {v(vT + 4)}')
        g(f'v_lshrrev_b32 {v(vT + 7)}, 1, {v(vT + 5)}')
        g(f'v_mul_u32_u24 {v(vT + 7)}, 16, {v(vT + 7)}')
        g(f'v_add_u32 {v(vT + 7)}, {v(vT + 7)}, {v(vT + 5)}')
        g(f'v_add_u32 {v(vT + 7)}, 16, {v(vT + 7)}')
        g(f'v_mul_u32_u24 {v(vT + 7)}, 288, {v(vT + 7)}')
        g(f'v_lshl_add_u32 {v(vT + 7)}, {v(vT + 6)}, 3, {v(vT + 7)}')
        vM, vE = vT + 4, vT + 7
        vD4 = 17
        g(f'v_and_b32 {v(16)}, 7, {v(vI)}')
        g(f'v_lshlrev_b32 {v(16)}, 4, {v(16)}')
        g(f'v_lshl_add_u32 {v(vD4)}, {v(vG)}, 7, {v(16)}')
        g(f's_mul_i32 {s(T0)}, {s(sCq)}, {2 * L.WOSZ}')
        g(f's_add_u32 {s(T0)}, {s(T0)}, {L.WOF}')
        g(f's_mul_i32 {s(T1)}, {s(sPp)}, 4608')
        g(f's_add_u32 {s(T1)}, {s(T1)}, {s(T0)}')
        g(f's_lshr_b32 {s(T2)}, {s(sPp)}, 3')
        g(f's_add_u32 {s(T2)}, {s(T2)}, 16')
        g(f's_mul_i32 {s(T2)}, {s(T2)}, 4608')
        g(f's_add_u32 {s(T0)}, {s(T0)}, {s(T2)}')
        g(f's_and_b32 {s(T2)}, {s(sPp)}, 1')
        g(f's_lshl_b32 {s(T2)}, {s(T2)}, 3')
        g(f's_add_u32 {s(T0)}, {s(T0)}, {s(T2)}')
        g(f's_bfe_u32 {s(T4)}, {s(sPp)}, 0x20001')
        for w in range(4):
            lab = g.newlabel('wo')
            g(f's_cmp_lg_u32 {s(sW)}, {w}')
            with g.skip_if('s_cbranch_scc1'):
                for idx in range(w, 10, 4):
                    cgl, T = divmod(idx, 5)
                    co = cgl * 144 + T * 32
                    g(f'ds_read_b64_tr_b16 {v(20, 2)}, {v(vM)} offset:{co}')
                    g(f'ds_read_b64_tr_b16 {v(22, 2)}, {v(vM)} offset:{co + 4 * 288}')
                    g(f'ds_read_b64_tr_b16 {v(24, 2)}, {v(vE)} offset:{co}')
                    g(f's_add_u32 {s(T2)}, {s(T1)}, {cgl * L.WOSZ + T * 1024}')
                    g(f's_lshl_b32 {s(T3)}, {s(T4)}, {8 if T < 4 else 7}')
                    g(f's_add_u32 {s(T3)}, {s(T3)}, {s(T0)}')
                    g(f's_add_u32 {s(T3)}, {s(T3)}, {cgl * L.WOSZ + T * 1024}')
                    g(f'v_lshlrev_b32 {v(18)}, 4, {v(vI)}')
                    g.drain(vm=False)
                    if T == 4:
                        g.setexec(0x00ff00ff00ff00ff)
                    g(f'buffer_store_dwordx4 {v(20, 4)}, {v(vL16 if T < 4 else vD4)}, {s(rWS, 4)}, {s(T2)} offen sc1')
                    g.setexec(0xffff if T < 4 else 0xff)
                    g(f'buffer_store_dwordx2 {v(24, 2)}, {v(18)}, {s(rWS, 4)}, {s(T3)} offen sc1')
                    g.setexec(-1)
                    g('s_nop 1')
        g(f's_lshl_b32 {s(T3)}, {s(sJ)}, 7')
        g(f's_add_u32 {s(T3)}, {s(T3)}, {L.FWO}')
        g.drain(force=True)
        g.barrier()
        g(f's_cmp_lg_u32 {s(sW)}, 0')
        with g.skip_if('s_cbranch_scc1'):
            g.flag_store(T3)
        g.stamp(6)
        g.make_tag = mt

    def ln_coef(self, vS, vQ, vRS, vB):
        g = self
        inv = '0x3ae38e39'
        g(f'v_mul_f32 {v(vS)}, {inv}, {v(vS)}')
        g(f'v_mul_f32 {v(vQ)}, {inv}, {v(vQ)}')
        g(f'v_fma_f32 {v(vQ)}, -{v(vS)}, {v(vS)}, {v(vQ)}')
        g(f'v_max_f32 {v(vQ)}, 0, {v(vQ)}')
        g(f'v_add_f32 {v(vQ)}, 0x3727c5ac, {v(vQ)}')
        g(f'v_rsq_f32 {v(vRS)}, {v(vQ)}')
        if vB is not None:
            g(f'v_mul_f32 {v(vB)}, {v(vS)}, {v(vRS)}')
            g(f'v_sub_f32 {v(vB)}, 0, {v(vB)}')

    def role_w(self):
        g = self
        sU, sPp, sPart = T7, T6, T5
        vO, vT = 6, 8
        RA = 16
        BV, BF = 96, 108
        ACC = 132
        g.srd(rA, pWQ, 576 * 3456)
        g.srd(rB, pPH, 32 * 648)
        g(f's_sub_u32 {s(sU)}, {s(sWG)}, 208')
        g(f's_lshl_b32 {s(T0)}, {s(sU)}, 7')
        g(f's_add_u32 {s(T0)}, {s(T0)}, {L.FW}')
        g(f's_cmp_lg_u32 {s(sW)}, 0')
        with g.skip_if('s_cbranch_scc1'):
            g.clear_line(T0, 252)
        if 'w' in g.opt.dwho:
            g.delay_start()
        g(f's_and_b32 {s(sPp)}, {s(sU)}, 15')
        g(f's_lshr_b32 {s(sPart)}, {s(sU)}, 4')
        g(f's_add_u32 {s(T0)}, {s(sPart)}, 1')
        g(f's_cmp_eq_u32 {s(sPart)}, 2')
        g(f's_cselect_b32 {s(T0)}, 0, {s(T0)}')
        g(f's_mul_i32 {s(T0)}, {s(T0)}, 1152')
        g(f's_mul_i32 {s(T1)}, {s(sPp)}, 72')
        g(f's_add_u32 {s(T0)}, {s(T0)}, {s(T1)}')
        g.vtmp_stamp = 255
        sLP, sLW = 93, 94
        g(f's_lshl_b32 {s(sLP)}, {s(sW)}, 11')
        g(f's_add_u32 {s(sLP)}, {s(sLP)}, 2048')
        g(f's_mul_i32 {s(sLW)}, {s(sW)}, {5 * 3072}')
        g(f's_add_u32 {s(sLW)}, {s(sLW)}, 12288')
        g(f's_cmp_eq_u32 {s(sPart)}, 1')
        hphi = None
        with g.skip_if('s_cbranch_scc1'):
            g(f's_mul_i32 {s(T2)}, {s(sPp)}, 1296')
            g(f's_mov_b32 m0, {s(sLP)}')
            g(f'buffer_load_dwordx4 {v(vL16)}, {s(rB, 4)}, {s(T2)} offen lds')
            hphi = g(f'buffer_load_dwordx4 {v(vL16)}, {s(rB, 4)}, {s(T2)} offen offset:1024 lds')
        vS = 13
        for i in range(3):
            g(f'v_add_u32 {v(vT)}, {64 * i}, {v(vLANE)}')
            g(f'v_mul_u32_u24 {v(vT + 1)}, 43691, {v(vT)}')
            g(f'v_lshrrev_b32 {v(vT + 2)}, 17, {v(vT + 1)}')
            g(f'v_lshrrev_b32 {v(vT + 1)}, 18, {v(vT + 1)}')
            g(f'v_mul_u32_u24 {v(vT + 1)}, {3456 - 72}, {v(vT + 1)}')
            g(f'v_lshl_add_u32 {v(vT)}, {v(vT)}, 4, {v(vT + 1)}')
            g(f'v_mul_u32_u24 {v(vT + 2)}, 12, {v(vT + 2)}')
            g(f'v_sub_u32 {v(vS + i)}, {v(vT)}, {v(vT + 2)}')
        g(f's_mul_i32 {s(T1)}, {s(sW)}, {32 * 3456}')
        g(f's_add_u32 {s(T0)}, {s(T0)}, {s(T1)}')
        g(f's_mov_b32 {s(T2)}, {s(sLW)}')
        hs = []
        for kk in range(5):
            for i in range(3):
                g(f's_mov_b32 m0, {s(T2)}')
                g(f's_add_u32 {s(T2)}, {s(T2)}, 1024')
                h = g(f'buffer_load_dwordx4 {v(vS + i)}, {s(rA, 4)}, {s(T0)} offen lds')
            hs.append(h)
            g(f's_add_u32 {s(T0)}, {s(T0)}, {128 * 3456}')
        g.stamp(1)
        g(f's_cmp_lg_u32 {s(sPart)}, 1')
        with g.skip_if('s_cbranch_scc1'):
            g(f'v_mov_b64 {v(16, 2)}, 0')
            g(f'v_mov_b64 {v(18, 2)}, 0')
            g(f'v_add_u32 {v(vT)}, {s(sLP)}, {v(vL16)}')
            g(f'ds_write_b128 {v(vT)}, {v(16, 4)}')
            g(f'ds_write_b128 {v(vT)}, {v(16, 4)} offset:1024')
            g(f'v_mul_u32_u24 {v(vT)}, 38, {v(vLANE)}')
            g(f'v_add_u32 {v(vT)}, {s(sLP)}, {v(vT)}')
            g(f'v_mov_b32 {v(16)}, 0x3f80')
            g.setexec((1 << 18) - 1)
            g(f'ds_write_b16 {v(vT)}, {v(16)}')
            g(f'ds_write_b16 {v(vT)}, {v(16)} offset:648')
            g.setexec(-1)
        g(f'v_min_u32 {v(vT)}, 2, {v(vG)}')
        g(f'v_mul_u32_u24 {v(vO)}, 96, {v(vI)}')
        g(f'v_lshl_add_u32 {v(vO)}, {v(vT)}, 4, {v(vO)}')
        g(f'v_add_u32 {v(vO)}, {s(sLW)}, {v(vO)}')
        g(f's_lshl_b32 {s(T1)}, 1, {s(sPart)}')
        g(f's_sub_u32 {s(T1)}, {s(T1)}, 1')
        vF9, vHF, vHD, vPB = 9, 10, 11, 12
        g(f'v_and_b32 {v(vF9)}, 3, {v(vI)}')
        g(f'v_subrev_u32 {v(vF9)}, {s(T1)}, {v(vF9)}')
        g(f'v_bfe_u32 {v(vHF)}, {v(vI)}, 2, 1')
        g(f'v_lshrrev_b32 {v(vHD)}, 3, {v(vI)}')
        g(f'v_mul_u32_u24 {v(vPB)}, 648, {v(vHD)}')
        g(f'v_mul_u32_u24 {v(vT)}, 288, {v(vG)}')
        g(f'v_add3_u32 {v(vPB)}, {v(vPB)}, {v(vT)}, {s(sLP)}')
        g(f'v_mad_u32_u24 {v(vPB)}, {v(vHF)}, 18, {v(vPB)}')
        g(f'v_lshl_add_u32 {v(vPB)}, {v(vF9)}, 1, {v(vPB)}')
        masks = [sM0, sM1, sM2]
        for Tp in range(3):
            g(f'v_add_u32 {v(vT)}, {4 * Tp}, {v(vF9)}')
            g(f'v_cmp_gt_u32 {s(masks[Tp], 2)}, 9, {v(vT)}')
        for d in range(12):
            g(f'v_mov_b64 {v(ACC + 2 * d, 2)}, 0')
        g(f's_mul_i32 {s(T0)}, {s(sPp)}, {L.WPSZ}')
        g(f's_add_u32 {s(T0)}, {s(T0)}, {L.WP}')
        bases, steps = [T1, T2, T3], [T4, 13, 14]
        for Tp in range(3):
            g(f's_lshl_b32 {s(15)}, {s(sPart)}, 1')
            g(f's_add_u32 {s(15)}, {s(15)}, {Tp}')
            g(f's_lshl_b32 {s(bases[Tp])}, {s(15)}, 10')
            g(f's_cmp_lt_u32 {s(15)}, 5')
            g(f's_cselect_b32 {s(steps[Tp])}, 3072, 0')
            g(f's_cselect_b32 {s(15)}, 0, {L.L_P2 - 5120}')
            g(f's_add_u32 {s(steps[Tp])}, {s(steps[Tp])}, 2048')
            g(f's_add_u32 {s(bases[Tp])}, {s(bases[Tp])}, {s(15)}')
            g(f's_add_u32 {s(bases[Tp])}, {s(bases[Tp])}, {s(T0)}')
            g(f's_mul_i32 {s(15)}, {s(steps[Tp])}, {s(sW)}')
            g(f's_add_u32 {s(bases[Tp])}, {s(bases[Tp])}, {s(15)}')
            g(f's_lshl_b32 {s(steps[Tp])}, {s(steps[Tp])}, 2')
        g.wperm(7, vT)
        g.make_tag()
        g.wait_vm(hphi)
        for Tp in range(3):
            for jj in range(8):
                if jj in (0, 2):
                    m = 0xffffffffffff if jj < 2 else 0xffffffff
                    g(f's_mov_b32 {s(sMA)}, {hex(m & 0xffffffff)}')
                    g(f's_mov_b32 {s(sMA + 1)}, {hex(m >> 32)}')
                    g(f's_and_b64 exec, {s(sMA, 2)}, {s(masks[Tp], 2)}')
                g(f'ds_read_u16 {v(ACC + 8 * Tp + jj)}, {v(vPB)} offset:{36 * jj + 8 * Tp}')
        g.setexec(-1)
        g(f'v_cmp_eq_u32 vcc, 0, {v(vHD)}')
        for Tp in range(3):
            for d in range(4):
                g(f'v_lshl_or_b32 {v(BV + d)}, {v(ACC + 8 * Tp + 2 * d + 1)}, 16, {v(ACC + 8 * Tp + 2 * d)}')
            for d in range(4):
                g(f'v_cndmask_b32 {v(BF + 8 * Tp + d)}, 0, {v(BV + d)}, vcc')
            for d in range(4):
                g(f'v_sub_u32 {v(BF + 8 * Tp + 4 + d)}, {v(BV + d)}, {v(BF + 8 * Tp + d)}')
        g.stamp(2)
        SM = 96
        pend = []

        def sums(mt):
            out = []
            for hf in range(2):
                for Tp in range(3):
                    x = v(ACC + 12 * mt + 4 * Tp + 2 * hf, 2)
                    if mt == 0 and hf == 0:
                        out.append(f'v_mov_b64 {v(SM + 2 * Tp, 2)}, {x}')
                    else:
                        out.append(f'v_pk_add_f32 {v(SM + 2 * Tp, 2)}, {v(SM + 2 * Tp, 2)}, {x}')
            return out
        for kk in range(5):
            g.wait_vm(hs[kk])
            for half in range(2):
                for hh in range(2):
                    i = (2 * kk + half) * 2 + hh
                    g(f'ds_read_b128 {v(RA + 4 * i, 4)}, {v(vO)} offset:{kk * 3072 + 16 * 96 * half + 48 * hh}')
            for mt in (2 * kk, 2 * kk + 1):
                for hh in range(2):
                    for Tp in range(3):
                        d = v(ACC + 12 * mt + 4 * Tp, 4)
                        g.mfma(d, v(RA + 8 * mt + 4 * hh, 4), v(BF + 8 * Tp + 4 * hh, 4), d if hh else '0')
                        if pend:
                            g(pend.pop(0))
                if mt >= 1:
                    pend += sums(mt - 1)
        for x in pend + sums(9):
            g(x)
        g.stamp(3)
        CS = 24
        for Tp in range(3):
            g(f'v_add_f32 {v(CS + Tp)}, {v(SM + 2 * Tp)}, {v(SM + 2 * Tp + 1)}')
        g(f'v_mov_b32 {v(CS + 3)}, 0')
        g.xg_sum2(CS, CS + 1, vT)
        g.xg_sum2(CS + 2, CS + 3, vT)
        g(f's_lshl_b32 {s(15)}, {s(sW)}, 8')
        g(f'v_lshl_add_u32 {v(vT)}, {v(vI)}, 4, {s(15)}')
        g(f'ds_write_b128 {v(vT)}, {v(CS, 4)}')
        g(f's_cmp_eq_u32 {s(sPart)}, 1')
        g(f's_cselect_b32 {s(sM3)}, 0x44444444, 0')
        g(f's_mov_b32 {s(sM3 + 1)}, {s(sM3)}')
        g(f's_or_b64 {s(sM2, 2)}, {s(sM2, 2)}, {s(sM3, 2)}')
        g(f'v_lshlrev_b32 {v(vT)}, 4, {v(vI)}')
        g.barrier()
        P_ = 28
        for w in range(4):
            g(f'ds_read_b128 {v(P_ + 4 * w, 4)}, {v(vT)} offset:{256 * w}')
        for h2 in range(2):
            g(f'v_pk_add_f32 {v(P_ + 2 * h2, 2)}, {v(P_ + 2 * h2, 2)}, {v(P_ + 4 + 2 * h2, 2)}')
            g(f'v_pk_add_f32 {v(P_ + 8 + 2 * h2, 2)}, {v(P_ + 8 + 2 * h2, 2)}, {v(P_ + 12 + 2 * h2, 2)}')
            g(f'v_pk_add_f32 {v(P_ + 2 * h2, 2)}, {v(P_ + 2 * h2, 2)}, {v(P_ + 8 + 2 * h2, 2)}')
        MN = 44
        for Tp in range(3):
            g(f'v_mul_f32 {v(MN + 2 * Tp)}, 0xbae38e39, {v(P_ + Tp)}')
        g(f'v_cndmask_b32 {v(MN + 4)}, {v(MN + 4)}, 1.0, {s(sM3, 2)}')
        O_ = 52

        def emit_k(kk):
            for Tp in range(3):
                o = O_ + 4 * ((3 * kk + Tp) % 4)
                for half in range(2):
                    b = ACC + 12 * (2 * kk + half) + 4 * Tp
                    for hf in range(2):
                        g(f'v_pk_add_f32 {v(b + 2 * hf, 2)}, {v(b + 2 * hf, 2)}, {v(MN + 2 * Tp, 2)} op_sel_hi:[1,0]')
                    for hf in range(2):
                        g(f'v_cvt_pk_bf16_f32 {v(o + 2 * half + hf)}, {v(b + 2 * hf)}, {v(b + 2 * hf + 1)}')
                g(f's_mov_b64 exec, {s(masks[Tp], 2)}')
                g(f'buffer_store_dwordx4 {v(o, 4)}, {v(7)}, {s(rWS, 4)}, {s(bases[Tp])} offen sc1')
                g.setexec(-1)
                g(f's_add_u32 {s(bases[Tp])}, {s(bases[Tp])}, {s(steps[Tp])}')
        g.stamp(4)
        for kk in range(4):
            emit_k(kk)
        g(f's_cmp_ge_u32 {s(sW)}, 2')
        with g.skip_if('s_cbranch_scc1'):
            emit_k(4)
        g(f's_lshl_b32 {s(T3)}, {s(sU)}, 7')
        g(f's_add_u32 {s(T3)}, {s(T3)}, {L.FW}')
        g.stamp(5)
        g.drain(force=True)
        g.barrier()
        g(f's_cmp_lg_u32 {s(sW)}, 0')
        with g.skip_if('s_cbranch_scc1'):
            g.flag_store(T3)
        g.stamp(6)

    def softmax2(self, X, single_first, C, TMP, outs):
        g = self
        R = range(2)
        sg = [x if single_first else x + 8 for x in X]
        pb = [x + 1 if single_first else x for x in X]
        val = lambda t, f: X[t] + f
        EN = [TMP[t] for t in R]
        SG = [TMP[t] + 8 for t in R]
        MX = [TMP[t] + 10 for t in R]
        SM = [TMP[t] + 12 for t in R]
        for t in R:
            g(f'v_max3_f32 {v(MX[t])}, {v(val(t, 0))}, {v(val(t, 1))}, {v(val(t, 2))}')
            g(f'v_max3_f32 {v(MX[t] + 1)}, -{v(val(t, 0))}, -{v(val(t, 1))}, -{v(val(t, 2))}')
        for k in range(3):
            for t in R:
                g(f'v_max3_f32 {v(MX[t])}, {v(MX[t])}, {v(val(t, 3 + 2 * k))}, {v(val(t, 4 + 2 * k))}')
                g(f'v_max3_f32 {v(MX[t] + 1)}, {v(MX[t] + 1)}, -{v(val(t, 3 + 2 * k))}, -{v(val(t, 4 + 2 * k))}')
        for t in R:
            g(f'v_permlane16_swap_b32 {v(MX[t])}, {v(MX[t] + 1)}')
        for t in R:
            g(f'v_max_f32 {v(MX[t])}, {v(MX[t])}, {v(MX[t] + 1)}')
        for t in R:
            g(f'v_mul_f32 {v(MX[t])}, {v(C[t])}, {v(MX[t])}')
        for t in R:
            g(f'v_mov_b32 {v(MX[t] + 1)}, {v(MX[t])}')
        for t in R:
            g(f'v_permlane16_swap_b32 {v(MX[t])}, {v(MX[t] + 1)}')
        for k in range(4):
            for t in R:
                g(f'v_pk_fma_f32 {v(EN[t] + 2 * k, 2)}, {v(pb[t] + 2 * k, 2)}, {v(C[t], 2)}, {v(MX[t], 2)} op_sel:[0,0,1] op_sel_hi:[1,0,1] neg_lo:[1,0,1] neg_hi:[1,0,1]')
                g(f'v_pk_fma_f32 {v(pb[t] + 2 * k, 2)}, {v(pb[t] + 2 * k, 2)}, {v(C[t], 2)}, {v(MX[t], 2)} op_sel_hi:[1,0,0] neg_lo:[0,0,1] neg_hi:[0,0,1]')
        for t in R:
            g(f'v_fma_f32 {v(SG[t])}, {v(sg[t])}, {v(C[t])}, -{v(MX[t])}')
            g(f'v_fma_f32 {v(SG[t] + 1)}, -{v(sg[t])}, {v(C[t])}, -{v(MX[t] + 1)}')
        for t in R:
            for k in range(8):
                g(f'v_exp_f32 {v(pb[t] + k)}, {v(pb[t] + k)}')
                g(f'v_exp_f32 {v(EN[t] + k)}, {v(EN[t] + k)}')
            g(f'v_exp_f32 {v(SG[t])}, {v(SG[t])}')
            g(f'v_exp_f32 {v(SG[t] + 1)}, {v(SG[t] + 1)}')
        for t in R:
            g(f'v_pk_add_f32 {v(SM[t], 2)}, {v(pb[t], 2)}, {v(pb[t] + 2, 2)}')
            g(f'v_pk_add_f32 {v(SM[t] + 2, 2)}, {v(EN[t], 2)}, {v(EN[t] + 2, 2)}')
        for k in (2, 3):
            for t in R:
                g(f'v_pk_add_f32 {v(SM[t], 2)}, {v(SM[t], 2)}, {v(pb[t] + 2 * k, 2)}')
                g(f'v_pk_add_f32 {v(SM[t] + 2, 2)}, {v(SM[t] + 2, 2)}, {v(EN[t] + 2 * k, 2)}')
        for t in R:
            g(f'v_add_f32 {v(MX[t])}, {v(SM[t])}, {v(SM[t] + 1)}')
            g(f'v_add_f32 {v(MX[t] + 1)}, {v(SM[t] + 2)}, {v(SM[t] + 3)}')
        for t in R:
            g(f'v_pk_add_f32 {v(MX[t], 2)}, {v(MX[t], 2)}, {v(SG[t], 2)}')
        for t in R:
            g(f'v_permlane16_swap_b32 {v(MX[t])}, {v(MX[t] + 1)}')
        for t in R:
            g(f'v_add_f32 {v(MX[t])}, {v(MX[t])}, {v(MX[t] + 1)}')
        for t in R:
            g(f'v_rcp_f32 {v(MX[t])}, {v(MX[t])}')
        for t in R:
            g(f'v_mov_b32 {v(MX[t] + 1)}, {v(MX[t])}')
        for t in R:
            g(f'v_permlane16_swap_b32 {v(MX[t])}, {v(MX[t] + 1)}')
        for k in range(4):
            for t in R:
                g(f'v_pk_mul_f32 {v(pb[t] + 2 * k, 2)}, {v(pb[t] + 2 * k, 2)}, {v(MX[t], 2)} op_sel_hi:[1,0]')
                g(f'v_pk_mul_f32 {v(EN[t] + 2 * k, 2)}, {v(EN[t] + 2 * k, 2)}, {v(MX[t], 2)} op_sel:[0,1] op_sel_hi:[1,1]')
        for t in R:
            g(f'v_pk_mul_f32 {v(SG[t], 2)}, {v(SG[t], 2)}, {v(MX[t], 2)}')
        for t in R:
            if single_first:
                pos = [SG[t]] + [pb[t] + k for k in range(8)]
                neg = [SG[t] + 1] + [EN[t] + k for k in range(8)]
            else:
                pos = [pb[t] + k for k in range(8)] + [SG[t]]
                neg = [EN[t] + k for k in range(8)] + [SG[t] + 1]
            seq = pos + neg
            for d in range(9):
                g(f'v_cvt_pk_bf16_f32 {v(outs[t][d])}, {v(seq[2 * d])}, {v(seq[2 * d + 1])}')

    def consts(self, off):
        g = self
        v0_ = globals()['v']
        v = lambda i, n=1: v0_(i + off if i >= 6 else i, n)
        vT = 6

        def keep(ar, vr):
            g(f'v_accvgpr_write_b32 {a(ar)}, {v(vr)}')

        c3, r3 = 8, 9
        g(f'v_and_b32 {v(c3)}, 3, {v(vLANE)}')
        g(f'v_bfe_u32 {v(r3)}, {v(vLANE)}, 2, 2')
        g(f's_mul_i32 {s(T0)}, {s(sW)}, {32 * 264}')
        g(f's_add_u32 {s(T0)}, {s(T0)}, {L.L_SCR}')
        g(f'v_mul_u32_u24 {v(vT)}, 264, {v(vI)}')
        g(f'v_mad_u32_u24 {v(vT)}, {v(vG)}, 40, {v(vT)}')
        g(f'v_add_u32 {v(vT)}, {s(T0)}, {v(vT)}')
        keep(aSCW, vT)
        g(f'v_and_b32 {v(vT)}, 1, {v(vG)}')
        g(f'v_lshlrev_b32 {v(vT)}, 4, {v(vT)}')
        g(f'v_lshl_add_u32 {v(vT)}, {v(r3)}, 2, {v(vT)}')
        g(f'v_and_b32 {v(vT + 1)}, 2, {v(vG)}')
        g(f'v_add_u32 {v(vT)}, {v(vT)}, {v(vT + 1)}')
        g(f'v_mul_u32_u24 {v(10)}, 264, {v(vT)}')
        g(f'v_add_u32 {v(10)}, {L.L_SCR}, {v(10)}')
        g(f's_lshr_b32 {s(T2)}, {s(sW)}, 1')
        g(f's_mul_i32 {s(T0)}, {s(T2)}, 80')
        g(f'v_lshrrev_b32 {v(vT)}, 1, {v(c3)}')
        g(f'v_mad_u32_u24 {v(11)}, {v(vT)}, 40, {v(10)}')
        g(f'v_add_u32 {v(11)}, {s(T0)}, {v(11)}')
        g(f'v_and_b32 {v(vT)}, 1, {v(c3)}')
        for Tm in range(3):
            g(f'v_mad_u32_u24 {v(vT + 1)}, {v(vT)}, {8 * (min(3 + Tm, 4) - Tm)}, {v(11)}')
            g(f'v_add_u32 {v(vT + 1)}, {8 * Tm}, {v(vT + 1)}')
            keep(aPA0 + Tm, vT + 1)
        g(f's_mul_i32 {s(T0)}, {s(sW)}, 24')
        g(f's_add_u32 {s(T0)}, {s(T0)}, 160')
        g(f'v_min_u32 {v(vT)}, 2, {v(c3)}')
        g(f'v_lshl_add_u32 {v(vT)}, {v(vT)}, 3, {v(10)}')
        g(f'v_add_u32 {v(vT)}, {s(T0)}, {v(vT)}')
        keep(aPB, vT)
        g(f's_mul_i32 {s(T0)}, {s(sW)}, 960')
        g(f'v_lshlrev_b32 {v(vT)}, 6, {v(vI)}')
        g(f'v_lshl_add_u32 {v(vT)}, {v(vG)}, 4, {v(vT)}')
        g(f'v_add_u32 {v(vT)}, {s(T0)}, {v(vT)}')
        keep(aKVS, vT)
        g(f'v_lshrrev_b32 {v(vT)}, 1, {v(vG)}')
        g(f'v_lshl_add_u32 {v(vT)}, {v(vI)}, 1, {v(vT)}')
        g(f'v_lshlrev_b32 {v(vT)}, 4, {v(vT)}')
        g(f's_add_u32 {s(T0)}, {s(T0)}, 640')
        g(f'v_add_u32 {v(vT)}, {s(T0)}, {v(vT)}')
        keep(aKVS2, vT)
        g(f's_mul_i32 {s(T0)}, {s(sR128)}, 15')
        g(f'v_lshrrev_b32 {v(vT)}, 4, {v(vTID)}')
        g(f'v_min_u32 {v(vT + 1)}, 14, {v(vT)}')
        g(f'v_add_u32 {v(vT + 1)}, {s(T0)}, {v(vT + 1)}')
        g(f'v_lshlrev_b32 {v(vT + 1)}, 4, {v(vT + 1)}')
        g(f'v_lshl_add_u32 {v(vT + 1)}, {v(vI)}, 12, {v(vT + 1)}')
        keep(aH1, vT + 1)
        g(f's_lshl_b32 {s(T0)}, {s(sR128)}, 8')
        g(f'v_lshl_add_u32 {v(vT)}, {v(vT)}, 4, {s(T0)}')
        keep(aH2, vT)
        g(f'v_mul_u32_u24 {v(vT)}, 4370, {v(vTID)}')
        g(f'v_lshrrev_b32 {v(vT)}, 16, {v(vT)}')
        g(f'v_add_lshl_u32 {v(vT)}, {v(vT)}, {v(vTID)}, 4')
        keep(aH3, vT)
        g(f's_movk_i32 {s(T2)}, 240')
        g(f'v_cmp_gt_u32 {s(sM1, 2)}, {s(T2)}, {v(vTID)}')
        g(f'v_mul_u32_u24 {v(12)}, 1093, {v(vTID)}')
        g(f'v_lshrrev_b32 {v(12)}, 16, {v(12)}')
        g(f'v_mul_u32_u24 {v(13)}, 60, {v(12)}')
        g(f'v_sub_u32 {v(13)}, {v(vTID)}, {v(13)}')
        g(f'v_cmp_le_u32 vcc, 40, {v(13)}')
        g(f'v_lshrrev_b32 {v(14)}, 2, {v(13)}')
        g(f'v_subrev_u32 {v(15)}, 40, {v(13)}')
        g(f'v_lshrrev_b32 {v(15)}, 1, {v(15)}')
        g(f'v_cndmask_b32 {v(14)}, {v(14)}, {v(15)}, vcc')
        g(f'v_and_b32 {v(15)}, 3, {v(13)}')
        g(f'v_mul_u32_u24 {v(15)}, 24, {v(15)}')
        g(f'v_and_b32 {v(16)}, 1, {v(13)}')
        g(f'v_mad_u32_u24 {v(16)}, {v(16)}, 48, 12')
        g(f'v_cndmask_b32 {v(15)}, {v(15)}, {v(16)}, vcc')
        g(f'v_and_b32 {v(16)}, 1, {v(12)}')
        g(f'v_mad_u32_u24 {v(16)}, {v(16)}, 9, {v(14)}')
        g(f'v_cmp_ne_u32 vcc, 18, {v(16)}')
        g(f's_and_b64 {s(sM2, 2)}, {s(sM1, 2)}, vcc')
        g(f'v_cmp_eq_u32 vcc, 9, {v(14)}')
        g(f'v_mov_b32 {v(17)}, 18')
        g(f'v_cndmask_b32 {v(16)}, {v(16)}, {v(17)}, vcc')
        g(f'v_lshrrev_b32 {v(12)}, 1, {v(12)}')
        g(f'v_mad_u32_u24 {v(16)}, {v(12)}, 19, {v(16)}')
        g(f'v_mul_u32_u24 {v(16)}, 96, {v(16)}')
        g(f'v_add_u32 {v(16)}, {v(16)}, {v(15)}')
        g(f'v_add_u32 {v(16)}, {L.L_KVT}, {v(16)}')
        keep(aKT, 16)
        g(f'v_add_u32 {v(16)}, 12, {v(16)}')
        g(f'v_mul_u32_u24 {v(17)}, 12, {v(vTID)}')
        g(f'v_add_u32 {v(17)}, {L.L_ZERO - 240 * 12}, {v(17)}')
        g(f'v_cndmask_b32 {v(16)}, {v(17)}, {v(16)}, {s(sM1, 2)}')
        keep(aKZ, 16)
        g(f'v_cmp_gt_u32 vcc, 40, {v(13)}')
        g(f's_and_b64 {s(sM0, 2)}, {s(sM2, 2)}, vcc')
        g(f's_mov_b32 vcc_lo, 0xaaaaaaaa')
        g(f's_mov_b32 vcc_hi, 0xaaaaaaaa')
        g(f's_and_b64 {s(sM0, 2)}, {s(sM0, 2)}, vcc')
        g(f's_orn2_b64 {s(sM0, 2)}, {s(sM0, 2)}, {s(sM1, 2)}')
        g(f's_lshr_b32 {s(T0)}, {s(sR128)}, 2')
        g(f's_mul_i32 {s(T0)}, {s(T0)}, 144')
        g(f's_mul_i32 {s(T1)}, {s(sW)}, 36')
        g(f's_add_u32 {s(T0)}, {s(T0)}, {s(T1)}')
        g(f's_lshl_b32 {s(T0)}, {s(T0)}, 7')
        g(f's_add_u32 {s(T0)}, {s(T0)}, {L.FC}')
        g(f's_lshr_b32 {s(T1)}, {s(sCG)}, 1')
        g(f's_lshl_b32 {s(T1)}, {s(T1)}, 11')
        g(f's_lshl_b32 {s(T2)}, {s(sW)}, 9')
        g(f's_add_u32 {s(T1)}, {s(T1)}, {s(T2)}')
        g(f's_add_u32 {s(T1)}, {s(T1)}, {L.FWO - 36 * 128}')
        g(f'v_mov_b32 {v(16)}, {s(T0)}')
        g(f'v_mov_b32 {v(17)}, {s(T1)}')
        g(f'v_cmp_gt_u32 vcc, 36, {v(vLANE)}')
        g(f'v_cndmask_b32 {v(16)}, {v(17)}, {v(16)}, vcc')
        g(f'v_lshl_add_u32 {v(16)}, {v(vLANE)}, 7, {v(16)}')
        keep(aFC, 16)
        g(f'v_lshrrev_b32 {v(12)}, 3, {v(vI)}')
        g(f'v_lshrrev_b32 {v(13)}, 1, {v(vG)}')
        g(f'v_cmp_eq_u32 vcc, {v(12)}, {v(13)}')
        g(f'v_mul_u32_u24 {v(12)}, {19 * 96}, {v(12)}')
        g(f'v_and_b32 {v(13)}, 1, {v(vG)}')
        g(f'v_mad_u32_u24 {v(12)}, {v(13)}, 48, {v(12)}')
        g(f'v_add_u32 {v(12)}, {L.L_KVT}, {v(12)}')
        g(f'v_bfe_u32 {v(13)}, {v(vI)}, 2, 1')
        g(f'v_and_b32 {v(14)}, 3, {v(vI)}')
        g(f'v_lshl_add_u32 {v(13)}, {v(13)}, 3, {v(14)}')
        g(f'v_mov_b32 {v(17)}, {L.L_ZERO}')
        g(f's_movk_i32 {s(T0)}, 96')
        for T in range(3):
            if T < 2:
                g(f'v_add_u32 {v(15)}, {4 * T}, {v(13)}')
            else:
                g(f'v_lshlrev_b32 {v(15)}, 3, {v(14)}')
                g(f'v_lshrrev_b32 {v(15)}, {v(15)}, {v(18)}' if False else f'v_mov_b32 {v(18)}, 0x12111012')
                g(f'v_lshrrev_b32 {v(15)}, {v(15)}, {v(18)}')
                g(f'v_and_b32 {v(15)}, 0xff, {v(15)}')
            g(f'v_mad_u32_u24 {v(15)}, {v(15)}, {s(T0)}, {v(12)}')
            g(f'v_cndmask_b32 {v(15)}, {v(17)}, {v(15)}, vcc')
            keep(aOA0 + T, 15)
        g(f's_mul_i32 {s(T0)}, {s(sRB)}, 36864')
        g(f'v_lshrrev_b32 {v(12)}, 3, {v(vI)}')
        g(f'v_mul_u32_u24 {v(12)}, 18432, {v(12)}')
        g(f'v_and_b32 {v(13)}, 7, {v(vI)}')
        g(f'v_lshl_add_u32 {v(12)}, {v(13)}, 4, {v(12)}')
        g(f'v_add_u32 {v(12)}, {s(T0)}, {v(12)}')
        g(f's_lshl_b32 {s(T0)}, {s(sP)}, 10')
        g(f'v_lshl_add_u32 {v(14)}, {v(vG)}, 8, {v(12)}')
        g(f'v_add_u32 {v(14)}, {s(T0)}, {v(14)}')
        keep(aOS, 14)
        g(f's_lshl_b32 {s(T0)}, {s(sP)}, 7')
        g(f's_add_u32 {s(T0)}, {s(T0)}, {64 * 256}')
        g(f'v_lshlrev_b32 {v(14)}, 3, {v(13)}')
        g(f'v_sub_u32 {v(14)}, {v(12)}, {v(14)}')
        g(f'v_lshrrev_b32 {v(15)}, 1, {v(vG)}')
        g(f'v_lshl_add_u32 {v(14)}, {v(15)}, 6, {v(14)}')
        g(f'v_add_u32 {v(14)}, {s(T0)}, {v(14)}')
        keep(aOE, 14)
        g(f's_and_b32 {s(T3)}, {s(sW)}, 1')
        g(f's_mul_i32 {s(T0)}, {s(sRB2)}, 36864')
        g(f's_mul_i32 {s(T1)}, {s(sCG)}, 4608')
        g(f's_add_u32 {s(T0)}, {s(T0)}, {s(T1)}')
        g(f's_lshl_b32 {s(T1)}, {s(T3)}, 7')
        g(f's_add_u32 {s(T0)}, {s(T0)}, {s(T1)}')
        g(f'v_lshlrev_b32 {v(12)}, 8, {v(vG)}')
        g(f'v_lshl_add_u32 {v(12)}, {v(13)}, 4, {v(12)}')
        g(f'v_add_u32 {v(12)}, {s(T0)}, {v(12)}')
        g(f'v_lshrrev_b32 {v(14)}, 3, {v(vI)}')
        g(f'v_lshl_add_u32 {v(15)}, {v(14)}, 3, {v(12)}')
        keep(aX1, 15)
        g(f'v_lshl_add_u32 {v(15)}, {v(14)}, 10, {v(12)}')
        keep(aX3, 15)
        g(f's_lshl_b32 {s(T0)}, {s(sR64)}, 13')
        g(f's_lshl_b32 {s(T1)}, {s(sW)}, 8')
        g(f's_add_u32 {s(T0)}, {s(T0)}, {s(T1)}')
        g(f's_add_u32 {s(T0)}, {s(T0)}, {L.ST}')
        g(f'v_lshl_add_u32 {v(15)}, {v(vI)}, 4, {s(T0)}')
        g(f'v_lshl_add_u32 {v(16)}, {v(vG)}, 10, {v(15)}')
        keep(aSTG, 16)
        g(f's_lshl_b32 {s(T1)}, {s(sCG)}, 10')
        g(f'v_add_u32 {v(15)}, {s(T1)}, {v(15)}')
        keep(aSTP, 15)
        g(f's_lshl_b32 {s(T0)}, {s(sRB2)}, 5')
        g(f's_lshl_b32 {s(T1)}, {s(T3)}, 3')
        g(f's_add_u32 {s(T0)}, {s(T0)}, {s(T1)}')
        g(f's_mul_i32 {s(T0)}, {s(T0)}, 1152')
        g(f's_mul_i32 {s(T1)}, {s(sCG)}, 144')
        g(f's_add_u32 {s(T0)}, {s(T0)}, {s(T1)}')
        g(f'v_lshl_add_u32 {v(15)}, {v(14)}, 4, {v(13)}')
        g(f'v_mul_u32_u24 {v(15)}, 1152, {v(15)}')
        g(f'v_and_b32 {v(16)}, 1, {v(vG)}')
        g(f'v_lshl_add_u32 {v(15)}, {v(16)}, 5, {v(15)}')
        g(f'v_lshrrev_b32 {v(16)}, 1, {v(vG)}')
        g(f'v_lshl_add_u32 {v(15)}, {v(16)}, 4, {v(15)}')
        g(f'v_add_u32 {v(15)}, {s(T0)}, {v(15)}')
        keep(aOUT, 15)
        g(f'v_lshlrev_b32 {v(15)}, 7, {v(vG)}')
        g(f'v_lshl_add_u32 {v(15)}, {v(13)}, 4, {v(15)}')
        g(f'v_add_u32 {v(15)}, 4096, {v(15)}')
        keep(aW4, 15)
        g.wperm(15 + off, 16 + off)
        keep(aWP, 15)
        g(f's_mov_b32 {s(sLAY)}, 0')
        g(f's_mul_i32 {s(sXP)}, {s(sRB)}, 36864')
        g(f's_add_u32 {s(sXP)}, {s(sXP)}, {L.X1P}')
        g(f's_mov_b32 {s(sOFB)}, {L.OF}')
        g(f's_lshl_b32 {s(sKV1)}, {s(sP)}, 16')
        g(f's_add_u32 {s(sKV1)}, {s(sKV1)}, {L.KV1}')
        g(f's_lshl_b32 {s(sKV2)}, {s(sP)}, 12')
        g(f's_add_u32 {s(sKV2)}, {s(sKV2)}, {L.KV2}')
        g(f's_mov_b32 {s(sFO)}, {L.FO}')

    def clears(self):
        g = self

        def get(vr, ar):
            g(f'v_accvgpr_read_b32 {v(vr)}, {a(ar)}')

        if g.opt.clear:
            Z = 180
            g(f'v_mov_b64 {v(Z, 2)}, 0')
            g(f'v_mov_b64 {v(Z + 2, 2)}, 0')
            g(f's_lshl_b32 {s(T0)}, {s(sRB)}, 4')
            g(f's_add_u32 {s(T0)}, {s(T0)}, {s(sP)}')
            g(f's_lshl_b32 {s(T0)}, {s(T0)}, 7')
            g(f's_add_u32 {s(T0)}, {s(T0)}, {L.FO}')
            g(f's_add_u32 {s(T1)}, {s(T0)}, {1024 * 128}')
            g.fx_off(T2, T3)
            g.setexec(0xff)
            for r in (T0, T1, T2):
                g(f'buffer_store_dwordx4 {v(Z, 4)}, {v(vL16)}, {s(rWS, 4)}, {s(r)} offen sc1')
            g.setexec(-1)
            get(184, aSTP)
            get(185, aH2)
            g(f's_lshl_b32 {s(T0)}, {s(sR128)}, 12')
            g(f's_mul_i32 {s(T1)}, {s(sW)}, 960')
            g(f's_add_u32 {s(T0)}, {s(T0)}, {s(T1)}')
            g(f's_add_u32 {s(T0)}, {s(T0)}, {s(sKV1)}')
            g(f's_add_u32 {s(T1)}, {s(T0)}, {256 * 4096}')
            g(f's_add_u32 {s(T2)}, {s(sKV2)}, {16 * 4096}')
            g.setexec((1 << 60) - 1)
            for r in (T0, T1):
                g(f'buffer_store_dwordx4 {v(Z, 4)}, {v(vL16)}, {s(rWS, 4)}, {s(r)} offen sc1')
            g.setexec(0x0001000100010001)
            for r in (sKV2, T2):
                g(f'buffer_store_dwordx4 {v(Z, 4)}, {v(185)}, {s(rWS, 4)}, {s(r)} offen sc1')
            g.setexec(0xffff)
            g(f'buffer_store_dwordx4 {v(Z, 4)}, {v(184)}, {s(rWS, 4)}, 0 offen sc1')
            g.setexec(-1)
        g.hello()

    def main(self):
        g = self
        vT = 6
        def keep(ar, vr):
            g(f'v_accvgpr_write_b32 {a(ar)}, {v(vr)}')

        def get(vr, ar):
            g(f'v_accvgpr_read_b32 {v(vr)}, {a(ar)}')

        g.stamp(7)
        get(vT, aFC)
        g.poll([(vT + 1, 1, vT, '0', 0)], (1 << 40) - 1, 4)
        g.barrier()
        if g.opt.stop == 'conv':
            g.branch('s_branch', 'L_fin')

        g.label('L_layer')
        g.stamp(8)
        XA = 112
        AC = [48, 76]
        GR = [104, 108]
        def ldX(j):
            if j >= 36 or 'noload1' in g.opt.exp:
                return
            if j and j % 4 == 0:
                g(f's_add_u32 {s(sXP)}, {s(sXP)}, 4096')
            off = f' offset:{(j % 4) * 1024}' if j % 4 else ''
            g(f'buffer_load_dwordx4 {v(XA + 4 * j, 4)}, {v(vL16)}, {s(rWS, 4)}, {s(sXP)} offen{off} sc1')
        NPRE = g.opt.npre
        for j in range(NPRE):
            ldX(j)
        g(f's_cmp_eq_u32 {s(sLAY)}, 0')
        with g.skip_if('s_cbranch_scc1'):
            g('s_barrier')
        vW1, vW2, vW0 = 6, 7, 8
        get(vW0, aWP)
        g(f'v_add_u32 {v(vW1)}, {9 * 5120}, {v(vW0)}')
        g(f'v_add_u32 {v(vW2)}, {L.L_P2}, {v(vW0)}')

        def rdW(k, T):
            if T < 5:
                base, off = (vW0, k * 5120) if k < 9 else (vW1, (k - 9) * 5120)
                g(f'ds_read_b128 {a(20 * (k & 1) + 4 * T, 4)}, {v(base)} offset:{off + 1024 * T}')
            else:
                g(f'ds_read_b128 {a(40 + 8 * (k & 3) + 4 * (T - 5), 4)}, {v(vW2)} offset:{k * 2048 + 1024 * (T - 5)}')
        for T in range(5):
            rdW(0, T)
        g(f'v_swap_b32 {v(XA + 2)}, {v(XA + 4)}')
        g(f'v_swap_b32 {v(XA + 3)}, {v(XA + 5)}')
        C = [8, 10]
        RSV = [12, 14]

        def gram(k):
            for t in range(2):
                xx = v(XA + 8 * k + 4 * t, 4)
                g.mfma(v(GR[t], 4), xx, xx, v(GR[t], 4) if k else '0')
        st1 = []
        for jj in range(4):
            m = sum(1 << (20 * gg + jj) for gg in range(4))
            st1.append(f's_mov_b32 vcc_lo, {hex(m & 0xffffffff)}\ns_mov_b32 vcc_hi, {hex(m >> 32)}')
            for t in range(2):
                st1.append(f'v_cndmask_b32 {v(16 + t)}, {v(16 + t) if jj else 0}, {v(GR[t] + jj)}, vcc')
        st1 += [f'v_nop', f'v_permlane16_swap_b32 {v(16)}, {v(17)}', f'v_add_f32 {v(16)}, {v(16)}, {v(17)}\nv_mov_b32 {v(17)}, {v(16)}',
                f'v_nop', f'v_permlane32_swap_b32 {v(16)}, {v(17)}', f'v_add_f32 {v(16)}, {v(16)}, {v(17)}\nv_mov_b32 {v(17)}, {v(16)}']
        gram(0)
        for k in range(18):
            x = XA + 8 * k
            order = range(5) if k < 17 else (4, 0, 1, 2, 3)
            for n, T in enumerate(order):
                for t in range(2):
                    d = v(AC[t] + 4 * T, 4)
                    if 'nomfma1' not in g.opt.exp or k == 0:
                        g.mfma(d, a(20 * (k & 1) + 4 * T, 4), v(x + 4 * t, 4), d if k else '0')
                    if k < 17:
                        if t == 0:
                            rdW(k + 1, T if k < 16 else (4, 0, 1, 2, 3)[T])
                        if t == 1 and n in (0, 1):
                            ldX(NPRE + 2 * k + n)
                        if t == 1 and n in (2, 3):
                            g(f'v_swap_b32 {v(x + 8 + n)}, {v(x + 10 + n)}')
                    elif n >= 1:
                        for _ in range(2):
                            if st1:
                                g(st1.pop(0))
            if k < 17:
                gram(k + 1)
        for x in st1:
            g(x)
        g(f'v_permlane16_swap_b32 {v(16)}, {v(17)}')
        g.stamp(9)
        for t in range(2):
            g(f'v_mul_f32 {v(AC[t] + 18)}, 0x3ae38e39, {v(AC[t] + 18)}')
            g(f'v_mul_f32 {v(16 + t)}, 0x3ae38e39, {v(16 + t)}')
        for t in range(2):
            g(f'v_fma_f32 {v(16 + t)}, -{v(AC[t] + 18)}, {v(AC[t] + 18)}, {v(16 + t)}')
        for t in range(2):
            g(f'v_max_f32 {v(16 + t)}, 0, {v(16 + t)}')
        for t in range(2):
            g(f'v_add_f32 {v(16 + t)}, 0x3727c5ac, {v(16 + t)}')
        for t in range(2):
            g(f'v_rsq_f32 {v(RSV[t])}, {v(16 + t)}')
        for t in range(2):
            g(f'v_mul_f32 {v(C[t])}, 0x3fb8aa3b, {v(RSV[t])}')
        TM = [16, 32]
        VP = [104, 108]
        vSC = 6
        get(vSC, aSCW)
        g(f'v_lshlrev_b32 {v(16)}, 4, {v(vG)}')
        g(f'v_sub_u32 {v(17)}, {v(vSC)}, {v(16)}')
        for t in range(2):
            b = AC[t]
            g(f'v_mul_f32 {v(b + 9)}, {v(RSV[t])}, {v(b + 9)}')
            for k in range(4):
                g(f'v_pk_mul_f32 {v(b + 10 + 2 * k, 2)}, {v(b + 10 + 2 * k, 2)}, {v(RSV[t], 2)} op_sel_hi:[1,0]')
            for d in range(4):
                g(f'v_cvt_pk_bf16_f32 {v(VP[t] + d)}, {v(b + 9 + 2 * d)}, {v(b + 10 + 2 * d)}')
            g(f'v_cvt_pk_bf16_f32 {v(b + 18)}, {v(b + 17)}, 1.0')
            o = 160 + 16 * 264 * t
            g(f'ds_write_b64 {v(17)}, {v(VP[t], 2)} offset:{o}')
            g(f'ds_write_b64 {v(17)}, {v(VP[t] + 2, 2)} offset:{o + 8}')
            g(f'ds_write_b32 {v(17)}, {v(b + 18)} offset:{o + 16}')
        PK = [[AC[t] + 10 + d for d in range(9)] for t in range(2)]
        g.softmax2([AC[0], AC[1]], False, C, TM, PK)
        for t in range(2):
            o = 16 * 264 * t
            for d in range(4):
                g(f'ds_write_b64 {v(vSC)}, {v(PK[t][2 * d], 2)} offset:{o + 8 * d}')
            g(f'ds_write_b32 {v(vSC)}, {v(PK[t][8])} offset:{o + 32}')
        vPA, vPB = 16, 19
        for Tm in range(3):
            get(vPA + Tm, aPA0 + Tm)
        get(vPB, aPB)
        g.barrier()
        g.stamp(10)
        KD = 20
        for ks in range(4):
            for rho in range(2):
                g(f'ds_read_b64_tr_b16 {a(72 + 16 * ks + 2 * rho, 2)}, {v(vPB)} offset:{(32 * ks + rho) * 264}')
            for Tm in range(3):
                for rho in range(2):
                    g(f'ds_read_b64_tr_b16 {a(72 + 16 * ks + 4 + 4 * Tm + 2 * rho, 2)}, {v(vPA + Tm)} offset:{(32 * ks + rho) * 264}')
            if ks == 1 or ks == 3:
                for k2 in (ks - 1, ks):
                    for Tm in range(3):
                        d = v(KD + 4 * Tm, 4)
                        g.mfma(d, a(72 + 16 * k2 + 4 + 4 * Tm, 4), a(72 + 16 * k2, 4), d if k2 else '0')
        for k in range(3):
            rdW(k, 5)
            rdW(k, 6)
        G1_, G2_ = 32, 36
        get(40, aKVS)
        get(41, aKVS2)
        g(f'v_mov_b32 {v(G1_ + 3)}, {v(vTAG)}')
        g(f'v_mov_b32 {v(G2_ + 3)}, {v(vTAG)}')
        g(f's_lshl_b32 {s(T0)}, {s(sR128)}, 12')
        g(f's_add_u32 {s(T0)}, {s(T0)}, {s(sKV1)}')
        for d in range(3):
            g(f'v_cvt_pk_bf16_f32 {v(G1_ + d)}, {v(KD + 2 * d)}, {v(KD + 2 * d + 1)}')
        for d in range(3):
            g(f'v_cvt_pk_bf16_f32 {v(G2_ + d)}, {v(KD + 6 + 2 * d)}, {v(KD + 7 + 2 * d)}')
        g.setexec(0x03ff03ff03ff03ff)
        g(f'buffer_store_dwordx4 {v(G1_, 4)}, {v(40)}, {s(rWS, 4)}, {s(T0)} offen sc1')
        g.setexec(0x000003ff000003ff)
        g.last_flag = g(f'buffer_store_dwordx4 {v(G2_, 4)}, {v(41)}, {s(rWS, 4)}, {s(T0)} offen sc1')
        g.setexec(-1)
        g.stamp(11)
        g(f's_mul_i32 {s(sBG)}, {s(sCG)}, {L.WOSZ}')
        g(f's_mul_i32 {s(sBL)}, {s(sW)}, {21 * 1024}')
        g(f's_add_u32 {s(sBG)}, {s(sBG)}, {s(sBL)}')
        g(f's_add_u32 {s(sBG)}, {s(sBG)}, {L.WOF}')
        woit = g.dma_items(21)
        NW0 = g.opt.nw0
        g.bg_start(woit[:NW0], 6, 3)
        H1 = 32
        get(41, aH1)
        for k in range(18):
            if k == g.opt.h1at:
                g.bg_flush()
                g(f'buffer_load_dwordx4 {v(H1, 4)}, {v(41)}, {s(rWS, 4)}, {s(sKV1)} offen sc1')
            x = XA + 8 * k
            if k + 3 < 18:
                rdW(k + 3, 5)
            for T in (5, 6):
                for t in range(2):
                    d = v(AC[t] + 4 * T, 4)
                    g.mfma(d, a(40 + 8 * (k & 3) + 4 * (T - 5), 4), v(x + 4 * t, 4), d if k else '0')
                    if T == 5 and t == 1 and k + 3 < 18:
                        rdW(k + 3, 6)
        g.stamp(12)
        g.poll_finish(H1, 41, s(sKV1), -1, 5, n=4)
        U = 116
        for d in range(3):
            g.unpack(U + 2 * d, U + 2 * d + 1, H1 + d)
        for sh in (8, 4, 2, 1):
            for d in range(6):
                g(f'v_add_f32_dpp {v(U + d)}, {v(U + d)}, {v(U + d)} row_ror:{sh} row_mask:0xf bank_mask:0xf')
        get(41, aH2)
        for d in range(3):
            g(f'v_cvt_pk_bf16_f32 {v(H1 + d)}, {v(U + 2 * d)}, {v(U + 2 * d + 1)}')
        g.setexec(0x0001000100010001)
        g.last_flag = g(f'buffer_store_dwordx4 {v(H1, 4)}, {v(41)}, {s(rWS, 4)}, {s(sKV2)} offen sc1')
        g.setexec(-1)
        g.stamp(13)
        g(f's_cmp_lg_u32 {s(sLAY)}, 0')
        with g.skip_if('s_cbranch_scc1'):
            get(42, aX1)
            g(f's_mov_b32 {s(T1)}, {L.X1P}')
            for T in range(5):
                if T == 4:
                    g(f's_add_u32 {s(T1)}, {s(T1)}, 4096')
                g(f'buffer_load_dwordx2 {a(aKEEP + 2 * T, 2)}, {v(42)}, {s(rWS, 4)}, {s(T1)} offen offset:{1024 * (T & 3)} sc1')
            if g.opt.fast:
                g(f's_lshl_b32 {s(T0)}, {s(sRB)}, 4')
                g(f's_add_u32 {s(T0)}, {s(T0)}, {s(sP)}')
                g(f's_lshl_b32 {s(T0)}, {s(T0)}, 7')
                g(f's_add_u32 {s(T0)}, {s(T0)}, {L.FO}')
                g(f's_add_u32 {s(T1)}, {s(T0)}, {1024 * 128}')
                g.fx_off(T2, T3)
                get(42, aSTP)
                for r in (T0, T1, T2):
                    g(f'buffer_load_dword {a(aJUNK)}, off, {s(rWS, 4)}, {s(r)} sc1')
                g(f'buffer_load_dword {a(aJUNK)}, {v(42)}, {s(rWS, 4)}, 0 offen sc1')
                g(f'v_lshlrev_b32 {v(42)}, 7, {v(vI)}')
                g(f's_lshl_b32 {s(T0)}, {s(sR128)}, 11')
                g(f's_add_u32 {s(T0)}, {s(T0)}, {L.FH}')
                g(f'buffer_load_dwordx4 {v(152, 4)}, {v(42)}, {s(rWS, 4)}, {s(T0)} offen sc1')
        PQ = [128, 140]
        for t in range(2):
            g(f'v_mov_b32 {v(PQ[t] + 9)}, 0')
            g(f'v_mov_b64 {v(PQ[t] + 10, 2)}, 0')
        g.softmax2([AC[0] + 19, AC[1] + 19], True, C, TM, [[PQ[t] + d for d in range(9)] for t in range(2)])
        g.stamp(14)
        if g.opt.fast:
            g(f's_cmp_lg_u32 {s(sLAY)}, 0')
            with g.skip_if('s_cbranch_scc1'):
                g(f'v_lshlrev_b32 {v(42)}, 7, {v(vI)}')
                g.poll_finish(152, 42, s(T0), -1, 12, n=4)
                g(f'v_cmp_ne_u32 vcc, {s(sXCC)}, {v(154)}')
                g('s_cmp_eq_u64 vcc, 0')
                g(f's_cselect_b32 {s(sFAST)}, {1 if g.opt.fast == 1 else 0}, 0')
        get(41, aH3)
        get(42, aKT)
        get(43, aKZ)
        g(f'v_mov_b32 {v(44)}, 0')
        g.poll([(H1, 4, 41, s(sKV2), 0)], s(sM1, 2), 6)
        g.setexec(s(sM2, 2))
        g(f'ds_write2_b32 {v(42)}, {v(H1)}, {v(H1 + 1)} offset0:0 offset1:1')
        g(f'ds_write_b32 {v(42)}, {v(H1 + 2)} offset:8')
        g.setexec(s(sM0, 2))
        g(f'ds_write2_b32 {v(43)}, {v(44)}, {v(44)} offset0:0 offset1:1')
        g(f'ds_write_b32 {v(43)}, {v(44)} offset:8')
        g.setexec(-1)
        for T in range(3):
            get(16 + T, aOA0 + T)
        g.barrier()
        g.stamp(15)
        for T in range(3):
            for kk in range(3):
                g(f'ds_read_b128 {a(72 + 12 * T + 4 * kk, 4)}, {v(16 + T)} offset:{16 * kk}')
        OD = [48, 60]
        for T in (2, 0, 1):
            for kk in range(3):
                for t in range(2):
                    d = v(OD[t] + 4 * T, 4)
                    g.mfma(d, a(72 + 12 * T + 4 * kk, 4), v(PQ[t] + 4 * kk, 4), d if kk else '0')
        get(20, aOS)
        get(21, aOE)
        RC = [22, 24]
        OP = [28, 32]
        OX = 36
        for t in range(2):
            g(f'v_add_f32 {v(RC[t])}, 0x358637bd, {v(OD[t] + 8)}')
        for t in range(2):
            g(f'v_rcp_f32 {v(RC[t])}, {v(RC[t])}')
        for t in range(2):
            g(f'v_mul_f32 {v(OD[t] + 9)}, {v(RC[t])}, {v(OD[t] + 9)}')
            g(f'v_mul_f32 {v(OD[t] + 10)}, {v(RC[t])}, {v(OD[t] + 10)}')
            g(f'v_cvt_pk_bf16_f32 {v(OX + t)}, {v(OD[t] + 9)}, {v(OD[t] + 10)}')
        for t in range(2):
            for k in range(4):
                g(f'v_pk_mul_f32 {v(OD[t] + 2 * k, 2)}, {v(OD[t] + 2 * k, 2)}, {v(RC[t], 2)} op_sel_hi:[1,0]')
            for k in range(4):
                g(f'v_cvt_pk_bf16_f32 {v(OP[t] + k)}, {v(OD[t] + 2 * k)}, {v(OD[t] + 2 * k + 1)}')
            g(f'buffer_store_dwordx4 {v(OP[t], 4)}, {v(20)}, {s(rWS, 4)}, {s(sOFB)} offen offset:{128 * t} sc1')
        g(f'v_permlane32_swap_b32 {v(OX)}, {v(OX + 1)}')
        g.setexec(0x0000ffff0000ffff)
        ho = g(f'buffer_store_dwordx2 {v(OX, 2)}, {v(21)}, {s(rWS, 4)}, {s(sOFB)} offen sc1')
        g.setexec(-1)
        g.stamp(23)
        NW1 = NW0 + g.opt.nw1
        for it in woit[NW0:NW1]:
            it()
        g(f's_lshl_b32 {s(T0)}, {s(sRB)}, 4')
        g(f's_add_u32 {s(T0)}, {s(T0)}, {s(sP)}')
        g(f's_lshl_b32 {s(T0)}, {s(T0)}, 7')
        g(f's_add_u32 {s(T0)}, {s(T0)}, {s(sFO)}')
        A2 = 48
        for k in range(10):
            get(68 + (k & 1), aKEEP + k)
            g.unpack(A2 + 2 * k, A2 + 2 * k + 1, 68 + (k & 1))
        g.stamp(24)
        g.wait_vm(ho)
        g.flag_local(T0)
        g.stamp(16)
        for it in woit[NW1:]:
            it()
        if g.opt.stop == 'o1':
            g.branch('s_branch', 'L_fin')
        YY = 78
        vWo1, vWo4, vWo5 = 6, 7, 8
        g(f'v_add_u32 {v(vWo1)}, {9 * 4608}, {v(vL16)}')
        get(vWo4, aW4)
        g(f'v_add_u32 {v(vWo5)}, {9 * 4608}, {v(vWo4)}')
        g(f'v_lshlrev_b32 {v(9)}, 8, {v(vG)}')
        g(f'v_lshl_add_u32 {v(9)}, {v(vI)}, 3, {v(9)}')

        def rdO(k, T):
            hi = k >= 9
            base = ((vL16, vWo1) if T < 4 else (vWo4, vWo5))[hi]
            off = (k - 9 * hi) * 4608 + (1024 * T if T < 4 else 0)
            g(f'ds_read_b128 {a(20 * (k % 3) + 4 * T, 4)}, {v(base)} offset:{off}')
        g(f'v_lshlrev_b32 {v(17)}, 7, {v(vI)}')
        g(f's_lshl_b32 {s(T0)}, {s(sRB2)}, 11')
        g(f's_add_u32 {s(T0)}, {s(T0)}, {s(sFO)}')
        g.poll([(18, 1, 17, s(T0), 0)], 0xffff, 7)
        g.stamp(17)
        OA = 112
        g(f's_lshl_b32 {s(T0)}, {s(sR64)}, 2')
        g(f's_add_u32 {s(T0)}, {s(T0)}, {s(sW)}')
        g(f's_mul_i32 {s(T0)}, {s(T0)}, 18432')
        g(f's_add_u32 {s(T0)}, {s(T0)}, {s(sOFB)}')
        def ldO(k):
            if k >= 18 or 'noload2' in g.opt.exp:
                return
            if k and k % 4 == 0:
                g(f's_add_u32 {s(T0)}, {s(T0)}, 4096')
            off = f' offset:{(k % 4) * 1024}' if k % 4 else ''
            if k < 16:
                g(f'buffer_load_dwordx4 {v(OA + 4 * k, 4)}, {v(vL16)}, {s(rWS, 4)}, {s(T0)} offen{off} sc1')
            else:
                for hf in range(2):
                    g(f'buffer_load_dwordx2 {v(OA + 4 * k + 2 * hf, 2)}, {v(9)}, {s(rWS, 4)}, {s(T0)} offen offset:{(k % 4) * 1024 + 128 * hf} sc1')
        NP2 = g.opt.np2
        for k in range(NP2):
            ldO(k)
        g.barrier()
        for k in range(2):
            for T in range(5):
                rdO(k, T)
        get(16, aX1)
        g(f's_mov_b32 {s(T2)}, {L.YP}')
        g(f's_mov_b32 {s(T3)}, {L.YP + 4096}')
        for k in range(18):
            for T in range(5):
                d = v(A2 + 4 * T, 4)
                g.mfma(d, a(20 * (k % 3) + 4 * T, 4), v(OA + 4 * k, 4), d)
                if k + 2 < 18:
                    rdO(k + 2, T)
                if T == 0:
                    ldO(NP2 + k)
                    if 12 <= k < 17:
                        Ty = k - 12
                        g(f'buffer_load_dwordx2 {v(YY + 2 * Ty, 2)}, {v(16)}, {s(rWS, 4)}, {s(T2 if Ty < 4 else T3)} offen offset:{1024 * (Ty & 3)} sc1')
        g.stamp(18)
        g(f's_cmp_lg_u32 {s(sLAY)}, 0')
        g.branch('s_cbranch_scc1', 'L_last')
        sDL, sDG = T4, T5
        UX = 112
        g.setexec(0xffffffff00000000)
        g(f'v_mov_b64 {v(A2 + 16, 2)}, 0')
        g(f'v_mov_b64 {v(A2 + 18, 2)}, 0')
        g.setexec(-1)
        SS, SQ = 8, 10
        g(f'v_pk_add_f32 {v(SS, 2)}, {v(A2, 2)}, {v(A2 + 2, 2)}')
        g(f'v_pk_mul_f32 {v(SQ, 2)}, {v(A2, 2)}, {v(A2, 2)}')
        g(f'v_pk_fma_f32 {v(SQ, 2)}, {v(A2 + 2, 2)}, {v(A2 + 2, 2)}, {v(SQ, 2)}')
        for k in range(2, 10):
            g(f'v_pk_add_f32 {v(SS, 2)}, {v(SS, 2)}, {v(A2 + 2 * k, 2)}')
            g(f'v_pk_fma_f32 {v(SQ, 2)}, {v(A2 + 2 * k, 2)}, {v(A2 + 2 * k, 2)}, {v(SQ, 2)}')
        SP = 12
        g(f'v_add_f32 {v(SP)}, {v(SS)}, {v(SS + 1)}')
        g(f'v_add_f32 {v(SP + 1)}, {v(SQ)}, {v(SQ + 1)}')
        get(16, aSTP)
        g(f'v_mov_b32 {v(SP + 3)}, {v(vTAG)}')
        g(f'v_mov_b32 {v(SP + 2)}, 0')
        g.xg_sum2(SP, SP + 1, 17)
        g.setexec(0xffff)
        hs = g.store_local(f'buffer_store_dwordx4 {v(SP, 4)}, {v(16)}, {s(rWS, 4)}, 0 offen')
        g.setexec(-1)
        g(f's_mul_i32 {s(sDL)}, {s(sW)}, {23 * 1024}')
        g(f's_mul_i32 {s(sDG)}, {s(sP)}, {L.WPSZ}')
        g(f's_add_u32 {s(sDG)}, {s(sDG)}, {s(sDL)}')
        g(f's_add_u32 {s(sDG)}, {s(sDG)}, {L.WP}')
        g.barrier()
        g.dma(sDL, sDG, 8)
        UY = 132
        for T in range(5):
            for d in range(2):
                g.unpack(UY + 4 * T + 2 * d, UY + 4 * T + 2 * d + 1, YY + 2 * T + d)
        get(16, aSTG)
        g(f's_movk_i32 {s(T0)}, 4096')
        g.wait_vm(hs)
        g.stamp(19)
        SA, SB = 20, 24
        g.poll([(SA, 4, 16, '0', 0), (SB, 4, 16, s(T0), 0)], -1, 8)
        g.stamp(20)
        g(f'v_pk_add_f32 {v(SA, 2)}, {v(SA, 2)}, {v(SB, 2)}')
        g.xg_sum2(SA, SA + 1, 17)
        g.ln_coef(SA, SA + 1, 8, 10)
        for k in range(10):
            g(f'v_pk_fma_f32 {v(UX + 2 * k, 2)}, {v(A2 + 2 * k, 2)}, {v(8, 2)}, {v(10, 2)} op_sel_hi:[1,0,0]')
        X3 = 28
        for k in range(10):
            g(f'v_pk_fma_f32 {v(UX + 2 * k, 2)}, {v(UX + 2 * k, 2)}, {v(UY + 2 * k, 2)}, {v(A2 + 2 * k, 2)}')
        for k in range(10):
            g(f'v_cvt_pk_bf16_f32 {v(X3 + k)}, {v(UX + 2 * k)}, {v(UX + 2 * k + 1)}')
        for k in range(5):
            g(f'v_mov_b64 {v(UY + 2 * k, 2)}, {v(X3 + 2 * k, 2)}')
        get(16, aX3)
        g(f's_mov_b32 {s(T0)}, {L.X3P}')
        g(f's_mov_b32 {s(T1)}, {L.X3P + 4096}')
        for pr in range(3):
            b = X3 + 4 * pr
            if pr < 2:
                g(f'v_mov_b64 {v(18, 2)}, {v(b, 2)}')
                for d in range(2):
                    g(f'v_mov_b32_dpp {v(b + d)}, {v(b + 2 + d)} row_ror:8 row_mask:0xf bank_mask:0xc')
                for d in range(2):
                    g(f'v_mov_b32_dpp {v(b + 2 + d)}, {v(18 + d)} row_ror:8 row_mask:0xf bank_mask:0x3')
                hx = g(f'buffer_store_dwordx4 {v(b, 4)}, {v(16)}, {s(rWS, 4)}, {s(T0)} offen offset:{2048 * pr} sc1')
            else:
                g(f'v_mov_b64 {v(b + 2, 2)}, 0')
                for d in range(2):
                    g(f'v_mov_b32_dpp {v(b + 2 + d)}, {v(b + d)} row_ror:8 row_mask:0xf bank_mask:0x3')
                g.setexec(0x00ff00ff)
                hx = g(f'buffer_store_dwordx4 {v(b, 4)}, {v(16)}, {s(rWS, 4)}, {s(T1)} offen sc1')
                g.setexec(-1)
        g(f's_add_u32 {s(sDL)}, {s(sDL)}, 4096')
        g(f's_add_u32 {s(sDG)}, {s(sDG)}, 4096')
        g.dma(sDL, sDG, 8)
        g.fx_off(T0, T1)
        for k in range(10):
            keep(aKEEP + k, UY + k)
        g.wait_vm(hx)
        g.flag_local(T0)
        g.stamp(21)
        g(f's_add_u32 {s(sDL)}, {s(sDL)}, 4096')
        g(f's_add_u32 {s(sDG)}, {s(sDG)}, 4096')
        g.dma(sDL, sDG, 7)
        if g.opt.stop == 'x3':
            g.branch('s_branch', 'L_fin')
        g(f's_mov_b32 {s(sLAY)}, 1')
        g(f's_mul_i32 {s(sXP)}, {s(sRB)}, 36864')
        g(f's_add_u32 {s(sXP)}, {s(sXP)}, {L.X3P}')
        g(f's_add_u32 {s(sOFB)}, {s(sOFB)}, {L.ARR}')
        g(f's_add_u32 {s(sKV1)}, {s(sKV1)}, {256 * 4096}')
        g(f's_add_u32 {s(sKV2)}, {s(sKV2)}, {16 * 4096}')
        g(f's_add_u32 {s(sFO)}, {s(sFO)}, {1024 * 128}')
        g(f'v_lshlrev_b32 {v(17)}, 7, {v(vI)}')
        g(f's_lshl_b32 {s(T0)}, {s(sRB)}, 11')
        g(f's_add_u32 {s(T0)}, {s(T0)}, {L.FX}')
        g.poll([(18, 1, 17, s(T0), 0)], 0xffff, 9)
        if g.opt.stamps:
            g(f'v_accvgpr_read_b32 v47, a255')
            g(f'v_accvgpr_write_b32 a254, v47')
        assert not g.vm and not g.lg
        g.branch('s_branch', 'L_layer')
        g.label('L_last')
        g.vm, g.lg = [], []
        get(16, aOUT)
        for k in range(10):
            g(f'v_cvt_pk_bf16_f32 {v(X3 + k)}, {v(A2 + 2 * k)}, {v(A2 + 2 * k + 1)}')
        g(f'v_mov_b64 {v(X3 + 10, 2)}, 0')
        for pr in range(3):
            b = X3 + 4 * pr
            g(f'v_permlane16_swap_b32 {v(b)}, {v(b + 2)}')
            g(f'v_permlane16_swap_b32 {v(b + 1)}, {v(b + 3)}')
            if pr == 2:
                g.setexec(0xffff)
            g(f'buffer_store_dwordx4 {v(b, 4)}, {v(16)}, {s(rOUT, 4)}, 0 offen offset:{64 * pr}{" sc1" if g.opt.outsc1 else ""}')
        g.setexec(-1)
        g.stamp(22)
        g.stamp(31, True)

    def finish(self):
        g = self
        g.label('L_fin')
        g.vm, g.lg = [], []
        if g.opt.stamps:
            g(f's_lshl_b32 {s(T0)}, {s(sWG)}, 2')
            g(f's_add_u32 {s(T0)}, {s(T0)}, {s(sW)}')
            g(f's_lshl_b32 {s(T0)}, {s(T0)}, 8')
            g(f's_add_u32 {s(T0)}, {s(T0)}, {L.STAMP}')
            g('v_accvgpr_read_b32 v6, a255')
            g('v_accvgpr_read_b32 v7, a254')
            g(f'v_lshlrev_b32 v8, 2, {v(vLANE)}')
            g.setexec(0xffffffff)
            g(f'buffer_store_dword v6, v8, {s(rWS, 4)}, {s(T0)} offen offset:128')
            g(f'buffer_store_dword v7, v8, {s(rWS, 4)}, {s(T0)} offen')
            g.setexec(-1)
        g(f's_or_b32 {s(T0)}, {s(sWG)}, {s(sW)}')
        g(f's_cmp_lg_u32 {s(T0)}, 0')
        with g.skip_if('s_cbranch_scc1'):
            g(f's_mov_b32 {s(T0)}, {L.E}')
            g.flag_store(T0)
        g.label('L_end')
        g('s_endpgm')

    def build(self):
        g = self
        g.prologue()
        st = g.state()
        g(f's_cmp_ge_u32 {s(sWG)}, 208')
        g.branch('s_cbranch_scc1', 'L_role_w')
        g(f's_cmp_ge_u32 {s(sWG)}, 144')
        g.branch('s_cbranch_scc1', 'L_role_q')
        g.vtmp_stamp = 250
        g.role_conv()
        g.vtmp_stamp = 47
        stc, lf = g.state(), g.last_flag
        with g.skip_if('s_cbranch_scc0'):
            g.w_wait()
        g.w_rest()
        stc = g.state()
        g.branch('s_branch', 'L_main')
        g.label('L_role_q')
        g.set_state(st)
        g.role_q()
        g.branch('s_branch', 'L_main_nc')
        g.label('L_role_w')
        g.set_state(st)
        g.role_w()
        g.vtmp_stamp = 47
        g.label('L_main_nc')
        g.vm, g.lg = [], []
        g.consts(0)
        g.clears()
        g.w_dma_setup()
        g.w_wait()
        g.w_rest()
        if 'dirty' in g.opt.exp:
            g(f's_lshl_b32 {s(T0)}, {s(sWG)}, 2')
            g(f's_add_u32 {s(T0)}, {s(T0)}, {s(sW)}')
            g(f's_lshl_b32 {s(T0)}, {s(T0)}, 14')
            g(f's_add_u32 {s(T0)}, {s(T0)}, {L.WSSZ - 144 * 65536}')
            g(f's_mov_b32 {s(rWS + 2)}, {L.WSSZ + 112 * 65536}')
            for i in range(16):
                g(f'buffer_store_dwordx4 {v(2, 4)}, {v(vL16)}, {s(rWS, 4)}, {s(T0)} offen{" sc1" if "dirtysc" in g.opt.exp else ""}')
                g(f's_add_u32 {s(T0)}, {s(T0)}, 1024')
        g.sentinel_wait()
        g.label('L_main')
        g.set_state(stc)
        g.last_flag = lf if g.opt.fcwait else None
        g.main()
        g.finish()


HEADER = '''; Persistent single-launch kernel: H3 long-conv (MFMA Hankel form) + two Hedgehog linear-attention layers.
; @launch grid=(256,1,1) block=(256,1,1) lds={lds}
.amdgcn_target "amdgcn-amd-amdhsa--gfx950"
.text
.globl {name}_kernel
.p2align 8
.type {name}_kernel,@function
{name}_kernel:
'''
FOOTER = '''.section .rodata,"a"
.p2align 6
.amdhsa_kernel {name}_kernel
  .amdhsa_next_free_vgpr 512
  .amdhsa_next_free_sgpr 102
  .amdhsa_accum_offset 256
  .amdhsa_group_segment_fixed_size 0
  .amdhsa_kernarg_size 104
  .amdhsa_user_sgpr_count 2
  .amdhsa_user_sgpr_kernarg_segment_ptr 1
  .amdhsa_system_sgpr_workgroup_id_x 1
  .amdhsa_float_denorm_mode_32 3
.end_amdhsa_kernel
'''


def generate(opt):
    k = K(opt)
    k.build()
    sys.stderr.write(f'instructions {k.stats["n"]} nop-states {k.stats["nop"]} maxv {k.maxv} maxa {k.maxa} maxs {k.maxs}\n')
    return HEADER.format(name=NAME, lds=L.LDS_SIZE) + k.text() + FOOTER.format(name=NAME)


if __name__ == '__main__':
    ap = argparse.ArgumentParser()
    ap.add_argument('-o', default=f'cdna_kernels/{NAME}.s')
    ap.add_argument('--stamps', action='store_true')
    ap.add_argument('--dbg', action='store_true')
    ap.add_argument('--stop', default='')
    ap.add_argument('--prewait', type=int, default=1)
    ap.add_argument('--sleep', type=int, default=0)
    ap.add_argument('--exp', default='')
    ap.add_argument('--outsc1', type=int, default=0)
    ap.add_argument('--h1at', type=int, default=11)
    ap.add_argument('--nw0', type=int, default=5)
    ap.add_argument('--nw1', type=int, default=8)
    ap.add_argument('--clear', type=int, default=1)
    ap.add_argument('--dmask', type=int, default=1)
    ap.add_argument('--dwho', default='qw')
    ap.add_argument('--sentinel', type=int, default=1)
    ap.add_argument('--wcnt', type=lambda x: [int(c) for c in x], default='344556')
    ap.add_argument('--fcwait', type=int, default=0)
    ap.add_argument('--fast', type=int, default=1)
    ap.add_argument('--npre', type=int, default=8)
    ap.add_argument('--np2', type=int, default=8)
    ap.add_argument('--wo_every', type=int, default=13)
    opt = ap.parse_args()
    open(opt.o, 'w').write(generate(opt))
```
